```python
import torch

def _softmax(x, axis=-1):
    return torch.softmax(x, dim=axis)
def _gelu(x):
    return torch.nn.functional.gelu(x, approximate="tanh")
def _silu(x):
    return torch.nn.functional.silu(x)
def _sigmoid(x):
    return torch.sigmoid(x)
def _layernorm(x, axis=-1, eps=1e-5):
    m = x.mean(dim=axis, keepdim=True)
    v = x.var(dim=axis, keepdim=True, unbiased=False)
    return (x - m) / torch.sqrt(v + eps)
def _scatter_add(tgt, idx, src, axis=0):
    return tgt.clone().index_add_(axis, idx, src)
def _segment_sum(src, seg, n):
    out = torch.zeros((n,) + src.shape[1:], dtype=src.dtype)
    return out.index_add_(0, seg, src)
def _pad(x, pw):
    flat = tuple(v for pair in reversed(pw) for v in pair)
    return torch.nn.functional.pad(x, flat)

kernel_name = 'standalone__detection_seg_dino__vision'

def setup_inputs():

    _w = (lambda a: (lambda t: t.to(torch.bfloat16) if t.is_floating_point() else t)(torch.as_tensor(a)))
    H = W = (224 // 2) * 2
    C = 192
    Nq = 16
    sc = C ** -0.5
    return {
        "q": _w((lambda *s: torch.randn(*s, dtype=torch.bfloat16) * 0.05)(1, Nq, C)),
        "f0": _w((lambda *s: torch.randn(*s, dtype=torch.bfloat16) * 0.8)(1, H, W, C)),
        "f1": _w((lambda *s: torch.randn(*s, dtype=torch.bfloat16) * 0.8)(1, H // 2, W // 2, C)),
        "wq": _w((lambda *s: torch.randn(*s, dtype=torch.bfloat16) * 1.6)(C, C) * sc),
        "wk": _w((lambda *s: torch.randn(*s, dtype=torch.bfloat16) * 1.6)(C, C) * sc),
        "wv": _w((lambda *s: torch.randn(*s, dtype=torch.bfloat16) * 0.8)(C, C) * sc),
        "wo": _w((lambda *s: torch.randn(*s, dtype=torch.bfloat16) * 0.8)(C, C) * sc),
    }

def reference(q, f0, f1, wq, wk, wv, wo):
    B, H, W, C = f0.shape
    f1u = (lambda x, n, axis: torch.repeat_interleave(x, n, dim=axis))((lambda x, n, axis: torch.repeat_interleave(x, n, dim=axis))(f1, 2, axis=1), 2, axis=2)
    fused = f0 + f1u
    feats = _layernorm(fused.reshape(B, H * W, C), axis=-1)
    qn = _layernorm(q, axis=-1)
    Q = torch.einsum("bnc,cd->bnd", qn, wq)
    K = torch.einsum("bmc,cd->bmd", feats, wk)
    V = torch.einsum("bmc,cd->bmd", feats, wv)
    scale = C ** -0.5
    logits = torch.einsum("bnd,bmd->bnm", Q, K) * scale
    attn = _softmax(logits, axis=-1)
    ctx = torch.einsum("bnm,bmd->bnd", attn, V)
    return q + torch.einsum("bnd,dc->bnc", ctx, wo)
```

```python
import re

REG_RE = re.compile(r'^(-|\|)?([vsa])(\d+)\|?$')
RANGE_RE = re.compile(r'^(-|\|)?([vsa])\[(\d+):(\d+)\]\|?$')

def parse_reg(tok):
    tok = tok.strip()
    m = REG_RE.match(tok)
    if m:
        return [(m.group(2), int(m.group(3)))]
    m = RANGE_RE.match(tok)
    if m:
        return [(m.group(2), i) for i in range(int(m.group(3)), int(m.group(4)) + 1)]
    if tok == 'vcc':
        return [('s', 106), ('s', 107)]
    if tok == 'exec':
        return [('s', 126), ('s', 127)]
    if tok == 'exec_lo':
        return [('s', 126)]
    if tok == 'exec_hi':
        return [('s', 127)]
    if tok == 'm0':
        return [('s', 124)]
    return []

TRANS = ('v_exp_f32', 'v_log_f32', 'v_rcp_f32', 'v_rsq_f32', 'v_sqrt_f32', 'v_sin_f32', 'v_cos_f32')

def split_ops(s):
    out, depth, cur = [], 0, ''
    for ch in s:
        if ch == '[': depth += 1
        if ch == ']': depth -= 1
        if ch == ',' and depth == 0:
            out.append(cur.strip()); cur = ''
        else:
            cur += ch
    if cur.strip(): out.append(cur.strip())
    return out

class Inst:
    pass

def classify(text):
    t = text.split(';')[0].strip()
    parts = t.split(None, 1)
    mn = parts[0]
    rest = parts[1] if len(parts) > 1 else ''
    ops = split_ops(rest)
    mods = ''
    if ops:
        sp = ops[-1].split(None, 1)
        if len(sp) > 1:
            ops[-1] = sp[0]; mods = sp[1]
    I = Inst(); I.mn = mn; I.ops = ops; I.mods = mods
    I.dst = []; I.src = []; I.kind = 'other'; I.ws = 1
    R = [parse_reg(o) for o in ops]
    if mn == 's_nop':
        I.ws = int(ops[0], 0) + 1; I.kind = 'nop'
    elif mn.startswith('v_mfma'):
        I.kind = 'mfma'
        I.dst = R[0]; I.A = R[1]; I.B = R[2]; I.C = R[3] if len(R) > 3 else []
        I.src = I.A + I.B + I.C
        if mn.endswith('_f32') and ('x4_f32' in mn or 'x2_f32' in mn):
            I.xdl = False
            I.passes = 8 if '16x16x4' in mn else 16
        else:
            I.xdl = True
            I.passes = 8 if '32x32' in mn else 4
    elif mn.startswith('v_'):
        I.kind = 'valu'
        if mn.startswith('v_cmp'):
            I.dst = R[0]; I.src = sum(R[1:], [])
        elif mn.startswith('v_readlane') or mn.startswith('v_readfirstlane'):
            I.dst = R[0]; I.src = sum(R[1:], []); I.kind = 'readlane'
        elif 'permlane' in mn and 'swap' in mn:
            I.dst = R[0] + R[1]; I.src = R[0] + R[1]; I.kind = 'permlane'
        else:
            I.dst = R[0]; I.src = sum(R[1:], [])
            if mn.startswith('v_fmac') or mn.startswith('v_dot2c') or mn.startswith('v_writelane'):
                I.src = I.src + R[0]
            if mn.startswith('v_cndmask') and len(ops) == 4 and ops[3] == 'vcc':
                pass
            if mn.startswith('v_add_co') or mn.startswith('v_addc_co') or mn.startswith('v_sub_co'):
                I.dst = R[0] + R[1]; I.src = sum(R[2:], [])
            if 'dpp' in mn or 'row_' in mods or 'quad_perm' in mods:
                I.kind = 'dpp'
        I.trans = any(mn.startswith(x) for x in TRANS)
    elif mn.startswith('ds_'):
        I.kind = 'ds'
        if mn.startswith('ds_read') or mn.startswith('ds_bpermute') or mn.startswith('ds_permute') or mn.startswith('ds_swizzle') or '_rtn' in mn:
            I.dst = R[0]; I.src = sum(R[1:], [])
        else:
            I.src = sum(R, [])
    elif mn.startswith('buffer_') or mn.startswith('global_'):
        I.kind = 'vmem'
        lds = ('lds' in mods.split()) or ('_lds_' in mn)
        I.lds = lds
        if mn in ('buffer_inv', 'buffer_wbl2'):
            pass
        elif 'store' in mn:
            I.src = sum(R, [])
            if mn.startswith('buffer_'):
                I.data = R[0]
            else:
                I.data = R[1]
            I.wide = ('x4' in mn or 'x3' in mn)
        elif 'atomic' in mn:
            if 'sc0' in mods:
                I.dst = R[0]; I.src = sum(R[1:], [])
            else:
                I.src = sum(R, [])
        else:
            if lds:
                I.src = sum(R, [])
            else:
                I.dst = R[0]; I.src = sum(R[1:], [])
    elif mn.startswith('s_'):
        I.kind = 'salu'
        if mn.startswith('s_cmp') or mn.startswith('s_cbranch') or mn.startswith('s_branch') or mn in ('s_waitcnt', 's_barrier', 's_endpgm', 's_sleep', 's_setprio', 's_bitcmp1_b32', 's_bitcmp0_b32'):
            I.src = sum(R, [])
        else:
            I.dst = R[0] if R else []; I.src = sum(R[1:], [])
    return I

class Asm:
    def __init__(self):
        self.lines = []
        self.hist = []
        self.pos = 0
        self.nnops = 0
    def raw(self, s):
        self.lines.append(s)
    def comment(self, s):
        self.lines.append('    ; ' + s)
    def _need(self, I):
        need = 0
        for (P, ppos) in self.hist:
            dist = self.pos - ppos - P.ws
            req = self._req(P, I)
            if req - dist > need: need = req - dist
        return need
    def _req(self, P, I):
        req = 0
        pd = set(P.dst);
        isrc = set(I.src); idst = set(I.dst)
        valu_like_I = I.kind in ('valu', 'dpp', 'readlane', 'permlane')
        valu_like_P = P.kind in ('valu', 'dpp', 'readlane', 'permlane')
        if valu_like_P:
            vd = {r for r in pd if r[0] in 'va'}
            sd = {r for r in pd if r[0] == 's'}
            if vd & isrc:
                if I.kind == 'mfma': req = max(req, 2)
                if I.kind == 'dpp': req = max(req, 2)
                if I.kind == 'permlane': req = max(req, 2)
                if I.kind == 'readlane': req = max(req, 1)
                if getattr(P, 'trans', False): req = max(req, 1)
            if sd & isrc or (sd & {('s',106),('s',107)} and I.mn.startswith('v_cndmask')):
                if I.kind == 'vmem': req = max(req, 5)
                elif I.kind == 'readlane': req = max(req, 4)
                elif valu_like_I or I.kind == 'mfma': req = max(req, 2)
            if I.mn.startswith('v_cndmask') and sd & {('s',106),('s',107)}:
                req = max(req, 2)
        if P.mn.startswith('v_dot'):
            if pd & (isrc | idst):
                if I.mn == P.mn:
                    ab = set(sum([parse_reg(o) for o in (I.ops[1:3])], []))
                    if pd & ab: req = max(req, 3)
                else:
                    req = max(req, 3)
        if P.kind == 'mfma':
            if P.xdl:
                big = {2: 5, 4: 8, 8: 12, 16: 20}[P.passes]
                ovl = {2: 4, 4: 6, 8: 10, 16: 18}[P.passes]
                war = {2: 1, 4: 3, 8: 7, 16: 15}[P.passes]
            else:
                big = {4: 6, 8: 10, 16: 18}[P.passes]
                ovl = {4: 4, 8: 8, 16: 16}[P.passes]
                war = 0
            if I.kind == 'mfma':
                if pd & (set(I.A) | set(I.B)): req = max(req, big)
                if pd & set(I.C):
                    if P.xdl and I.xdl:
                        if P.dst == I.C and P.passes == I.passes: pass
                        else: req = max(req, ovl)
                    elif P.xdl and not I.xdl: req = max(req, ovl)
                    elif (not P.xdl) and I.xdl: pass
                    else:
                        if P.dst == I.C: pass
                        else: req = max(req, ovl)
                if (pd & idst) and not (P.dst == I.C): req = max(req, big)
            else:
                if pd & (isrc | idst): req = max(req, big)
                if valu_like_I and (set(P.C) & idst): req = max(req, war)
        if P.kind == 'salu' and ('s', 124) in pd and I.kind == 'vmem' and getattr(I, 'lds', False):
            req = max(req, 1)
        if P.kind == 'vmem' and getattr(P, 'wide', False):
            if set(P.data) & idst:
                req = max(req, 2 if valu_like_I else 1)
        return req
    def emit(self, text):
        for line in text.strip().split('\n'):
            line = line.strip()
            if not line: continue
            if line.startswith(';'):
                self.lines.append('    ' + line); continue
            if line.endswith(':'):
                self.label(line[:-1]); continue
            I = classify(line)
            n = self._need(I)
            while n > 0:
                k = min(n, 16)
                self.lines.append('    s_nop %d' % (k - 1))
                self.pos += k; n -= k; self.nnops += 1
            self.lines.append('    ' + line)
            self.hist.append((I, self.pos))
            self.pos += I.ws
            self.hist = [(P, p) for (P, p) in self.hist if self.pos - p < 24]
            if I.mn.startswith('s_cbranch') or I.mn.startswith('s_branch'):
                pass
    def flush(self):
        need = 0
        for (P, ppos) in self.hist:
            dist = self.pos - ppos - P.ws
            r = 0
            if P.kind == 'mfma': r = 20 if P.passes == 16 else (12 if P.passes == 8 else 8)
            elif P.kind in ('valu', 'dpp', 'readlane', 'permlane'):
                r = 5 if any(x[0] == 's' for x in P.dst) else 3
            elif P.kind == 'vmem' and getattr(P, 'wide', False): r = 2
            elif P.kind == 'salu' and ('s', 124) in P.dst: r = 1
            need = max(need, r - dist)
        n = need
        while n > 0:
            k = min(n, 16)
            self.lines.append('    s_nop %d' % (k - 1))
            self.pos += k; n -= k
        self.hist = []
    def label(self, name):
        self.flush()
        self.lines.append(name + ':')
    def branch(self, text):
        self.flush()
        self.lines.append('    ' + text)
        self.pos += 1
    def text(self):
        return '\n'.join(self.lines) + '\n'
```

```python
import sys, argparse
from asmdsl import Asm

KNAME = 'standalone__detection_seg_dino__vision_kernel'

WS_QK = 0
WS_SQ = 6144
WS_ML = 8192
WS_Z = 65536
NMAIN = 224
FLAG_QK = 224

XREG = 15392
L_QK = 0
L_WF = L_QK + 6144
L_WC = L_WF + 7168
L_SQ = L_WC + 2048
L_MX = L_SQ + 64
L_LS = L_MX + 64
L_CO = L_LS + 64
L_X = 15616
LQ_QN = 0
LQ_RED = LQ_QN + 6144
LQ_W = 12288
LF_ZR = 0
LF_SCT = LF_ZR + 12288
LF_WM = LF_SCT + 1024
LF_WL = LF_WM + 32
LF_ZB = LF_WL + 32
LF_CTX = LF_ZB + 384
LF_WV = 14336
LF_WO = LF_WV + 73728
LDS_TOTAL = LF_WO + 73728

SC = ' sc1'

QSCALE = (192.0 ** -0.5) * 1.4426950408889634

import struct
def f32bits(x):
    return '0x%08x' % struct.unpack('<I', struct.pack('<f', x))[0]

def vr(a, n):
    return 'v[%d:%d]' % (a, a + n - 1)

class Gen:
    def __init__(self, fused, stamps=False):
        self.a = Asm()
        self.fused = fused
        self.stamps = stamps
        self.sc = SC if fused else ''
        self.uid = 0

    def lab(self, base):
        self.uid += 1
        return 'L_%s_%d' % (base, self.uid)

    def prologue(self):
        a = self.a
        a.emit('''
        s_load_dwordx16 s[8:23], s[0:1], 0
        s_load_dwordx4 s[24:27], s[0:1], 64
        v_and_b32 v1, 63, v0
        v_lshrrev_b32 v4, 6, v0
        v_and_b32 v2, 15, v1
        v_readfirstlane_b32 s28, v4
        v_lshrrev_b32 v3, 4, v1
        s_waitcnt lgkmcnt(0)
        ''')

    def stamp(self, idx):
        if not self.stamps: return
        a = self.a
        a.emit('''
        s_memrealtime s[90:91]
        s_lshl_b32 s92, s2, 3
        s_add_u32 s92, s92, s28
        s_lshl_b32 s92, s92, 7
        s_add_u32 s92, s92, %d
        v_mov_b32 v250, s92
        s_waitcnt lgkmcnt(0)
        v_mov_b32 v252, s90
        v_mov_b32 v253, s91
        s_mov_b64 s[94:95], exec
        s_mov_b64 exec, 1
        global_store_dwordx2 v250, v[252:253], s[26:27]
        s_mov_b64 exec, s[94:95]
        ''' % (0x1000000 + idx * 8))

    def load_wT_issue(self, sptr, lds_base_sreg, vtmp):
        a = self.a
        a.emit('''
        v_lshrrev_b32 v%d, 2, v1
        v_mul_u32_u24 v%d, 384, v%d
        v_and_b32 v%d, 3, v1
        v_lshl_add_u32 v%d, v%d, 4, v%d
        s_lshl_b32 s29, s28, 6
        v_add_u32 v%d, s29, v%d
        s_mov_b32 m0, s%d
        ''' % (vtmp, vtmp, vtmp, vtmp + 1, vtmp, vtmp + 1, vtmp, vtmp, vtmp, lds_base_sreg))
        for i in range(12):
            a.emit('global_load_lds_dwordx4 v%d, s[%d:%d]' % (vtmp, sptr, sptr + 1))
            if i < 11:
                a.emit('v_add_u32 v%d, 6144, v%d' % (vtmp, vtmp))
                a.emit('s_add_u32 m0, m0, 1024')

    def load_wT_read(self, lds_base_sreg, dst, vaddr):
        a = self.a
        a.emit('''
        v_bfe_u32 v%d, v1, 2, 2
        v_lshl_add_u32 v%d, v3, 3, v%d
        v_lshlrev_b32 v%d, 6, v%d
        v_and_b32 v%d, 3, v1
        v_lshl_add_u32 v%d, v%d, 3, v%d
        v_add_u32 v%d, s%d, v%d
        ''' % (vaddr, vaddr, vaddr, vaddr, vaddr, vaddr + 1, vaddr, vaddr + 1, vaddr, vaddr, lds_base_sreg, vaddr))
        for d in range(2):
            for ks in range(6):
                for h in range(2):
                    r = dst + (d * 6 + ks) * 4 + h * 2
                    a.emit('ds_read_b64_tr_b16 %s, v%d offset:%d' % (vr(r, 2), vaddr, ks * 2048 + h * 256 + d * 32))

    def role_qk(self):
        a = self.a
        a.branch('s_cmp_ge_u32 s28, 6')
        a.branch('s_cbranch_scc1 L_end')
        VQ = 8
        VWK = 32
        VWQ = 36
        VQN = 84
        T = 108
        a.emit('s_mul_i32 s31, s28, 12288')
        a.emit('s_add_u32 s31, s31, %d' % LQ_W)
        a.emit('''
        v_mul_u32_u24 v4, 384, v2
        v_lshl_add_u32 v4, v3, 4, v4
        ''')
        for ks in range(6):
            a.emit('global_load_dwordx4 %s, v4, s[8:9] offset:%d' % (vr(VQ + 4 * ks, 4), ks * 64))
        a.emit('''
        s_lshl_b32 s29, s30, 4
        v_add_u32 v5, s29, v2
        v_mul_u32_u24 v5, 384, v5
        v_lshl_add_u32 v5, v3, 3, v5
        s_lshl_b32 s29, s28, 6
        v_add_u32 v5, s29, v5
        global_load_dwordx2 %s, v5, s[16:17]
        global_load_dwordx2 %s, v5, s[16:17] offset:32
        ''' % (vr(VWK, 2), vr(VWK + 2, 2)))
        self.load_wT_issue(14, 31, 6)
        a.emit('''
        v_mov_b32 v%d, 0x3f803f80
        v_mov_b32 v%d, 1.0
        v_mov_b32 v%d, 0
        v_mov_b32 v%d, 0
        s_waitcnt vmcnt(14)
        ''' % (T, T + 1, T + 2, T + 3))
        for i in range(24):
            a.emit('v_dot2c_f32_bf16 v%d, v%d, v%d' % (T + 2, VQ + i, T))
            a.emit('v_dot2c_f32_bf16 v%d, v%d, v%d' % (T + 3, VQ + i, VQ + i))
        a.emit('v_mfma_f32_16x16x4_f32 %s, v%d, v%d, 0' % (vr(T + 4, 4), T + 1, T + 2))
        a.emit('v_mfma_f32_16x16x4_f32 %s, v%d, v%d, 0' % (vr(T + 8, 4), T + 1, T + 3))
        MEAN, SSQ = T + 4, T + 8
        a.emit('''
        s_mov_b32 s32, %s
        v_mul_f32 v%d, s32, v%d
        v_mul_f32 v%d, s32, v%d
        ''' % (f32bits(1.0 / 192), MEAN, MEAN, SSQ, SSQ))
        a.emit('v_fma_f32 v%d, -v%d, v%d, v%d' % (SSQ, MEAN, MEAN, SSQ))
        a.emit('v_max_f32 v%d, 0, v%d' % (SSQ, SSQ))
        a.emit('v_cvt_pk_bf16_f32 v%d, v%d, v%d' % (T + 12, MEAN, SSQ))
        a.emit('v_lshlrev_b32 v%d, 16, v%d' % (MEAN, T + 12))
        a.emit('v_and_b32 v%d, 0xffff0000, v%d' % (SSQ, T + 12))
        a.emit('v_add_f32 v%d, %s, v%d' % (SSQ, f32bits(1e-5), SSQ))
        a.emit('v_cvt_pk_bf16_f32 v%d, v%d, v%d' % (T + 12, SSQ, SSQ))
        a.emit('v_lshlrev_b32 v%d, 16, v%d' % (SSQ, T + 12))
        a.emit('v_sqrt_f32 v%d, v%d' % (SSQ, SSQ))
        a.emit('v_cvt_pk_bf16_f32 v%d, v%d, v%d' % (T + 12, SSQ, SSQ))
        a.emit('v_lshlrev_b32 v%d, 16, v%d' % (SSQ, T + 12))
        a.emit('v_rcp_f32 v%d, v%d' % (SSQ, SSQ))
        labs = [self.lab('qkn') for _ in range(7)]
        for t in range(6):
            if t < 5:
                a.branch('s_cmp_lg_u32 s28, %d' % t)
                a.branch('s_cbranch_scc1 %s' % labs[t])
            for j in range(4):
                src = VQ + 4 * t + j
                a.emit('v_lshlrev_b32 v%d, 16, v%d' % (T + 16, src))
                a.emit('v_and_b32 v%d, 0xffff0000, v%d' % (T + 17, src))
                a.emit('v_sub_f32 v%d, v%d, v%d' % (T + 16, T + 16, MEAN))
                a.emit('v_sub_f32 v%d, v%d, v%d' % (T + 17, T + 17, MEAN))
                a.emit('v_cvt_pk_bf16_f32 v%d, v%d, v%d' % (T + 18, T + 16, T + 17))
                a.emit('v_lshlrev_b32 v%d, 16, v%d' % (T + 16, T + 18))
                a.emit('v_and_b32 v%d, 0xffff0000, v%d' % (T + 17, T + 18))
                a.emit('v_mul_f32 v%d, v%d, v%d' % (T + 16, T + 16, SSQ))
                a.emit('v_mul_f32 v%d, v%d, v%d' % (T + 17, T + 17, SSQ))
                a.emit('v_cvt_pk_bf16_f32 v%d, v%d, v%d' % (T + 20 + j, T + 16, T + 17))
            if t < 5:
                a.branch('s_branch %s' % labs[6])
                a.label(labs[t])
        a.label(labs[6])
        a.emit('''
        v_lshlrev_b32 v4, 4, v1
        s_lshl_b32 s29, s28, 10
        v_add_u32 v5, s29, v4
        ds_write_b128 v5, %s offset:%d
        s_waitcnt lgkmcnt(0)
        s_barrier
        ''' % (vr(T + 20, 4), LQ_QN))
        for ks in range(6):
            a.emit('ds_read_b128 %s, v4 offset:%d' % (vr(VQN + 4 * ks, 4), LQ_QN + ks * 1024))
        a.emit('s_waitcnt vmcnt(0)')
        self.load_wT_read(31, VWQ, 6)
        a.emit('s_waitcnt lgkmcnt(0)')
        D1 = T + 24
        for ks in range(6):
            for d in range(2):
                c = '0' if ks == 0 else vr(D1 + 4 * d, 4)
                a.emit('v_mfma_f32_16x16x32_bf16 %s, %s, %s, %s' % (vr(D1 + 4 * d, 4), vr(VWQ + (d * 6 + ks) * 4, 4), vr(VQN + 4 * ks, 4), c))
        P = T + 32
        a.emit('v_cvt_pk_bf16_f32 v%d, v%d, v%d' % (P, D1, D1 + 1))
        a.emit('v_cvt_pk_bf16_f32 v%d, v%d, v%d' % (P + 1, D1 + 2, D1 + 3))
        a.emit('v_cvt_pk_bf16_f32 v%d, v%d, v%d' % (P + 2, D1 + 4, D1 + 5))
        a.emit('v_cvt_pk_bf16_f32 v%d, v%d, v%d' % (P + 3, D1 + 6, D1 + 7))
        D2 = T + 36
        a.emit('v_mfma_f32_16x16x32_bf16 %s, %s, %s, 0' % (vr(D2, 4), vr(VWK, 4), vr(P, 4)))
        a.emit('''
        s_lshl_b32 s29, s28, 10
        v_add_u32 v5, s29, v4
        ds_write_b128 v5, %s offset:%d
        s_waitcnt lgkmcnt(0)
        s_barrier
        ''' % (vr(D2, 4), LQ_RED))
        a.branch('s_cmp_lg_u32 s28, 0')
        a.branch('s_cbranch_scc1 L_end')
        for t in range(6):
            a.emit('ds_read_b128 %s, v4 offset:%d' % (vr(VQ + 4 * t, 4), LQ_RED + t * 1024))
        a.emit('s_waitcnt lgkmcnt(0)')
        for t in range(1, 6):
            for r in range(4):
                a.emit('v_add_f32 v%d, v%d, v%d' % (VQ + r, VQ + r, VQ + 4 * t + r))
        a.emit('s_mov_b32 s32, %s' % f32bits(QSCALE))
        for r in range(4):
            a.emit('v_mul_f32 v%d, s32, v%d' % (VQ + r, VQ + r))
        a.emit('v_cvt_pk_bf16_f32 v%d, v%d, v%d' % (P, VQ, VQ + 1))
        a.emit('v_cvt_pk_bf16_f32 v%d, v%d, v%d' % (P + 1, VQ + 2, VQ + 3))
        a.emit('v_mov_b32 v%d, 0' % (T + 2))
        a.emit('v_dot2c_f32_bf16 v%d, v%d, v%d' % (T + 2, P, T))
        a.emit('v_dot2c_f32_bf16 v%d, v%d, v%d' % (T + 2, P + 1, T))
        a.emit('v_mfma_f32_16x16x4_f32 %s, v%d, v%d, 0' % (vr(T + 4, 4), T + 1, T + 2))
        a.emit('''
        s_lshr_b32 s29, s30, 1
        s_lshl_b32 s29, s29, 10
        s_and_b32 s33, s30, 1
        s_lshl_b32 s33, s33, 8
        s_add_u32 s29, s29, s33
        v_lshrrev_b32 v5, 1, v3
        v_lshlrev_b32 v5, 9, v5
        v_lshl_add_u32 v5, v2, 4, v5
        v_and_b32 v6, 1, v3
        v_lshl_add_u32 v5, v6, 3, v5
        v_add_u32 v5, s29, v5
        global_store_dwordx2 v5, %s, s[26:27] offset:%d%s
        s_lshl_b32 s29, s30, 6
        v_lshl_add_u32 v6, v2, 2, s29
        v_add_u32 v6, %d, v6
        s_mov_b32 exec_lo, 0xffff
        s_mov_b32 exec_hi, 0
        global_store_dword v6, v%d, s[26:27]%s
        ''' % (vr(P, 2), WS_QK, self.sc, WS_SQ, T + 4, self.sc))
        if self.fused:
            a.emit('''
            s_waitcnt vmcnt(0)
            s_mov_b64 exec, 1
            v_mov_b32 v5, 1
            s_add_u32 s29, s30, %d
            v_mov_b32 v6, s29
            global_store_byte v6, v5, s[24:25] sc1
            ''' % FLAG_QK)
        a.branch('s_branch L_end')

    def poll(self, byte_off_sreg_or_imm, ndw, lastmask, vt):
        a = self.a
        lp, ld = self.lab('poll'), self.lab('polld')
        a.emit('''
        s_mov_b64 s[40:41], exec
        s_mov_b64 exec, %d
        v_lshlrev_b32 v%d, 2, v1
        v_add_u32 v%d, %s, v%d
        v_mov_b32 v%d, 0x01010101
        s_mov_b32 s42, 0
        ''' % ((1 << ndw) - 1, vt, vt, byte_off_sreg_or_imm, vt, vt + 1))
        a.label(lp)
        a.emit('''
        global_load_dword v%d, v%d, s[24:25] sc1
        s_add_u32 s42, s42, 1
        s_waitcnt vmcnt(0)
        v_cmp_ne_u32 vcc, v%d, v%d
        ''' % (vt + 2, vt, vt + 2, vt + 1))
        a.branch('s_cbranch_vccz %s' % ld)
        a.emit('s_cmp_lt_u32 s42, 0x40000')
        a.branch('s_cbranch_scc1 %s' % lp)
        a.label(ld)
        a.emit('s_mov_b64 exec, s[40:41]')

    def role_main(self):
        a = self.a
        lh = self.lab('helper')
        a.branch('s_cmp_eq_u32 s28, 7')
        a.branch('s_cbranch_scc1 %s' % lh)
        F1, T0, T1, QK = 24, 48, 72, 96
        ONES = 20
        S1, S0, S0b = 120, 124, 128
        SS0, SS1 = 132, 136
        AC = 140
        RS = 148
        MR = 156
        L1, L0, L0b = 164, 168, 172
        TM = 176
        a.emit('''
        s_lshr_b32 s31, s30, 1
        s_and_b32 s32, s30, 1
        s_mul_i32 s32, s32, 56
        s_lshl_b32 s33, s28, 3
        s_add_u32 s32, s32, s33
        s_mul_i32 s33, s31, 112
        s_add_u32 s33, s33, s32
        s_mul_i32 s33, s33, 384
        s_add_u32 s34, s12, s33
        s_addc_u32 s35, s13, 0
        s_mul_i32 s33, s31, 448
        s_lshl_b32 s32, s32, 1
        s_add_u32 s33, s33, s32
        s_mul_i32 s33, s33, 384
        s_add_u32 s36, s10, s33
        s_addc_u32 s37, s11, 0
        s_add_u32 s38, s36, 86016
        s_addc_u32 s39, s37, 0
        s_mul_i32 s43, s28, %d
        s_add_u32 s43, s43, %d
        ''' % (XREG, L_X))
        a.emit('s_movk_i32 s44, 2731')
        for jj in range(3):
            a.emit('''
            v_add_u32 v%d, %d, v1
            v_mul_u32_u24 v%d, s44, v%d
            v_lshrrev_b32 v%d, 16, v%d
            v_mul_u32_u24 v%d, 24, v%d
            v_sub_u32 v%d, v%d, v%d
            ''' % (TM, 64 * jj, TM + 1, TM, TM + 1, TM + 1, TM + 2, TM + 1, TM, TM, TM + 2))
            a.emit('''
            v_bfe_u32 v%d, v%d, 1, 1
            v_bfe_u32 v%d, v%d, 2, 1
            v_lshl_add_u32 v%d, v%d, 2, v%d
            v_xor_b32 v%d, v%d, v%d
            v_mul_u32_u24 v%d, 384, v%d
            v_lshl_add_u32 v%d, v%d, 4, v%d
            v_bfe_u32 v%d, v%d, 1, 2
            v_lshlrev_b32 v%d, 1, v%d
            v_xor_b32 v%d, v%d, v%d
            v_lshl_add_u32 v%d, v%d, 4, v%d
            v_xor_b32 v%d, 16, v%d
            ''' % (TM + 2, TM + 1,
                   TM + 3, TM + 1,
                   TM + 2, TM + 2, TM + 3,
                   TM + 2, TM + 2, TM,
                   TM + 3, TM + 1,
                   4 + jj, TM + 2, TM + 3,
                   TM + 2, TM + 1,
                   TM + 2, TM + 2,
                   TM + 2, TM + 2, TM,
                   7 + jj, TM + 2, TM + 3,
                   10 + jj, 7 + jj))
        for jj in range(3):
            a.emit('s_add_u32 m0, s43, %d' % (jj * 1024))
            a.emit('global_load_lds_dwordx4 v%d, s[34:35]' % (4 + jj))
        for t, sp in ((0, 36), (1, 38)):
            for jj in range(3):
                a.emit('s_add_u32 m0, s43, %d' % (3072 + t * 6144 + jj * 1024))
                a.emit('global_load_lds_dwordx4 v%d, s[%d:%d]' % (7 + jj, sp, sp + 1))
                a.emit('global_load_lds_dwordx4 v%d, s[%d:%d] offset:3072' % (10 + jj, sp, sp + 1))
        self.stamp(1)
        a.emit('''
        v_and_b32 v%d, 1, v3
        v_lshlrev_b32 v%d, 1, v%d
        v_lshrrev_b32 v%d, 1, v3
        v_or_b32 v%d, v%d, v%d
        v_bfe_u32 v%d, v2, 1, 2
        v_lshlrev_b32 v%d, 1, v%d
        v_lshrrev_b32 v%d, 3, v2
        v_or_b32 v%d, v%d, v%d
        v_xor_b32 v%d, v%d, v%d
        v_mul_u32_u24 v13, 384, v2
        v_lshl_add_u32 v13, v%d, 4, v13
        v_add_u32 v13, s43, v13
        v_xor_b32 v14, 64, v13
        ''' % (TM, TM, TM, TM + 1, TM, TM, TM + 1,
               TM + 1, TM + 1, TM + 1, TM + 2, TM + 1, TM + 1, TM + 2,
               TM + 1, TM + 1, TM,
               TM + 1))
        a.emit('''
        v_bfe_u32 v%d, v2, 2, 1
        v_lshlrev_b32 v%d, 2, v%d
        v_lshrrev_b32 v%d, 3, v2
        v_or_b32 v%d, v%d, v%d
        v_xor_b32 v%d, v%d, v%d
        v_lshrrev_b32 v%d, 1, v2
        v_mul_u32_u24 v15, 384, v%d
        v_lshlrev_b32 v%d, 4, v%d
        v_add_u32 v16, v15, v%d
        v_xor_b32 v%d, 64, v%d
        v_add_u32 v15, v15, v%d
        v_add_u32 v16, s43, v16
        v_add_u32 v15, s43, v15
        ''' % (TM + 1, TM + 1, TM + 1, TM + 2, TM + 1, TM + 1, TM + 2,
               TM + 1, TM + 1, TM,
               TM + 2,
               TM + 2,
               TM + 1, TM + 1,
               TM + 1,
               TM + 1, TM + 1,
               TM + 1))
        a.emit('''
        v_and_b32 v%d, 1, v3
        v_lshlrev_b32 v%d, 1, v%d
        v_lshrrev_b32 v%d, 1, v3
        v_or_b32 v%d, v%d, v%d
        v_bfe_u32 v%d, v2, 1, 2
        v_lshlrev_b32 v%d, 1, v%d
        v_lshrrev_b32 v%d, 3, v2
        v_or_b32 v%d, v%d, v%d
        v_xor_b32 v%d, v%d, v%d
        v_xor_b32 v%d, 4, v%d
        v_mul_u32_u24 v14, 384, v2
        v_lshl_add_u32 v14, v%d, 4, v14
        v_add_u32 v14, s43, v14
        ''' % (TM, TM, TM, TM + 1, TM, TM, TM + 1,
               TM + 1, TM + 1, TM + 1, TM + 2, TM + 1, TM + 1, TM + 2,
               TM + 1, TM + 1, TM,
               TM + 1, TM + 1,
               TM + 1))
        a.emit('''
        v_mov_b32 v17, 1.0
        v_lshlrev_b32 v18, 4, v1
        v_lshlrev_b32 v19, 2, v2
        v_mov_b32 v20, 0x3f803f80
        v_mov_b32 v21, 0x3f803f80
        v_mov_b32 v22, 0x3f803f80
        v_mov_b32 v23, 0x3f803f80
        ''')
        for i in range(8):
            a.emit('v_mov_b32 v%d, 0' % (AC + i))

        def aread(dst, ve, vo, off):
            for ks in range(6):
                a.emit('ds_read_b128 %s, v%d offset:%d' % (vr(dst + 4 * ks, 4), ve if ks % 2 == 0 else vo, off + (ks >> 1) * 128))

        a.emit('s_waitcnt vmcnt(12)')
        aread(F1, 16, 15, 0)
        a.emit('s_waitcnt lgkmcnt(0)')
        for ks in range(6):
            a.emit('v_mfma_f32_16x16x32_bf16 %s, %s, %s, %s' % (vr(S1, 4), vr(F1 + 4 * ks, 4), vr(ONES, 4), '0' if ks == 0 else vr(S1, 4)))
            for j in range(4):
                r = F1 + 4 * ks + j
                a.emit('v_dot2c_f32_bf16 v%d, v%d, v%d' % (AC + (j & 1), r, r))
        a.emit('v_add_f32 v%d, v%d, v%d' % (AC, AC, AC + 1))
        for t, (TT, SD, SSD, wait) in enumerate(((T0, S0, SS0, 6), (T1, S0b, SS1, 0))):
            ac = AC + 2 + 0
            if t == 1:
                for i in range(4):
                    a.emit('v_mov_b32 v%d, 0' % (ac + i))
            a.emit('s_waitcnt vmcnt(%d)' % wait)
            aread(TT, 13, 14, 3072 + t * 6144)
            a.emit('s_waitcnt lgkmcnt(0)')
            for ks in range(6):
                a.emit('v_mfma_f32_16x16x32_bf16 %s, %s, %s, %s' % (vr(SD, 4), vr(TT + 4 * ks, 4), vr(ONES, 4), vr(S1, 4) if ks == 0 else vr(SD, 4)))
                for j in range(4):
                    r = TT + 4 * ks + j
                    a.emit('v_dot2c_f32_bf16 v%d, v%d, v%d' % (ac + (j & 1), r, r))
                    a.emit('v_dot2c_f32_bf16 v%d, v%d, v%d' % (ac + 2 + (j & 1), r, F1 + 4 * ks + j))
            a.emit('''
            v_add_f32 v%d, v%d, v%d
            v_add_f32 v%d, v%d, v%d
            v_add_f32 v%d, v%d, v%d
            v_fma_f32 v%d, 2.0, v%d, v%d
            v_mfma_f32_16x16x4_f32 %s, v%d, v17, 0
            ''' % (ac, ac, ac + 1, ac + 2, ac + 2, ac + 3, ac, ac, AC, ac, ac + 2, ac, vr(SSD, 4), ac))
        self.stamp(2)
        a.emit('s_mov_b32 s44, %s' % f32bits(1.0 / 192))
        a.emit('s_mov_b32 s45, %s' % f32bits(1e-5))
        for t, (SD, SSD) in enumerate(((S0, SS0), (S0b, SS1))):
            for r in range(4):
                m, s = SD + r, SSD + r
                a.emit('v_mul_f32 v%d, s44, v%d' % (m, m))
            for r in range(4):
                m, s = SD + r, SSD + r
                a.emit('v_mul_f32 v%d, v%d, v%d' % (TM + r, m, m))
            for r in range(4):
                m, s = SD + r, SSD + r
                a.emit('v_fma_f32 v%d, v%d, s44, -v%d' % (s, s, TM + r))
            for r in range(4):
                m, s = SD + r, SSD + r
                a.emit('v_max_f32 v%d, 0, v%d' % (s, s))
            for r in range(4):
                m, s = SD + r, SSD + r
                a.emit('v_add_f32 v%d, s45, v%d' % (s, s))
            for r in range(4):
                m, s = SD + r, SSD + r
                a.emit('v_rsq_f32 v%d, v%d' % (RS + 4 * t + r, s))
            for r in range(4):
                m, s = SD + r, SSD + r
                a.emit('v_mul_f32 v%d, v%d, v%d' % (MR + 4 * t + r, m, RS + 4 * t + r))
        a.emit('s_barrier')
        self.stamp(3)
        for ks in range(6):
            a.emit('ds_read_b128 %s, v18 offset:%d' % (vr(QK + 4 * ks, 4), L_QK + ks * 1024))
        a.emit('ds_read_b32 v%d, v19 offset:%d' % (TM, L_SQ))
        for ks in range(6):
            a.emit('s_waitcnt lgkmcnt(%d)' % (6 - ks))
            a.emit('v_mfma_f32_16x16x32_bf16 %s, %s, %s, %s' % (vr(L1, 4), vr(F1 + 4 * ks, 4), vr(QK + 4 * ks, 4), '0' if ks == 0 else vr(L1, 4)))
            a.emit('v_mfma_f32_16x16x32_bf16 %s, %s, %s, %s' % (vr(L0, 4), vr(T0 + 4 * ks, 4), vr(QK + 4 * ks, 4), '0' if ks == 0 else vr(L0, 4)))
            a.emit('v_mfma_f32_16x16x32_bf16 %s, %s, %s, %s' % (vr(L0b, 4), vr(T1 + 4 * ks, 4), vr(QK + 4 * ks, 4), '0' if ks == 0 else vr(L0b, 4)))
        a.emit('s_waitcnt lgkmcnt(0)')
        for e in range(8):
            a.emit('v_mul_f32 v%d, v%d, v%d' % (TM + 4 + e, MR + e, TM))
        for t, LD in enumerate((L0, L0b)):
            for r in range(4):
                a.emit('v_add_f32 v%d, v%d, v%d' % (LD + r, LD + r, L1 + r))
        for t, LD in enumerate((L0, L0b)):
            for r in range(4):
                a.emit('v_fma_f32 v%d, v%d, v%d, -v%d' % (LD + r, LD + r, RS + 4 * t + r, TM + 4 + 4 * t + r))
        a.emit('''
        v_max3_f32 v%d, v%d, v%d, v%d
        v_max3_f32 v%d, v%d, v%d, v%d
        v_max3_f32 v%d, v%d, v%d, v%d
        v_max_f32 v%d, v%d, v%d
        ds_max_f32 v19, v%d offset:%d
        s_waitcnt lgkmcnt(0)
        s_barrier
        ds_read_b32 v%d, v19 offset:%d
        s_waitcnt lgkmcnt(0)
        v_ceil_f32 v%d, v%d
        ''' % (TM, L0, L0 + 1, L0 + 2,
               TM + 1, L0 + 3, L0b, L0b + 1,
               TM, TM, L0b + 2, L0b + 3,
               TM, TM, TM + 1,
               TM, L_MX,
               TM, L_MX,
               TM, TM))
        for LD in (L0, L0b):
            for r in range(4):
                a.emit('v_sub_f32 v%d, v%d, v%d' % (LD + r, LD + r, TM))
        for LD in (L0, L0b):
            for r in range(4):
                a.emit('v_exp_f32 v%d, v%d' % (LD + r, LD + r))
        P = [L0, L0 + 1, L0 + 2, L0 + 3, L0b, L0b + 1, L0b + 2, L0b + 3]
        a.emit('v_add_f32 v%d, v%d, v%d' % (TM + 1, P[0], P[1]))
        a.emit('v_mul_f32 v%d, v%d, v%d' % (TM + 2, P[0], MR))
        for e in range(2, 8):
            a.emit('v_add_f32 v%d, v%d, v%d' % (TM + 1, TM + 1, P[e]))
        for e in range(1, 8):
            a.emit('v_fmac_f32 v%d, v%d, v%d' % (TM + 2, P[e], MR + e))
        a.emit('ds_add_f32 v19, v%d offset:%d' % (TM + 1, L_LS))
        a.emit('ds_add_f32 v19, v%d offset:%d' % (TM + 2, L_CO))
        for e in range(8):
            a.emit('v_mul_f32 v%d, v%d, v%d' % (P[e], P[e], RS + e))
        W = TM + 4
        for i in range(4):
            a.emit('v_cvt_pk_bf16_f32 v%d, v%d, v%d' % (W + i, P[2 * i], P[2 * i + 1]))
        a.emit('''
        s_lshl_b32 s44, s28, 10
        v_add_u32 v%d, s44, v18
        ds_write_b128 v%d, %s offset:%d
        v_add_f32 v%d, v%d, v%d
        v_add_f32 v%d, v%d, v%d
        v_add_f32 v%d, v%d, v%d
        v_add_f32 v%d, v%d, v%d
        v_add_f32 v%d, v%d, v%d
        v_add_f32 v%d, v%d, v%d
        v_cvt_pk_bf16_f32 v%d, v%d, v%d
        s_lshr_b32 s44, s28, 2
        s_lshl_b32 s44, s44, 10
        s_and_b32 s45, s28, 3
        s_lshl_b32 s45, s45, 2
        s_add_u32 s44, s44, s45
        v_add_u32 v%d, s44, v18
        ds_write_b32 v%d, v%d offset:%d
        s_waitcnt lgkmcnt(0)
        s_barrier
        ''' % (TM + 3, TM + 3, vr(W, 4), L_WF,
               TM + 8, P[0], P[1],
               TM + 9, P[4], P[5],
               TM + 10, P[2], P[3],
               TM + 11, P[6], P[7],
               TM + 8, TM + 8, TM + 9,
               TM + 10, TM + 10, TM + 11,
               TM + 8, TM + 8, TM + 10,
               TM + 3, TM + 3, TM + 8, L_WC))
        self.stamp(4)
        a.branch('s_cmp_ge_u32 s28, 6')
        a.branch('s_cbranch_scc1 L_end')
        A0, A1, A2, A3 = 4, 5, 6, 7
        C0, C1, C2, C3, C4, C5 = 8, 9, 10, 11, 12, 13
        a.emit('''
        v_bfe_u32 v%d, v1, 2, 4
        v_bfe_u32 v%d, v%d, 1, 2
        v_lshlrev_b32 v%d, 1, v%d
        v_lshrrev_b32 v%d, 3, v%d
        v_or_b32 v%d, v%d, v%d
        v_bfe_u32 v%d, v1, 1, 1
        s_and_b32 s44, s28, 1
        s_lshl_b32 s44, s44, 2
        v_or_b32 v%d, s44, v%d
        v_xor_b32 v%d, v%d, v%d
        v_mul_u32_u24 v%d, 384, v%d
        v_and_b32 v%d, 1, v1
        v_lshl_add_u32 v%d, v%d, 3, v%d
        s_lshr_b32 s45, s28, 1
        s_lshl_b32 s45, s45, 7
        s_add_u32 s45, s45, 15616
        v_add_u32 v%d, s45, v%d
        v_lshl_add_u32 v%d, v%d, 4, v%d
        v_xor_b32 v%d, 2, v%d
        v_lshl_add_u32 v%d, v%d, 4, v%d
        v_add_u32 v%d, %d, v%d
        v_add_u32 v%d, %d, v%d
        ''' % (TM,
               TM + 1, TM, TM + 1, TM + 1, TM + 2, TM, TM + 1, TM + 1, TM + 2,
               TM + 2,
               TM + 2, TM + 2,
               TM + 1, TM + 1, TM + 2,
               TM + 3, TM,
               TM + 4,
               TM + 3, TM + 4, TM + 3,
               TM + 3, TM + 3,
               A0, TM + 1, TM + 3,
               TM + 1, TM + 1,
               A1, TM + 1, TM + 3,
               A2, 4 * XREG, A0,
               A3, 4 * XREG, A1))
        a.emit('''
        v_and_b32 v%d, 1, v3
        v_lshlrev_b32 v%d, 2, v%d
        v_lshrrev_b32 v%d, 1, v3
        v_or_b32 v%d, v%d, v%d
        v_xor_b32 v%d, v%d, v%d
        v_bfe_u32 v%d, v1, 2, 1
        v_lshl_add_u32 v%d, v3, 1, v%d
        v_mul_u32_u24 v%d, 384, v%d
        v_lshl_add_u32 v%d, v%d, 3, v%d
        v_add_u32 v%d, s45, v%d
        v_bfe_u32 v%d, v1, 3, 1
        v_mul_u32_u24 v%d, %d, v%d
        v_add_u32 v%d, v%d, v%d
        v_lshl_add_u32 v%d, v%d, 4, v%d
        v_xor_b32 v%d, 2, v%d
        v_lshl_add_u32 v%d, v%d, 4, v%d
        v_add_u32 v%d, %d, v%d
        v_add_u32 v%d, %d, v%d
        v_lshl_add_u32 v%d, v%d, 4, v%d
        v_xor_b32 v%d, 2, v%d
        v_lshl_add_u32 v%d, v%d, 4, v%d
        v_add_u32 v%d, %d, v%d
        v_add_u32 v%d, %d, v%d
        ''' % (TM, TM, TM,
               TM + 1, TM, TM, TM + 1,
               TM, TM, TM + 2,
               TM + 1,
               TM + 1, TM + 1,
               TM + 1, TM + 1,
               TM + 1, TM + 4, TM + 1,
               TM + 1, TM + 1,
               TM + 3,
               TM + 3, XREG, TM + 3,
               TM + 3, TM + 3, TM + 1,
               C0, TM, TM + 3,
               TM, TM,
               C1, TM, TM + 3,
               C2, 4 * XREG, C0,
               C3, 4 * XREG, C1,
               C5, TM, TM + 1,
               TM, TM,
               C4, TM, TM + 1,
               C4, 6 * XREG, C4,
               C5, 6 * XREG, C5))
        WB = 24
        XB = 60
        ACC = 132
        def issue(k):
            if k < 7:
                a.emit('ds_read_b128 %s, v18 offset:%d' % (vr(WB + 4 * k, 4), L_WF + k * 1024))
                for e in range(2):
                    base = (A0, A1)[e] if k < 4 else (A2, A3)[e]
                    uoff = (k if k < 4 else k - 4) * XREG
                    for tt in range(2):
                        a.emit('ds_read_b64_tr_b16 %s, v%d offset:%d' % (vr(XB + (k * 2 + e) * 4 + tt * 2, 2), base, uoff + 3072 + tt * 6144))
            else:
                aa = k - 7
                a.emit('ds_read_b128 %s, v18 offset:%d' % (vr(WB + 4 * k, 4), L_WC + aa * 1024))
                for e in range(2):
                    for hh in range(2):
                        if aa == 0:
                            base, off = (C0, C1)[e], hh * 2 * XREG
                        elif hh == 0:
                            base, off = (C2, C3)[e], 0
                        else:
                            base, off = (C4, C5)[e], 0
                        a.emit('ds_read_b64_tr_b16 %s, v%d offset:%d' % (vr(XB + (k * 2 + e) * 4 + hh * 2, 2), base, off))
        for k in range(3): issue(k)
        for k in range(9):
            rem = min(2, 8 - k)
            a.emit('s_waitcnt lgkmcnt(%d)' % (5 * rem))
            for e in range(2):
                a.emit('v_mfma_f32_16x16x32_bf16 %s, %s, %s, %s' % (vr(ACC + 4 * e, 4), vr(XB + (k * 2 + e) * 4, 4), vr(WB + 4 * k, 4), '0' if k == 0 else vr(ACC + 4 * e, 4)))
            if k + 3 < 9: issue(k + 3)
        a.emit('ds_read_b32 v%d, v19 offset:%d' % (TM, L_CO))
        a.emit('s_waitcnt lgkmcnt(0)')
        for e in range(2):
            for r in range(4):
                a.emit('v_sub_f32 v%d, v%d, v%d' % (ACC + 4 * e + r, ACC + 4 * e + r, TM))
        O = TM + 4
        a.emit('''
        v_cvt_pk_bf16_f32 v%d, v%d, v%d
        v_cvt_pk_bf16_f32 v%d, v%d, v%d
        v_cvt_pk_bf16_f32 v%d, v%d, v%d
        v_cvt_pk_bf16_f32 v%d, v%d, v%d
        v_permlane16_swap_b32 v%d, v%d
        v_permlane16_swap_b32 v%d, v%d
        ''' % (O, ACC, ACC + 1, O + 1, ACC + 2, ACC + 3, O + 2, ACC + 4, ACC + 5, O + 3, ACC + 6, ACC + 7,
               O, O + 2, O + 1, O + 3))
        a.emit('''
        v_mul_u32_u24 v%d, %d, v2
        v_and_b32 v%d, 1, v3
        v_lshlrev_b32 v%d, 5, v%d
        v_lshrrev_b32 v%d, 1, v3
        v_lshl_add_u32 v%d, v%d, 4, v%d
        v_add_u32 v%d, v%d, v%d
        s_mul_i32 s44, s30, 384
        s_lshl_b32 s45, s28, 6
        s_add_u32 s44, s44, s45
        s_add_u32 s44, s44, %d
        v_add_u32 v%d, s44, v%d
        global_store_dwordx4 v%d, %s, s[26:27]%s
        ''' % (TM, 224 * 384,
               TM + 1, TM + 1, TM + 1,
               TM + 2,
               TM + 1, TM + 2, TM + 1,
               TM, TM, TM + 1,
               WS_Z,
               TM, TM,
               TM, vr(O, 4), self.sc))
        if self.fused:
            a.emit('s_waitcnt vmcnt(0)')
            a.emit('s_barrier')
        self.stamp(5)
        a.branch('s_branch L_end')

        a.label(lh)
        a.emit('''
        v_lshlrev_b32 v18, 4, v1
        v_lshlrev_b32 v19, 2, v2
        v_mov_b32 v4, 0
        v_mov_b32 v5, 0xff800000
        v_mov_b32 v17, 1.0
        ds_write_b32 v18, v4 offset:%d
        ds_write_b32 v19, v5 offset:%d
        ds_write_b32 v19, v4 offset:%d
        ds_write_b32 v19, v4 offset:%d
        ''' % (L_WC + 1024 + 12, L_MX, L_LS, L_CO))
        if self.fused:
            self.poll('%d' % FLAG_QK, 3, 0, 6)
        for ks in range(6):
            a.emit('global_load_dwordx4 %s, v18, s[26:27] offset:%d%s' % (vr(24 + 4 * ks, 4), WS_QK + ks * 1024 if ks < 4 else ks * 1024 - 4096, self.sc) if ks < 4 else
                   'global_load_dwordx4 %s, v9, s[26:27]%s' % (vr(24 + 4 * ks, 4), self.sc))
            if ks == 3:
                a.emit('v_add_u32 v9, 4096, v18')
            if ks == 4:
                a.emit('v_add_u32 v9, 1024, v9')
        a.emit('''
        v_lshl_add_u32 v10, v3, 6, v19
        v_add_u32 v10, %d, v10
        global_load_dword v11, v10, s[26:27]%s
        global_load_dword v12, v10, s[26:27] offset:256%s
        global_load_dword v13, v10, s[26:27] offset:512%s
        s_waitcnt vmcnt(0)
        v_add_f32 v11, v11, v12
        v_add_f32 v11, v11, v13
        v_mfma_f32_16x16x4_f32 v[48:51], v17, v11, 0
        ''' % (WS_SQ, self.sc, self.sc, self.sc))
        for ks in range(6):
            a.emit('ds_write_b128 v18, %s offset:%d' % (vr(24 + 4 * ks, 4), L_QK + ks * 1024))
        a.emit('''
        ds_write_b32 v19, v48 offset:%d
        s_waitcnt lgkmcnt(0)
        s_barrier
        ''' % L_SQ)
        self.stamp(3)
        a.emit('''
        s_barrier
        s_barrier
        ds_read_b32 v4, v19 offset:%d
        ds_read_b32 v5, v19 offset:%d
        s_lshl_b32 s44, s30, 7
        s_add_u32 s44, s44, %d
        v_lshl_add_u32 v6, v2, 3, s44
        s_waitcnt lgkmcnt(0)
        v_ceil_f32 v4, v4
        s_mov_b32 exec_lo, 0xffff
        s_mov_b32 exec_hi, 0
        global_store_dwordx2 v6, v[4:5], s[26:27]%s
        ''' % (L_MX, L_LS, WS_ML, self.sc))
        if self.fused:
            a.emit('''
            s_waitcnt vmcnt(0)
            s_barrier
            s_mov_b64 exec, 1
            v_mov_b32 v5, 1
            v_mov_b32 v6, s30
            global_store_byte v6, v5, s[24:25] sc1
            ''')
        self.stamp(5)
        a.branch('s_branch L_end')

    def role_final(self):
        a = self.a
        WV, WO = 24, 72
        CS = 120
        QR = 128
        ZL = 132
        ACC = 188
        ONES = 196
        TM = 200
        lnw = self.lab('fin_now')
        a.emit('''
        v_mov_b32 v%d, 0x3f803f80
        v_mov_b32 v%d, 0x3f803f80
        v_mov_b32 v%d, 0x3f803f80
        v_mov_b32 v%d, 0x3f803f80
        v_lshlrev_b32 v18, 4, v1
        ''' % (ONES, ONES + 1, ONES + 2, ONES + 3))
        a.branch('s_cmp_ge_u32 s28, 6')
        a.branch('s_cbranch_scc1 %s' % lnw)
        a.emit('''
        s_mul_i32 s31, s28, 12288
        s_add_u32 s32, s31, %d
        s_add_u32 s31, s31, %d
        ''' % (LF_WO, LF_WV))
        self.load_wT_issue(18, 31, 6)
        self.load_wT_issue(20, 32, 6)
        a.emit('''
        s_mul_i32 s33, s30, 384
        s_lshl_b32 s34, s28, 6
        s_add_u32 s33, s33, s34
        v_lshl_add_u32 v4, v3, 3, s33
        global_load_dwordx2 %s, v4, s[8:9]
        global_load_dwordx2 %s, v4, s[8:9] offset:32
        s_waitcnt vmcnt(0)
        ''' % (vr(QR, 2), vr(QR + 2, 2)))
        self.load_wT_read(31, WV, 6)
        self.load_wT_read(32, WO, 6)
        a.emit('s_waitcnt lgkmcnt(0)')
        for ks in range(6):
            for d in range(2):
                a.emit('v_mfma_f32_16x16x32_bf16 %s, %s, %s, %s' % (vr(CS + 4 * d, 4), vr(WV + (d * 6 + ks) * 4, 4), vr(ONES, 4), '0' if ks == 0 else vr(CS + 4 * d, 4)))
        a.label(lnw)
        a.emit('s_mul_i32 s33, s28, 28')
        if self.fused:
            self.poll('s33', 7, 0, 6)
        self.stamp(1)
        a.emit('''
        v_min_u32 v4, 27, v1
        v_add_u32 v4, s33, v4
        v_lshlrev_b32 v4, 7, v4
        s_lshl_b32 s34, s30, 3
        s_add_u32 s34, s34, %d
        v_add_u32 v4, s34, v4
        global_load_dwordx2 %s, v4, s[26:27]%s
        ''' % (WS_ML, vr(TM, 2), self.sc))
        a.emit('''
        s_mul_i32 s34, s30, 224
        s_add_u32 s34, s34, s33
        s_mul_i32 s34, s34, 384
        s_add_u32 s34, s34, %d
        v_min_u32 v5, 47, v1
        v_lshlrev_b32 v5, 4, v5
        v_add_u32 v5, s34, v5
        ''' % WS_Z)
        for i in range(14):
            a.emit('global_load_dwordx4 %s, v5, s[26:27] offset:%d%s' % (vr(ZL + 4 * i, 4), (i % 5) * 768, self.sc))
            if i % 5 == 4:
                a.emit('v_add_u32 v5, %d, v5' % (5 * 768))
        for i in range(8):
            a.emit('v_mov_b32 v%d, 0' % (ACC + i))
        a.emit('s_waitcnt vmcnt(14)')
        M, L = TM, TM + 1
        X = TM + 2
        a.emit('v_mov_b32 v%d, v%d' % (X, M))
        for sh in (1, 2, 4, 8):
            a.emit('v_max_f32_dpp v%d, v%d, v%d row_ror:%d row_mask:0xf bank_mask:0xf' % (X, X, X, sh))
        a.emit('v_mov_b32 v%d, v%d' % (X + 1, X))
        a.emit('v_permlane16_swap_b32 v%d, v%d' % (X, X + 1))
        a.emit('v_max_f32 v%d, v%d, v%d' % (X, X, X + 1))
        a.emit('v_mov_b32 v%d, v%d' % (X + 1, X))
        a.emit('v_permlane32_swap_b32 v%d, v%d' % (X, X + 1))
        a.emit('v_max_f32 v%d, v%d, v%d' % (X, X, X + 1))
        a.emit('v_sub_f32 v%d, v%d, v%d' % (M, M, X))
        a.emit('v_exp_f32 v%d, v%d' % (M, M))
        a.emit('v_mul_f32 v%d, v%d, v%d' % (L, L, M))
        a.emit('v_cmp_gt_u32 vcc, 28, v1')
        a.emit('v_cndmask_b32 v%d, 0, v%d, vcc' % (L, L))
        for sh in (1, 2, 4, 8):
            a.emit('v_add_f32_dpp v%d, v%d, v%d row_ror:%d row_mask:0xf bank_mask:0xf' % (L, L, L, sh))
        a.emit('v_mov_b32 v%d, v%d' % (X + 1, L))
        a.emit('v_permlane16_swap_b32 v%d, v%d' % (L, X + 1))
        a.emit('v_add_f32 v%d, v%d, v%d' % (L, L, X + 1))
        a.emit('''
        v_lshrrev_b32 v%d, 16, v%d
        s_lshl_b32 s34, s28, 7
        s_add_u32 s34, s34, %d
        v_lshl_add_u32 v6, v1, 2, s34
        s_mov_b32 exec_lo, -1
        s_mov_b32 exec_hi, 0
        ds_write_b32 v6, v%d
        s_mov_b64 exec, 1
        s_lshl_b32 s35, s28, 2
        v_mov_b32 v7, s35
        ds_write_b32 v7, v%d offset:%d
        ds_write_b32 v7, v%d offset:%d
        s_mov_b64 exec, -1
        v_cmp_lt_u32 vcc, 23, v1
        v_cndmask_b32 v7, 0, 4, vcc
        v_add_u32 v7, s34, v7
        s_waitcnt lgkmcnt(0)
        ''' % (M, M, LF_SCT, M, X, LF_WM, L, LF_WL))
        SCL = TM + 4
        for i in range(14):
            a.emit('ds_read_b32 v%d, v7 offset:%d' % (SCL + i, i * 8))
        a.emit('s_waitcnt lgkmcnt(0)')
        HI = TM + 20
        for i in range(14):
            a.emit('v_lshlrev_b32 v%d, 16, v%d' % (HI + (i & 1), SCL + i))
            a.emit('s_waitcnt vmcnt(%d)' % (13 - i))
            for j in range(4):
                a.emit('v_dot2c_f32_bf16 v%d, v%d, v%d' % (ACC + 2 * j, ZL + 4 * i + j, SCL + i))
                a.emit('v_dot2c_f32_bf16 v%d, v%d, v%d' % (ACC + 2 * j + 1, ZL + 4 * i + j, HI + (i & 1)))
        a.emit('''
        s_mul_i32 s34, s28, 1536
        s_add_u32 s34, s34, %d
        v_lshl_add_u32 v6, v1, 5, s34
        s_mov_b32 exec_lo, -1
        s_mov_b32 exec_hi, 0xffff
        ds_write_b128 v6, %s
        ds_write_b128 v6, %s offset:16
        s_mov_b64 exec, -1
        s_waitcnt lgkmcnt(0)
        s_barrier
        ''' % (LF_ZR, vr(ACC, 4), vr(ACC + 4, 4)))
        self.stamp(2)
        l2 = self.lab('fin_r2')
        a.branch('s_cmp_ge_u32 s28, 3')
        a.branch('s_cbranch_scc1 %s' % l2)
        a.emit('v_lshlrev_b32 v6, 2, v0')
        a.emit('v_mov_b32 v7, 0')
        for k in range(16):
            a.emit('ds_read_b32 v%d, v6 offset:%d' % (ZL + k, LF_ZR + k * 768))
        a.emit('ds_read_b128 %s, v7 offset:%d' % (vr(ZL + 16, 4), LF_WM))
        a.emit('ds_read_b128 %s, v7 offset:%d' % (vr(ZL + 20, 4), LF_WM + 16))
        a.emit('s_waitcnt lgkmcnt(0)')
        WM = ZL + 16
        a.emit('''
        v_max3_f32 v%d, v%d, v%d, v%d
        v_max3_f32 v%d, v%d, v%d, v%d
        v_max3_f32 v%d, v%d, v%d, v%d
        v_max_f32 v%d, v%d, v%d
        ''' % (TM, WM, WM + 1, WM + 2, TM, TM, WM + 3, WM + 4, TM, TM, WM + 5, WM + 6, TM, TM, WM + 7))
        for v in range(8):
            a.emit('v_sub_f32 v%d, v%d, v%d' % (WM + v, WM + v, TM))
        for v in range(8):
            a.emit('v_exp_f32 v%d, v%d' % (WM + v, WM + v))
        a.emit('v_mul_f32 v%d, v%d, v%d' % (TM + 1, ZL, WM))
        for k in range(1, 16):
            a.emit('v_fmac_f32 v%d, v%d, v%d' % (TM + 1, ZL + k, WM + (k >> 1)))
        a.emit('''
        v_cvt_pk_bf16_f32 v%d, v%d, v%d
        v_lshlrev_b32 v6, 1, v0
        ds_write_b16 v6, v%d offset:%d
        s_waitcnt lgkmcnt(0)
        ''' % (TM + 1, TM + 1, TM + 1, TM + 1, LF_ZB))
        a.label(l2)
        a.emit('s_barrier')
        a.branch('s_cmp_ge_u32 s28, 6')
        a.branch('s_cbranch_scc1 L_end')
        a.emit('v_mov_b32 v7, 0')
        WM, WL, ZB = ZL, ZL + 8, ZL + 16
        a.emit('ds_read_b128 %s, v7 offset:%d' % (vr(WM, 4), LF_WM))
        a.emit('ds_read_b128 %s, v7 offset:%d' % (vr(WM + 4, 4), LF_WM + 16))
        a.emit('ds_read_b128 %s, v7 offset:%d' % (vr(WL, 4), LF_WL))
        a.emit('ds_read_b128 %s, v7 offset:%d' % (vr(WL + 4, 4), LF_WL + 16))
        a.emit('v_lshlrev_b32 v6, 4, v3')
        for ks in range(6):
            a.emit('ds_read_b128 %s, v6 offset:%d' % (vr(ZB + 4 * ks, 4), LF_ZB + ks * 64))
        a.emit('s_waitcnt lgkmcnt(0)')
        DA = TM + 24
        ZS = TM + 32
        for ks in range(6):
            c = lambda r: '0' if ks == 0 else vr(r, 4)
            a.emit('v_mfma_f32_16x16x32_bf16 %s, %s, %s, %s' % (vr(ZS, 4), vr(ONES, 4), vr(ZB + 4 * ks, 4), c(ZS)))
            for d in range(2):
                a.emit('v_mfma_f32_16x16x32_bf16 %s, %s, %s, %s' % (vr(DA + 4 * d, 4), vr(WV + (d * 6 + ks) * 4, 4), vr(ZB + 4 * ks, 4), c(DA + 4 * d)))
        a.emit('''
        v_max3_f32 v%d, v%d, v%d, v%d
        v_max3_f32 v%d, v%d, v%d, v%d
        v_max3_f32 v%d, v%d, v%d, v%d
        v_max_f32 v%d, v%d, v%d
        ''' % (TM, WM, WM + 1, WM + 2, TM, TM, WM + 3, WM + 4, TM, TM, WM + 5, WM + 6, TM, TM, WM + 7))
        for v in range(8):
            a.emit('v_sub_f32 v%d, v%d, v%d' % (WM + v, WM + v, TM))
        for v in range(8):
            a.emit('v_exp_f32 v%d, v%d' % (WM + v, WM + v))
        a.emit('v_mul_f32 v%d, v%d, v%d' % (TM + 1, WL, WM))
        for v in range(1, 8):
            a.emit('v_fmac_f32 v%d, v%d, v%d' % (TM + 1, WL + v, WM + v))
        a.emit('v_rcp_f32 v%d, v%d' % (TM + 1, TM + 1))
        a.emit('v_mul_f32 v%d, %s, v%d' % (ZS, f32bits(1.0 / 192), ZS))
        for d in range(2):
            for r in range(4):
                x = DA + 4 * d + r
                a.emit('v_fma_f32 v%d, -v%d, v%d, v%d' % (x, ZS, CS + 4 * d + r, x))
        for d in range(2):
            for r in range(4):
                x = DA + 4 * d + r
                a.emit('v_mul_f32 v%d, v%d, v%d' % (x, x, TM + 1))
        C = TM + 2
        a.emit('''
        v_cvt_pk_bf16_f32 v%d, v%d, v%d
        v_cvt_pk_bf16_f32 v%d, v%d, v%d
        v_cvt_pk_bf16_f32 v%d, v%d, v%d
        v_cvt_pk_bf16_f32 v%d, v%d, v%d
        s_lshl_b32 s34, s28, 6
        v_lshl_add_u32 v6, v3, 3, s34
        s_mov_b32 exec_lo, 0x00010001
        s_mov_b32 exec_hi, 0x00010001
        ds_write_b64 v6, %s offset:%d
        ds_write_b64 v6, %s offset:%d
        s_mov_b64 exec, -1
        s_waitcnt lgkmcnt(0)
        s_barrier
        v_lshlrev_b32 v6, 4, v3
        ''' % (C, DA, DA + 1, C + 1, DA + 2, DA + 3, C + 2, DA + 4, DA + 5, C + 3, DA + 6, DA + 7,
               vr(C, 2), LF_CTX, vr(C + 2, 2), LF_CTX + 32))
        for ks in range(6):
            a.emit('ds_read_b128 %s, v6 offset:%d' % (vr(ZB + 4 * ks, 4), LF_CTX + ks * 64))
        a.emit('s_waitcnt lgkmcnt(0)')
        for ks in range(6):
            for d in range(2):
                a.emit('v_mfma_f32_16x16x32_bf16 %s, %s, %s, %s' % (vr(DA + 4 * d, 4), vr(WO + (d * 6 + ks) * 4, 4), vr(ZB + 4 * ks, 4), '0' if ks == 0 else vr(DA + 4 * d, 4)))
        a.emit('''
        v_cvt_pk_bf16_f32 v%d, v%d, v%d
        v_cvt_pk_bf16_f32 v%d, v%d, v%d
        v_cvt_pk_bf16_f32 v%d, v%d, v%d
        v_cvt_pk_bf16_f32 v%d, v%d, v%d
        ''' % (C, DA, DA + 1, C + 1, DA + 2, DA + 3, C + 2, DA + 4, DA + 5, C + 3, DA + 6, DA + 7))
        for i in range(4):
            a.emit('''
            v_lshlrev_b32 v%d, 16, v%d
            v_and_b32 v%d, 0xffff0000, v%d
            v_lshlrev_b32 v%d, 16, v%d
            v_and_b32 v%d, 0xffff0000, v%d
            v_add_f32 v%d, v%d, v%d
            v_add_f32 v%d, v%d, v%d
            v_cvt_pk_bf16_f32 v%d, v%d, v%d
            ''' % (DA, C + i, DA + 1, C + i, DA + 2, QR + i, DA + 3, QR + i,
                   DA, DA, DA + 2, DA + 1, DA + 1, DA + 3, C + i, DA, DA + 1))
        a.emit('''
        s_mul_i32 s33, s30, 384
        s_lshl_b32 s34, s28, 6
        s_add_u32 s33, s33, s34
        v_lshl_add_u32 v4, v3, 3, s33
        s_mov_b32 exec_lo, 0x00010001
        s_mov_b32 exec_hi, 0x00010001
        global_store_dwordx2 v4, %s, s[22:23]
        global_store_dwordx2 v4, %s, s[22:23] offset:32
        ''' % (vr(C, 2), vr(C + 2, 2)))
        self.stamp(3)
        a.branch('s_branch L_end')


HEADER = open('standalone__detection_seg_dino__vision.s.ref').read().split('; Override')[0]

def kd(name, vgpr=256, sgpr=102):
    return '''.amdhsa_kernel %s
  .amdhsa_next_free_vgpr %d
  .amdhsa_next_free_sgpr %d
  .amdhsa_accum_offset %d
  .amdhsa_group_segment_fixed_size 0
  .amdhsa_kernarg_size 80
  .amdhsa_user_sgpr_count 2
  .amdhsa_user_sgpr_kernarg_segment_ptr 1
  .amdhsa_system_sgpr_workgroup_id_x 1
.end_amdhsa_kernel
''' % (name, vgpr, sgpr, (vgpr + 3) // 4 * 4)

def build_multi(stamps=False):
    out = HEADER
    names = ['qk_kernel', 'main_kernel', 'final_kernel']
    grids = [12, 224, 16]
    for n, g in zip(names, grids):
        out += '; @launch kernel=%s grid=(%d,1,1) block=(512,1,1) lds=%d\n' % (n, g, LDS_TOTAL)
    out += '.amdgcn_target "amdgcn-amd-amdhsa--gfx950"\n.text\n'
    for n, g in zip(names, grids):
        G = Gen(False, stamps)
        G.uid = {'qk_kernel': 0, 'main_kernel': 1000, 'final_kernel': 2000}[n]
        a = G.a
        a.raw('.globl %s\n.p2align 8\n.type %s,@function\n%s:' % (n, n, n))
        a.branch('s_cmp_ge_u32 s2, %d' % g)
        a.branch('s_cbranch_scc1 L_end')
        G.prologue()
        a.emit('s_mov_b32 s30, s2')
        {'qk_kernel': G.role_qk, 'main_kernel': G.role_main, 'final_kernel': G.role_final}[n]()
        a.label('L_end')
        a.emit('s_endpgm')
        out += a.text().replace('L_end', 'L_end_' + n)
    out += '.section .rodata,"a"\n'
    for n in names:
        out += '.p2align 6\n' + kd(n)
    return out

def build_fused(stamps=False):
    out = HEADER
    out += '; @launch grid=(256,1,1) block=(512,1,1) lds=%d\n' % LDS_TOTAL
    out += '.amdgcn_target "amdgcn-amd-amdhsa--gfx950"\n.text\n'
    G = Gen(True, stamps)
    a = G.a
    n = KNAME
    a.raw('.globl %s\n.p2align 8\n.type %s,@function\n%s:' % (n, n, n))
    a.branch('s_cmp_ge_u32 s2, 256')
    a.branch('s_cbranch_scc1 L_end')
    G.prologue()
    G.stamp(0)
    a.branch('s_cmp_ge_u32 s2, 32')
    a.branch('s_cbranch_scc1 L_role_main')
    a.branch('s_cmp_ge_u32 s2, 16')
    a.branch('s_cbranch_scc1 L_role_final')
    a.branch('s_cmp_ge_u32 s2, 12')
    a.branch('s_cbranch_scc1 L_end')
    a.emit('s_mov_b32 s30, s2')
    G.role_qk()
    a.label('L_role_final')
    a.emit('s_sub_u32 s30, s2, 16')
    G.role_final()
    a.label('L_role_main')
    a.emit('s_sub_u32 s30, s2, 32')
    G.role_main()
    a.label('L_end')
    a.emit('s_endpgm')
    out += a.text()
    out += '.section .rodata,"a"\n.p2align 6\n' + kd(n)
    return out

if __name__ == '__main__':
    ap = argparse.ArgumentParser()
    ap.add_argument('--mode', default='multi')
    ap.add_argument('--stamps', action='store_true')
    ap.add_argument('-o', default='standalone__detection_seg_dino__vision.s')
    args = ap.parse_args()
    s = build_multi(args.stamps) if args.mode == 'multi' else build_fused(args.stamps)
    open(args.o, 'w').write(s)
    print('wrote', args.o, len(s), 'bytes')
```

```python
import sys, argparse, struct
from asmdsl import Asm

KNAME = 'standalone__detection_seg_dino__vision_kernel'

WS_QK = 0
WS_ML = 32768
WS_Z = 65536
NMAIN = 224

XREG = 15392
L_QK = 0
L_WF = L_QK + 6144
L_WC = L_WF + 7168
L_SQ = L_WC + 2048
L_MX = 15424
L_LS = L_MX + 512
L_CO = L_LS + 512
L_X = 17152
LQ_QN = 0
LQ_RED = 6144
LQ_W = 18432
LF_ZC = 0
LF_CX = 6400
LF_SCT = 12800
LF_WM = LF_SCT + 1024
LF_WL = LF_WM + 32
LF_WV = 14336
LF_WO = LF_WV + 73728
LDS_TOTAL = LF_WO + 73728

QSCALE = (192.0 ** -0.5) * 1.4426950408889634

def f32bits(x):
    return '0x%08x' % struct.unpack('<I', struct.pack('<f', x))[0]

def vr(a, n):
    return 'v[%d:%d]' % (a, a + n - 1)

MF = 'v_mfma_f32_16x16x32_bf16'

class Gen:
    def __init__(self, stamps=False, opt=None):
        self.a = Asm()
        self.stamps = stamps
        self.opt = opt or {}
        self.uid = 0

    def lab(self, base):
        self.uid += 1
        return 'L_%s_%d' % (base, self.uid)

    def prologue(self):
        self.a.emit('''
        s_load_dwordx16 s[8:23], s[0:1], 0
        s_load_dwordx4 s[24:27], s[0:1], 64
        v_and_b32 v1, 63, v0
        v_lshrrev_b32 v4, 6, v0
        v_and_b32 v2, 15, v1
        v_readfirstlane_b32 s28, v4
        v_lshrrev_b32 v3, 4, v1
        s_waitcnt lgkmcnt(0)
        ''')

    def stamp(self, idx):
        if not self.stamps: return
        self.a.emit('s_memrealtime s[%d:%d]' % (60 + 2 * idx, 61 + 2 * idx))
        self.a.emit('s_waitcnt lgkmcnt(0)')

    def stamp_init(self):
        if not self.stamps: return
        for i in range(24):
            self.a.emit('s_mov_b32 s%d, 0' % (60 + i))

    def stamp_flush(self):
        if not self.stamps: return
        a = self.a
        a.emit('''
        s_lshl_b32 s92, s2, 3
        s_add_u32 s92, s92, s28
        s_lshl_b32 s92, s92, 7
        s_add_u32 s92, s92, %d
        v_mov_b32 v250, s92
        s_mov_b64 exec, 1
        ''' % 0x1000000)
        for i in range(12):
            a.emit('v_mov_b32 v252, s%d' % (60 + 2 * i))
            a.emit('v_mov_b32 v253, s%d' % (61 + 2 * i))
            a.emit('global_store_dwordx2 v250, v[252:253], s[26:27] offset:%d' % (i * 8))
            a.emit('s_nop 1')

    def setexec(self, mask):
        a = self.a
        lo, hi = mask & 0xffffffff, mask >> 32
        if mask == (1 << 64) - 1:
            a.emit('s_mov_b64 exec, -1')
        else:
            a.emit('s_mov_b32 exec_lo, 0x%x' % lo)
            a.emit('s_mov_b32 exec_hi, 0x%x' % hi)

    def flag_store(self, byte_sreg, vt):
        a = self.a
        self.setexec(1)
        a.emit('''
        v_mov_b32 v%d, 1
        v_mov_b32 v%d, s%d
        global_store_byte v%d, v%d, s[24:25] sc1
        ''' % (vt, vt + 1, byte_sreg, vt + 1, vt))
        self.setexec((1 << 64) - 1)

    def role_qk(self):
        a = self.a
        VQ = 8
        VWK = 32
        VWQ = 40
        VQN = 64
        T = 88
        a.emit('''
        s_mul_i32 s32, s30, 86
        s_lshr_b32 s32, s32, 8
        s_mul_i32 s31, s32, 3
        s_sub_u32 s31, s30, s31
        ''')
        a.emit('''
        v_mul_u32_u24 v4, 384, v2
        v_lshl_add_u32 v4, v3, 4, v4
        ''')
        for ks in range(6):
            a.emit('global_load_dwordx4 %s, v4, s[8:9] offset:%d' % (vr(VQ + 4 * ks, 4), ks * 64))
        a.emit('''
        v_lshrrev_b32 v5, 3, v1
        v_mul_u32_u24 v5, 384, v5
        v_and_b32 v6, 7, v1
        v_bfe_u32 v7, v1, 4, 1
        v_lshlrev_b32 v7, 1, v7
        v_xor_b32 v6, v6, v7
        s_lshl_b32 s33, s31, 7
        s_mul_i32 s34, s28, 9216
        s_add_u32 s33, s33, s34
        v_add_u32 v5, s33, v5
        v_lshl_add_u32 v7, v6, 4, v5
        v_xor_b32 v6, 4, v6
        v_lshl_add_u32 v6, v6, 4, v5
        s_mul_i32 s34, s28, 3072
        s_add_u32 s34, s34, %d
        s_and_b32 s35, s28, 1
        ''' % LQ_W)
        a.emit('''
        s_cmp_eq_u32 s35, 1
        s_cselect_b64 vcc, -1, 0
        v_cndmask_b32 v5, v7, v6, vcc
        v_cndmask_b32 v6, v6, v7, vcc
        ''')
        for k in range(3):
            a.emit('s_add_u32 m0, s34, %d' % (k * 1024))
            src = 5 if k % 2 == 0 else 6
            if k:
                a.emit('v_add_u32 v%d, %d, v%d' % (src, k * 3072, src))
            a.emit('global_load_lds_dwordx4 v%d, s[14:15]' % src)
        a.emit('''
        s_mul_i32 s33, s32, 48
        v_add_u32 v4, s33, v2
        v_mul_u32_u24 v4, 384, v4
        v_lshl_add_u32 v4, v3, 3, v4
        s_lshl_b32 s33, s31, 7
        s_and_b32 s35, s28, 3
        s_lshl_b32 s35, s35, 5
        s_add_u32 s33, s33, s35
        v_add_u32 v4, s33, v4
        global_load_dwordx2 %s, v4, s[16:17]
        v_add_u32 v4, 6144, v4
        global_load_dwordx2 %s, v4, s[16:17]
        v_add_u32 v4, 6144, v4
        global_load_dwordx2 %s, v4, s[16:17]
        ''' % (vr(VWK, 2), vr(VWK + 2, 2), vr(VWK + 4, 2)))
        a.emit('''
        v_mov_b32 v%d, 0x3f803f80
        v_mov_b32 v%d, 1.0
        v_mov_b32 v%d, 0
        v_mov_b32 v%d, 0
        v_mov_b32 v%d, 0
        v_mov_b32 v%d, 0
        s_waitcnt vmcnt(6)
        ''' % (T, T + 1, T + 2, T + 3, T + 12, T + 13))
        self.stamp(4)
        for i in range(0, 24, 2):
            a.emit('v_dot2c_f32_bf16 v%d, v%d, v%d' % (T + 2, VQ + i, T))
            a.emit('v_dot2c_f32_bf16 v%d, v%d, v%d' % (T + 3, VQ + i, VQ + i))
            a.emit('v_dot2c_f32_bf16 v%d, v%d, v%d' % (T + 12, VQ + i + 1, T))
            a.emit('v_dot2c_f32_bf16 v%d, v%d, v%d' % (T + 13, VQ + i + 1, VQ + i + 1))
        a.emit('v_add_f32 v%d, v%d, v%d' % (T + 2, T + 2, T + 12))
        a.emit('v_add_f32 v%d, v%d, v%d' % (T + 3, T + 3, T + 13))
        a.emit('v_mfma_f32_16x16x4_f32 %s, v%d, v%d, 0' % (vr(T + 4, 4), T + 1, T + 2))
        a.emit('v_mfma_f32_16x16x4_f32 %s, v%d, v%d, 0' % (vr(T + 8, 4), T + 1, T + 3))
        MEAN, SSQ = T + 4, T + 8
        a.emit('''
        s_mov_b32 s36, %s
        v_mul_f32 v%d, s36, v%d
        v_mul_f32 v%d, s36, v%d
        ''' % (f32bits(1.0 / 192), MEAN, MEAN, SSQ, SSQ))
        a.emit('v_fma_f32 v%d, -v%d, v%d, v%d' % (SSQ, MEAN, MEAN, SSQ))
        a.emit('v_max_f32 v%d, 0, v%d' % (SSQ, SSQ))
        a.emit('v_cvt_pk_bf16_f32 v%d, v%d, v%d' % (T + 12, MEAN, SSQ))
        a.emit('v_lshlrev_b32 v%d, 16, v%d' % (MEAN, T + 12))
        a.emit('v_and_b32 v%d, 0xffff0000, v%d' % (SSQ, T + 12))
        a.emit('v_add_f32 v%d, %s, v%d' % (SSQ, f32bits(1e-5), SSQ))
        a.emit('v_cvt_pk_bf16_f32 v%d, v%d, v%d' % (T + 12, SSQ, SSQ))
        a.emit('v_lshlrev_b32 v%d, 16, v%d' % (SSQ, T + 12))
        a.emit('v_sqrt_f32 v%d, v%d' % (SSQ, SSQ))
        a.emit('v_cvt_pk_bf16_f32 v%d, v%d, v%d' % (T + 12, SSQ, SSQ))
        a.emit('v_lshlrev_b32 v%d, 16, v%d' % (SSQ, T + 12))
        a.emit('v_rcp_f32 v%d, v%d' % (SSQ, SSQ))
        labs = [self.lab('qkn') for _ in range(7)]
        a.branch('s_cmp_ge_u32 s28, 6')
        a.branch('s_cbranch_scc1 %s' % labs[6])
        for t in range(6):
            if t < 5:
                a.branch('s_cmp_lg_u32 s28, %d' % t)
                a.branch('s_cbranch_scc1 %s' % labs[t])
            for j in range(4):
                src = VQ + 4 * t + j
                x, y, z = T + 16 + 3 * j, T + 17 + 3 * j, T + 18 + 3 * j
                a.emit('v_lshlrev_b32 v%d, 16, v%d' % (x, src))
                a.emit('v_and_b32 v%d, 0xffff0000, v%d' % (y, src))
            for j in range(4):
                x, y, z = T + 16 + 3 * j, T + 17 + 3 * j, T + 18 + 3 * j
                a.emit('v_sub_f32 v%d, v%d, v%d' % (x, x, MEAN))
                a.emit('v_sub_f32 v%d, v%d, v%d' % (y, y, MEAN))
            for j in range(4):
                x, y, z = T + 16 + 3 * j, T + 17 + 3 * j, T + 18 + 3 * j
                a.emit('v_cvt_pk_bf16_f32 v%d, v%d, v%d' % (z, x, y))
            for j in range(4):
                x, y, z = T + 16 + 3 * j, T + 17 + 3 * j, T + 18 + 3 * j
                a.emit('v_lshlrev_b32 v%d, 16, v%d' % (x, z))
                a.emit('v_and_b32 v%d, 0xffff0000, v%d' % (y, z))
            for j in range(4):
                x, y, z = T + 16 + 3 * j, T + 17 + 3 * j, T + 18 + 3 * j
                a.emit('v_mul_f32 v%d, v%d, v%d' % (x, x, SSQ))
                a.emit('v_mul_f32 v%d, v%d, v%d' % (y, y, SSQ))
            for j in range(4):
                x, y, z = T + 16 + 3 * j, T + 17 + 3 * j, T + 18 + 3 * j
                a.emit('v_cvt_pk_bf16_f32 v%d, v%d, v%d' % (T + 28 + j, x, y))
            a.emit('''
            v_lshlrev_b32 v4, 4, v1
            ds_write_b128 v4, %s offset:%d
            ''' % (vr(T + 28, 4), LQ_QN + t * 1024))
            if t < 5:
                a.branch('s_branch %s' % labs[6])
                a.label(labs[t])
        a.label(labs[6])
        self.stamp(5)
        a.emit('s_waitcnt vmcnt(3)')
        self.stamp(6)
        a.emit('''
        s_waitcnt vmcnt(0) lgkmcnt(0)
        ''')
        self.stamp(7)
        a.emit('s_barrier')
        self.stamp(1)
        a.branch('s_cmp_ge_u32 s28, 4')
        a.branch('s_cbranch_scc1 %s' % 'L_qk_b2')
        a.emit('v_lshlrev_b32 v4, 4, v1')
        for ks in range(6):
            a.emit('ds_read_b128 %s, v4 offset:%d' % (vr(VQN + 4 * ks, 4), LQ_QN + ks * 1024))
        a.emit('''
        v_bfe_u32 v5, v1, 2, 2
        v_lshl_add_u32 v6, v3, 3, v5
        v_lshlrev_b32 v6, 7, v6
        v_lshrrev_b32 v5, 1, v5
        v_and_b32 v7, 1, v3
        v_lshl_or_b32 v5, v7, 1, v5
        v_lshlrev_b32 v5, 1, v5
        v_bfe_u32 v7, v1, 1, 1
        s_lshl_b32 s33, s28, 1
        v_or_b32 v7, s33, v7
        v_xor_b32 v5, v5, v7
        v_lshl_add_u32 v6, v5, 4, v6
        v_and_b32 v7, 1, v1
        v_lshl_add_u32 v6, v7, 3, v6
        ''')
        for ks in range(6):
            for h in range(2):
                a.emit('ds_read_b64_tr_b16 %s, v6 offset:%d' % (vr(VWQ + 4 * ks + 2 * h, 2), LQ_W + ks * 4096 + h * 512))
        D1 = T + 32
        for ks in range(6):
            a.emit('s_waitcnt lgkmcnt(%d)' % (10 - 2 * ks))
            a.emit('%s %s, %s, %s, %s' % (MF, vr(D1, 4), vr(VWQ + 4 * ks, 4), vr(VQN + 4 * ks, 4), '0' if ks == 0 else vr(D1, 4)))
        P = T + 36
        a.emit('v_cvt_pk_bf16_f32 v%d, v%d, v%d' % (P, D1, D1 + 1))
        a.emit('v_cvt_pk_bf16_f32 v%d, v%d, v%d' % (P + 1, D1 + 2, D1 + 3))
        D2 = T + 40
        for tau in range(3):
            a.emit('v_mfma_f32_16x16x16_bf16 %s, %s, %s, 0' % (vr(D2 + 4 * tau, 4), vr(VWK + 2 * tau, 2), vr(P, 2)))
        a.emit('''
        s_mul_i32 s33, s28, 3072
        v_add_u32 v5, s33, v4
        ''')
        for tau in range(3):
            a.emit('ds_write_b128 v5, %s offset:%d' % (vr(D2 + 4 * tau, 4), LQ_RED + tau * 1024))
        a.emit('s_waitcnt lgkmcnt(0)')
        a.label('L_qk_b2')
        a.emit('s_barrier')
        a.branch('s_cmp_ge_u32 s28, 3')
        a.branch('s_cbranch_scc1 L_end')
        a.emit('''
        v_lshlrev_b32 v4, 4, v1
        s_lshl_b32 s33, s28, 10
        v_add_u32 v5, s33, v4
        ''')
        for d in range(4):
            a.emit('ds_read_b128 %s, v5 offset:%d' % (vr(VQ + 4 * d, 4), LQ_RED + d * 3072))
        a.emit('s_mov_b32 s36, %s' % f32bits(QSCALE))
        a.emit('''
        s_mul_i32 s33, s32, 3
        s_add_u32 s33, s33, s28
        s_lshr_b32 s34, s33, 1
        s_lshl_b32 s34, s34, 10
        s_and_b32 s33, s33, 1
        s_lshl_b32 s33, s33, 8
        s_add_u32 s34, s34, s33
        s_mul_i32 s33, s31, 6144
        s_add_u32 s34, s34, s33
        v_lshrrev_b32 v5, 1, v3
        v_lshlrev_b32 v5, 9, v5
        v_lshl_add_u32 v5, v2, 4, v5
        v_and_b32 v6, 1, v3
        v_lshl_add_u32 v5, v6, 3, v5
        v_add_u32 v5, s34, v5
        s_waitcnt lgkmcnt(0)
        ''')
        for r in range(4):
            a.emit('v_add_f32 v%d, v%d, v%d' % (VQ + r, VQ + r, VQ + 4 + r))
            a.emit('v_add_f32 v%d, v%d, v%d' % (VQ + 8 + r, VQ + 8 + r, VQ + 12 + r))
        for r in range(4):
            a.emit('v_add_f32 v%d, v%d, v%d' % (VQ + r, VQ + r, VQ + 8 + r))
        for r in range(4):
            a.emit('v_mul_f32 v%d, s36, v%d' % (VQ + r, VQ + r))
        a.emit('v_cvt_pk_bf16_f32 v%d, v%d, v%d' % (P, VQ, VQ + 1))
        a.emit('v_cvt_pk_bf16_f32 v%d, v%d, v%d' % (P + 1, VQ + 2, VQ + 3))
        a.emit('global_store_dwordx2 v5, %s, s[26:27] offset:%d sc1' % (vr(P, 2), WS_QK))
        self.stamp(8)
        a.emit('s_waitcnt vmcnt(0)')
        self.stamp(9)
        a.emit('s_barrier')
        a.branch('s_cmp_lg_u32 s28, 0')
        a.branch('s_cbranch_scc1 L_end')
        a.emit('''
        s_and_b32 s33, s30, 1
        s_lshl_b32 s33, s33, 7
        s_lshr_b32 s34, s30, 1
        s_add_u32 s33, s33, s34
        ''')
        self.flag_store(33, 5)
        self.stamp(3)
        a.branch('s_branch L_end')

    def role_main(self):
        a = self.a
        lh = self.lab('helper')
        a.branch('s_cmp_eq_u32 s28, 7')
        a.branch('s_cbranch_scc1 %s' % lh)
        NT = ' nt'
        F1, T0, T1, QK = 24, 48, 72, 96
        ONES = 20
        S1, S0, S0b = 120, 124, 128
        SS0, SS1 = 132, 136
        AC = 140
        RS = 148
        MR = 156
        L1, L0, L0b = 164, 168, 172
        TM = 176
        XQ = [120 + 4 * i for i in range(7)] + [200 + 4 * i for i in range(11)]
        win = self.opt.get('win', 99)
        a.emit('''
        s_lshr_b32 s31, s30, 1
        s_and_b32 s32, s30, 1
        s_mul_i32 s32, s32, 56
        s_lshl_b32 s33, s28, 3
        s_add_u32 s32, s32, s33
        s_mul_i32 s33, s31, 112
        s_add_u32 s33, s33, s32
        s_mul_i32 s33, s33, 384
        s_add_u32 s34, s12, s33
        s_addc_u32 s35, s13, 0
        s_mul_i32 s33, s31, 448
        s_lshl_b32 s32, s32, 1
        s_add_u32 s33, s33, s32
        s_mul_i32 s33, s33, 384
        s_add_u32 s36, s10, s33
        s_addc_u32 s37, s11, 0
        s_add_u32 s38, s36, 86016
        s_addc_u32 s39, s37, 0
        s_mul_i32 s43, s28, %d
        s_add_u32 s43, s43, %d
        s_movk_i32 s44, 2731
        ''' % (XREG, L_X))
        nissued = [0]
        def dma(txt):
            if nissued[0] >= win:
                a.emit('s_waitcnt vmcnt(%d)' % (win - 1))
            a.emit(txt); nissued[0] += 1
        for jj in range(3):
            u, p = TM + 4 * jj, TM + 4 * jj + 1
            a.emit('''
            v_add_u32 v%d, %d, v1
            v_mul_u32_u24 v%d, s44, v%d
            v_lshrrev_b32 v%d, 16, v%d
            v_mul_u32_u24 v%d, 24, v%d
            v_sub_u32 v%d, v%d, v%d
            v_bfe_u32 v%d, v%d, 1, 1
            v_bfe_u32 v%d, v%d, 2, 1
            v_lshl_add_u32 v%d, v%d, 2, v%d
            v_xor_b32 v%d, v%d, v%d
            v_mul_u32_u24 v%d, 384, v%d
            v_lshl_add_u32 v%d, v%d, 4, v%d
            s_add_u32 m0, s43, %d
            ''' % (u, 64 * jj, p, u, p, p, u + 2, p, u, u, u + 2,
                   u + 2, p, u + 3, p, u + 2, u + 2, u + 3, u + 2, u + 2, u, u + 3, p,
                   4 + jj, u + 2, u + 3, jj * 1024))
            dma('global_load_lds_dwordx4 v%d, s[34:35]%s' % (4 + jj, NT))
        for jj in range(3):
            u, p = TM + 4 * jj, TM + 4 * jj + 1
            a.emit('''
            v_bfe_u32 v%d, v%d, 1, 2
            v_lshlrev_b32 v%d, 1, v%d
            v_xor_b32 v%d, v%d, v%d
            v_lshl_add_u32 v%d, v%d, 4, v%d
            v_xor_b32 v%d, 16, v%d
            ''' % (u + 2, p, u + 2, u + 2, u + 2, u + 2, u, 7 + jj, u + 2, u + 3, 10 + jj, 7 + jj))
        for t, sp in ((0, 36), (1, 38)):
            for jj in range(3):
                a.emit('s_add_u32 m0, s43, %d' % (3072 + t * 6144 + jj * 1024))
                dma('global_load_lds_dwordx4 v%d, s[%d:%d]%s' % (7 + jj, sp, sp + 1, NT))
                dma('global_load_lds_dwordx4 v%d, s[%d:%d] offset:3072%s' % (10 + jj, sp, sp + 1, NT))
        self.stamp(1)
        a.emit('''
        v_and_b32 v%d, 1, v3
        v_lshlrev_b32 v%d, 1, v%d
        v_lshrrev_b32 v%d, 1, v3
        v_or_b32 v%d, v%d, v%d
        v_bfe_u32 v%d, v2, 1, 2
        v_lshlrev_b32 v%d, 1, v%d
        v_lshrrev_b32 v%d, 3, v2
        v_or_b32 v%d, v%d, v%d
        v_xor_b32 v%d, v%d, v%d
        v_mul_u32_u24 v%d, 384, v2
        v_add_u32 v%d, s43, v%d
        v_lshl_add_u32 v13, v%d, 4, v%d
        v_xor_b32 v%d, 4, v%d
        v_lshl_add_u32 v14, v%d, 4, v%d
        ''' % (TM, TM, TM, TM + 1, TM, TM, TM + 1,
               TM + 1, TM + 1, TM + 1, TM + 2, TM + 1, TM + 1, TM + 2,
               TM + 1, TM + 1, TM,
               TM + 3, TM + 3, TM + 3,
               TM + 1, TM + 3, TM + 1, TM + 1, TM + 1, TM + 3))
        a.emit('''
        v_bfe_u32 v%d, v2, 2, 1
        v_lshlrev_b32 v%d, 2, v%d
        v_lshrrev_b32 v%d, 3, v2
        v_or_b32 v%d, v%d, v%d
        v_xor_b32 v%d, v%d, v%d
        v_lshrrev_b32 v%d, 1, v2
        v_mul_u32_u24 v%d, 384, v%d
        v_add_u32 v%d, s43, v%d
        v_lshl_add_u32 v16, v%d, 4, v%d
        v_xor_b32 v%d, 4, v%d
        v_lshl_add_u32 v15, v%d, 4, v%d
        ''' % (TM + 1, TM + 1, TM + 1, TM + 2, TM + 1, TM + 1, TM + 2,
               TM + 1, TM + 1, TM,
               TM + 2, TM + 2, TM + 2, TM + 2, TM + 2,
               TM + 1, TM + 2, TM + 1, TM + 1, TM + 1, TM + 2))
        a.emit('''
        v_mov_b32 v17, 1.0
        v_lshlrev_b32 v18, 4, v1
        v_lshlrev_b32 v19, 5, v2
        v_mov_b32 v20, 0x3f803f80
        v_mov_b32 v21, 0x3f803f80
        v_mov_b32 v22, 0x3f803f80
        v_mov_b32 v23, 0x3f803f80
        ''')
        for i in range(8):
            a.emit('v_mov_b32 v%d, 0' % (AC + i))
        A0, A1, A2, A3 = 4, 5, 6, 7
        C0, C1, C2, C3, C4, C5 = 8, 9, 10, 11, 12, 188
        a.emit('''
        v_bfe_u32 v%d, v1, 2, 4
        v_bfe_u32 v%d, v%d, 1, 2
        v_lshlrev_b32 v%d, 1, v%d
        v_lshrrev_b32 v%d, 3, v%d
        v_or_b32 v%d, v%d, v%d
        v_bfe_u32 v%d, v1, 1, 1
        s_and_b32 s44, s28, 1
        s_lshl_b32 s44, s44, 2
        v_or_b32 v%d, s44, v%d
        v_xor_b32 v%d, v%d, v%d
        v_mul_u32_u24 v%d, 384, v%d
        v_and_b32 v%d, 1, v1
        v_lshl_add_u32 v%d, v%d, 3, v%d
        s_lshr_b32 s45, s28, 1
        s_lshl_b32 s45, s45, 7
        s_add_u32 s45, s45, %d
        v_add_u32 v%d, s45, v%d
        v_lshl_add_u32 v%d, v%d, 4, v%d
        v_xor_b32 v%d, 2, v%d
        v_lshl_add_u32 v%d, v%d, 4, v%d
        v_add_u32 v%d, %d, v%d
        v_add_u32 v%d, %d, v%d
        ''' % (TM,
               TM + 1, TM, TM + 1, TM + 1, TM + 2, TM, TM + 1, TM + 1, TM + 2,
               TM + 2,
               TM + 2, TM + 2,
               TM + 1, TM + 1, TM + 2,
               TM + 3, TM,
               TM + 4,
               TM + 3, TM + 4, TM + 3,
               L_X,
               TM + 3, TM + 3,
               A0, TM + 1, TM + 3,
               TM + 1, TM + 1,
               A1, TM + 1, TM + 3,
               A2, 4 * XREG, A0,
               A3, 4 * XREG, A1))
        a.emit('''
        v_and_b32 v%d, 1, v3
        v_lshlrev_b32 v%d, 2, v%d
        v_lshrrev_b32 v%d, 1, v3
        v_or_b32 v%d, v%d, v%d
        v_xor_b32 v%d, v%d, v%d
        v_bfe_u32 v%d, v1, 2, 1
        v_lshl_add_u32 v%d, v3, 1, v%d
        v_mul_u32_u24 v%d, 384, v%d
        v_lshl_add_u32 v%d, v%d, 3, v%d
        v_add_u32 v%d, s45, v%d
        v_bfe_u32 v%d, v1, 3, 1
        v_mul_u32_u24 v%d, %d, v%d
        v_add_u32 v%d, v%d, v%d
        v_lshl_add_u32 v%d, v%d, 4, v%d
        v_xor_b32 v%d, 2, v%d
        v_lshl_add_u32 v%d, v%d, 4, v%d
        v_add_u32 v%d, %d, v%d
        v_add_u32 v%d, %d, v%d
        v_lshl_add_u32 v%d, v%d, 4, v%d
        v_xor_b32 v%d, 2, v%d
        v_lshl_add_u32 v%d, v%d, 4, v%d
        v_add_u32 v%d, %d, v%d
        v_add_u32 v%d, %d, v%d
        ''' % (TM, TM, TM,
               TM + 1, TM, TM, TM + 1,
               TM, TM, TM + 2,
               TM + 1,
               TM + 1, TM + 1,
               TM + 1, TM + 1,
               TM + 1, TM + 4, TM + 1,
               TM + 1, TM + 1,
               TM + 3,
               TM + 3, XREG, TM + 3,
               TM + 3, TM + 3, TM + 1,
               C0, TM, TM + 3,
               TM, TM,
               C1, TM, TM + 3,
               C2, 4 * XREG, C0,
               C3, 4 * XREG, C1,
               C5, TM, TM + 1,
               TM, TM,
               C4, TM, TM + 1,
               C4, 6 * XREG, C4,
               C5, 6 * XREG, C5))

        def aread(dst, ve, vo, off):
            for ks in range(6):
                a.emit('ds_read_b128 %s, v%d offset:%d' % (vr(dst + 4 * ks, 4), ve if ks % 2 == 0 else vo, off + (ks >> 1) * 128))

        a.emit('s_mov_b32 s44, %s' % f32bits(1.0 / 192))
        a.emit('s_mov_b32 s45, %s' % f32bits(1e-5))
        def finalize(t, SD, SSD):
            for r in range(4):
                a.emit('v_mul_f32 v%d, s44, v%d' % (SD + r, SD + r))
            for r in range(4):
                a.emit('v_mul_f32 v%d, v%d, v%d' % (TM + r, SD + r, SD + r))
            for r in range(4):
                a.emit('v_fma_f32 v%d, v%d, s44, -v%d' % (SSD + r, SSD + r, TM + r))
            for r in range(4):
                a.emit('v_max_f32 v%d, 0, v%d' % (SSD + r, SSD + r))
            for r in range(4):
                a.emit('v_add_f32 v%d, s45, v%d' % (SSD + r, SSD + r))
            for r in range(4):
                a.emit('v_rsq_f32 v%d, v%d' % (RS + 4 * t + r, SSD + r))
            for r in range(4):
                a.emit('v_mul_f32 v%d, v%d, v%d' % (MR + 4 * t + r, SD + r, RS + 4 * t + r))

        a.emit('s_waitcnt vmcnt(12)')
        aread(F1, 16, 15, 0)
        for ks in range(6):
            a.emit('s_waitcnt lgkmcnt(%d)' % (5 - ks))
            a.emit('%s %s, %s, %s, %s' % (MF, vr(S1, 4), vr(F1 + 4 * ks, 4), vr(ONES, 4), '0' if ks == 0 else vr(S1, 4)))
            for j in range(4):
                r = F1 + 4 * ks + j
                a.emit('v_dot2c_f32_bf16 v%d, v%d, v%d' % (AC + (j & 1), r, r))
        a.emit('v_add_f32 v%d, v%d, v%d' % (AC, AC, AC + 1))
        for t, (TT, SD, SSD, wait) in enumerate(((T0, S0, SS0, 6), (T1, S0b, SS1, 0))):
            ac = AC + 2
            if t == 1:
                for i in range(4):
                    a.emit('v_mov_b32 v%d, 0' % (ac + i))
                finalize(0, S0, SS0)
            a.emit('s_waitcnt vmcnt(%d)' % wait)
            aread(TT, 13, 14, 3072 + t * 6144)
            for ks in range(6):
                a.emit('s_waitcnt lgkmcnt(%d)' % (5 - ks))
                a.emit('%s %s, %s, %s, %s' % (MF, vr(SD, 4), vr(TT + 4 * ks, 4), vr(ONES, 4), vr(S1, 4) if ks == 0 else vr(SD, 4)))
                for j in range(4):
                    r = TT + 4 * ks + j
                    a.emit('v_dot2c_f32_bf16 v%d, v%d, v%d' % (ac + (j & 1), r, r))
                    a.emit('v_dot2c_f32_bf16 v%d, v%d, v%d' % (ac + 2 + (j & 1), r, F1 + 4 * ks + j))
            a.emit('''
            v_add_f32 v%d, v%d, v%d
            v_add_f32 v%d, v%d, v%d
            v_add_f32 v%d, v%d, v%d
            v_fma_f32 v%d, 2.0, v%d, v%d
            v_mfma_f32_16x16x4_f32 %s, v%d, v17, 0
            ''' % (ac, ac, ac + 1, ac + 2, ac + 2, ac + 3, ac, ac, AC, ac, ac + 2, ac, vr(SSD, 4), ac))
        finalize(1, S0b, SS1)
        self.stamp(2)
        a.emit('s_barrier')
        self.stamp(3)
        for ks in range(6):
            a.emit('ds_read_b128 %s, v18 offset:%d' % (vr(QK + 4 * ks, 4), L_QK + ks * 1024))
        a.emit('v_lshlrev_b32 v%d, 2, v2' % (TM + 1))
        a.emit('ds_read_b32 v%d, v%d offset:%d' % (TM, TM + 1, L_SQ))
        for ks in range(6):
            a.emit('s_waitcnt lgkmcnt(%d)' % (6 - ks))
            a.emit('%s %s, %s, %s, %s' % (MF, vr(L1, 4), vr(F1 + 4 * ks, 4), vr(QK + 4 * ks, 4), '0' if ks == 0 else vr(L1, 4)))
        def xissue(k):
            if k < 7:
                for e in range(2):
                    base = (A0, A1)[e] if k < 4 else (A2, A3)[e]
                    uoff = (k if k < 4 else k - 4) * XREG
                    for tt in range(2):
                        a.emit('ds_read_b64_tr_b16 %s, v%d offset:%d' % (vr(XQ[k * 2 + e] + tt * 2, 2), base, uoff + 3072 + tt * 6144))
            else:
                aa = k - 7
                for e in range(2):
                    for hh in range(2):
                        if aa == 0:
                            base, off = (C0, C1)[e], hh * 2 * XREG
                        elif hh == 0:
                            base, off = (C2, C3)[e], 0
                        else:
                            base, off = (C4, C5)[e], 0
                        a.emit('ds_read_b64_tr_b16 %s, v%d offset:%d' % (vr(XQ[k * 2 + e] + hh * 2, 2), base, off))
        for ks in range(6):
            a.emit('%s %s, %s, %s, %s' % (MF, vr(L0, 4), vr(T0 + 4 * ks, 4), vr(QK + 4 * ks, 4), vr(L1, 4) if ks == 0 else vr(L0, 4)))
            a.emit('%s %s, %s, %s, %s' % (MF, vr(L0b, 4), vr(T1 + 4 * ks, 4), vr(QK + 4 * ks, 4), vr(L1, 4) if ks == 0 else vr(L0b, 4)))
            if ks == 0:
                a.emit('s_waitcnt lgkmcnt(0)')
                for e in range(8):
                    a.emit('v_mul_f32 v%d, v%d, v%d' % (TM + 4 + e, MR + e, TM))
                lsk = self.lab('skipx')
                a.branch('s_cmp_ge_u32 s28, 6')
                a.branch('s_cbranch_scc1 %s' % lsk)
                for k in range(9): xissue(k)
                a.label(lsk)
        for t, LD in enumerate((L0, L0b)):
            for r in range(4):
                a.emit('v_fma_f32 v%d, v%d, v%d, -v%d' % (LD + r, LD + r, RS + 4 * t + r, TM + 4 + 4 * t + r))
        a.emit('''
        v_max3_f32 v%d, v%d, v%d, v%d
        v_max3_f32 v%d, v%d, v%d, v%d
        v_max3_f32 v%d, v%d, v%d, v%d
        v_max_f32 v%d, v%d, v%d
        v_mov_b32 v%d, v%d
        v_permlane16_swap_b32 v%d, v%d
        v_max_f32 v%d, v%d, v%d
        v_mov_b32 v%d, v%d
        v_permlane32_swap_b32 v%d, v%d
        v_max_f32 v%d, v%d, v%d
        s_lshl_b32 s46, s28, 2
        v_add_u32 v%d, s46, v19
        ds_write_b32 v%d, v%d offset:%d
        s_waitcnt lgkmcnt(0)
        s_barrier
        ds_read_b128 %s, v19 offset:%d
        ds_read_b128 %s, v19 offset:%d
        s_waitcnt lgkmcnt(0)
        v_max3_f32 v%d, v%d, v%d, v%d
        v_max3_f32 v%d, v%d, v%d, v%d
        v_max3_f32 v%d, v%d, v%d, v%d
        v_max_f32 v%d, v%d, v%d
        v_ceil_f32 v%d, v%d
        ''' % (TM, L0, L0 + 1, L0 + 2,
               TM + 1, L0 + 3, L0b, L0b + 1,
               TM, TM, L0b + 2, L0b + 3,
               TM, TM, TM + 1,
               TM + 1, TM, TM, TM + 1, TM, TM, TM + 1,
               TM + 1, TM, TM, TM + 1, TM, TM, TM + 1,
               TM + 2,
               TM + 2, TM, L_MX,
               vr(TM + 4, 4), L_MX, vr(TM + 8, 4), L_MX + 16,
               TM, TM + 4, TM + 5, TM + 6,
               TM + 1, TM + 7, TM + 8, TM + 9,
               TM, TM, TM + 10, TM + 11,
               TM, TM, TM + 1,
               TM, TM))
        self.stamp(4)
        for LD in (L0, L0b):
            for r in range(4):
                a.emit('v_sub_f32 v%d, v%d, v%d' % (LD + r, LD + r, TM))
        for LD in (L0, L0b):
            for r in range(4):
                a.emit('v_exp_f32 v%d, v%d' % (LD + r, LD + r))
        P = [L0, L0 + 1, L0 + 2, L0 + 3, L0b, L0b + 1, L0b + 2, L0b + 3]
        W = TM + 4
        a.emit('v_add_f32 v%d, v%d, v%d' % (TM, P[0], P[1]))
        a.emit('v_add_f32 v%d, v%d, v%d' % (TM + 1, P[2], P[3]))
        a.emit('v_mul_f32 v%d, v%d, v%d' % (TM + 2, P[0], MR))
        a.emit('v_mul_f32 v%d, v%d, v%d' % (TM + 3, P[1], MR + 1))
        for e in range(4, 8, 2):
            a.emit('v_add_f32 v%d, v%d, v%d' % (TM, TM, P[e]))
            a.emit('v_add_f32 v%d, v%d, v%d' % (TM + 1, TM + 1, P[e + 1]))
        for e in range(2, 8, 2):
            a.emit('v_fmac_f32 v%d, v%d, v%d' % (TM + 2, P[e], MR + e))
            a.emit('v_fmac_f32 v%d, v%d, v%d' % (TM + 3, P[e + 1], MR + e + 1))
        for e in range(8):
            a.emit('v_mul_f32 v%d, v%d, v%d' % (P[e], P[e], RS + e))
        a.emit('v_add_f32 v%d, v%d, v%d' % (TM, TM, TM + 1))
        a.emit('v_add_f32 v%d, v%d, v%d' % (TM + 2, TM + 2, TM + 3))
        for i in range(4):
            a.emit('v_cvt_pk_bf16_f32 v%d, v%d, v%d' % (W + i, P[2 * i], P[2 * i + 1]))
        a.emit('v_mfma_f32_16x16x4_f32 %s, v17, v%d, 0' % (vr(QK, 4), TM))
        a.emit('v_mfma_f32_16x16x4_f32 %s, v17, v%d, 0' % (vr(QK + 4, 4), TM + 2))
        a.emit('''
        s_lshl_b32 s46, s28, 10
        v_add_u32 v%d, s46, v18
        ds_write_b128 v%d, %s offset:%d
        v_add_f32 v%d, v%d, v%d
        v_add_f32 v%d, v%d, v%d
        v_add_f32 v%d, v%d, v%d
        v_add_f32 v%d, v%d, v%d
        v_add_f32 v%d, v%d, v%d
        v_add_f32 v%d, v%d, v%d
        v_cvt_pk_bf16_f32 v%d, v%d, v%d
        s_lshr_b32 s46, s28, 2
        s_lshl_b32 s46, s46, 10
        s_and_b32 s47, s28, 3
        s_lshl_b32 s47, s47, 2
        s_add_u32 s46, s46, s47
        v_add_u32 v%d, s46, v18
        ds_write_b32 v%d, v%d offset:%d
        s_lshl_b32 s46, s28, 2
        v_add_u32 v%d, s46, v19
        ds_write_b32 v%d, v%d offset:%d
        ds_write_b32 v%d, v%d offset:%d
        s_waitcnt lgkmcnt(0)
        s_barrier
        ''' % (TM + 3, TM + 3, vr(W, 4), L_WF,
               TM + 8, P[0], P[1],
               TM + 9, P[4], P[5],
               TM + 10, P[2], P[3],
               TM + 11, P[6], P[7],
               TM + 8, TM + 8, TM + 9,
               TM + 10, TM + 10, TM + 11,
               TM + 8, TM + 8, TM + 10,
               TM + 3, TM + 3, TM + 8, L_WC,
               TM + 3,
               TM + 3, QK, L_LS,
               TM + 3, QK + 4, L_CO))
        self.stamp(5)
        a.branch('s_cmp_ge_u32 s28, 6')
        a.branch('s_cbranch_scc1 L_end')
        WB = 24
        ACC = 60
        CW = 68
        for k in range(9):
            a.emit('ds_read_b128 %s, v18 offset:%d' % (vr(WB + 4 * k, 4), (L_WF + k * 1024) if k < 7 else (L_WC + (k - 7) * 1024)))
        a.emit('ds_read_b128 %s, v19 offset:%d' % (vr(CW, 4), L_CO))
        a.emit('ds_read_b128 %s, v19 offset:%d' % (vr(CW + 4, 4), L_CO + 16))
        a.emit('''
        v_mul_u32_u24 v%d, %d, v2
        v_and_b32 v%d, 1, v3
        v_lshlrev_b32 v%d, 5, v%d
        v_lshrrev_b32 v%d, 1, v3
        v_lshl_add_u32 v%d, v%d, 4, v%d
        v_add_u32 v%d, v%d, v%d
        s_mul_i32 s46, s30, 384
        s_lshl_b32 s47, s28, 6
        s_add_u32 s46, s46, s47
        s_add_u32 s46, s46, %d
        v_add_u32 v%d, s46, v%d
        ''' % (TM, 224 * 384, TM + 1, TM + 1, TM + 1, TM + 2, TM + 1, TM + 2, TM + 1, TM, TM, TM + 1, WS_Z, TM, TM))
        for k in range(9):
            a.emit('s_waitcnt lgkmcnt(%d)' % (10 - k))
            for e in range(2):
                a.emit('%s %s, %s, %s, %s' % (MF, vr(ACC + 4 * e, 4), vr(XQ[k * 2 + e], 4), vr(WB + 4 * k, 4), '0' if k == 0 else vr(ACC + 4 * e, 4)))
        a.emit('s_waitcnt lgkmcnt(0)')
        a.emit('''
        v_add_f32 v%d, v%d, v%d
        v_add_f32 v%d, v%d, v%d
        v_add_f32 v%d, v%d, v%d
        v_add_f32 v%d, v%d, v%d
        v_add_f32 v%d, v%d, v%d
        v_add_f32 v%d, v%d, v%d
        v_add_f32 v%d, v%d, v%d
        ''' % (CW, CW, CW + 1, CW + 2, CW + 2, CW + 3, CW + 4, CW + 4, CW + 5, CW + 6, CW + 6, CW + 7,
               CW, CW, CW + 2, CW + 4, CW + 4, CW + 6, CW, CW, CW + 4))
        for e in range(2):
            for r in range(4):
                a.emit('v_sub_f32 v%d, v%d, v%d' % (ACC + 4 * e + r, ACC + 4 * e + r, CW))
        O = 76
        a.emit('''
        v_cvt_pk_bf16_f32 v%d, v%d, v%d
        v_cvt_pk_bf16_f32 v%d, v%d, v%d
        v_cvt_pk_bf16_f32 v%d, v%d, v%d
        v_cvt_pk_bf16_f32 v%d, v%d, v%d
        v_permlane16_swap_b32 v%d, v%d
        v_permlane16_swap_b32 v%d, v%d
        global_store_dwordx4 v%d, %s, s[26:27] sc1
        ''' % (O, ACC, ACC + 1, O + 1, ACC + 2, ACC + 3, O + 2, ACC + 4, ACC + 5, O + 3, ACC + 6, ACC + 7,
               O, O + 2, O + 1, O + 3, TM, vr(O, 4)))
        self.stamp(6)
        a.branch('s_branch L_end')

        a.label(lh)
        a.emit('''
        v_lshlrev_b32 v18, 4, v1
        v_lshlrev_b32 v19, 5, v2
        v_mov_b32 v4, 0
        v_mov_b32 v5, 0xff800000
        v_mov_b32 v17, 1.0
        v_mov_b32 v20, 0x3f803f80
        v_mov_b32 v21, 0x00003f80
        v_mov_b32 v22, 0x3f800000
        ds_write_b32 v18, v4 offset:%d
        ds_write_b32 v19, v5 offset:%d
        ds_write_b32 v19, v4 offset:%d
        ds_write_b32 v19, v4 offset:%d
        ''' % (L_WC + 1024 + 12, L_MX + 28, L_LS + 28, L_CO + 28))
        lp, ld = self.lab('poll'), self.lab('polld')
        a.emit('''
        v_and_b32 v6, 1, v1
        v_bfe_u32 v7, v1, 1, 1
        v_lshl_add_u32 v6, v7, 4, v6
        v_bfe_u32 v7, v1, 2, 1
        v_lshl_add_u32 v6, v7, 5, v6
        v_lshlrev_b32 v6, 2, v6
        v_and_b32 v7, 3, v1
        v_mov_b32 v8, 0x01010101
        v_mov_b32 v9, 0x00000101
        v_cmp_eq_u32 vcc, 1, v7
        v_cndmask_b32 v7, v8, v9, vcc
        s_mov_b32 exec_lo, 0xff
        s_mov_b32 exec_hi, 0
        s_mov_b32 s42, 0
        ''')
        a.label(lp)
        a.emit('''
        global_load_dword v8, v6, s[24:25] sc1
        s_add_u32 s42, s42, 1
        s_waitcnt vmcnt(0)
        v_cmp_ne_u32 vcc, v8, v7
        ''')
        a.branch('s_cbranch_vccz %s' % ld)
        a.emit('s_sleep %d' % self.opt.get('sleep', 2))
        a.emit('s_cmp_lt_u32 s42, 0x40000')
        a.branch('s_cbranch_scc1 %s' % lp)
        a.label(ld)
        a.emit('s_mov_b64 exec, -1')
        self.stamp(2)
        PB = 24
        a.emit('v_add_u32 v9, 6144, v18')
        a.emit('v_add_u32 v10, 12288, v18')
        a.emit('v_add_u32 v11, 4096, v18')
        a.emit('v_add_u32 v12, 4096, v9')
        a.emit('v_add_u32 v13, 4096, v10')
        for ks in range(6):
            for p in range(3):
                base = (18, 9, 10)[p] if ks < 4 else (11, 12, 13)[p]
                a.emit('global_load_dwordx4 %s, v%d, s[26:27] offset:%d sc1' % (vr(PB + (ks * 3 + p) * 4, 4), base, (ks % 4) * 1024))
        R = 96
        TL = 120
        a.emit('v_mov_b32 v14, 0')
        a.emit('v_mov_b32 v15, 0')
        for ks in range(6):
            a.emit('s_waitcnt vmcnt(%d)' % (15 - 3 * ks))
            tl = TL + (ks & 1) * 8
            for p in range(3):
                for j in range(4):
                    src = PB + (ks * 3 + p) * 4 + j
                    c = lambda x: '0' if p == 0 else 'v%d' % x
                    a.emit('v_dot2_f32_bf16 v%d, v%d, v21, %s' % (tl + 2 * j, src, c(tl + 2 * j)))
                    a.emit('v_dot2_f32_bf16 v%d, v%d, v22, %s' % (tl + 2 * j + 1, src, c(tl + 2 * j + 1)))
            for j in range(4):
                a.emit('v_cvt_pk_bf16_f32 v%d, v%d, v%d' % (R + 4 * ks + j, tl + 2 * j, tl + 2 * j + 1))
            a.emit('ds_write_b128 v18, %s offset:%d' % (vr(R + 4 * ks, 4), L_QK + ks * 1024))
            for j in range(4):
                a.emit('v_dot2c_f32_bf16 v%d, v%d, v20' % (14 + (j & 1), R + 4 * ks + j))
        a.emit('''
        v_add_f32 v14, v14, v15
        v_mfma_f32_16x16x4_f32 v[136:139], v17, v14, 0
        v_lshlrev_b32 v4, 2, v2
        ds_write_b32 v4, v136 offset:%d
        s_waitcnt lgkmcnt(0)
        s_barrier
        ''' % L_SQ)
        self.stamp(3)
        a.emit('''
        s_barrier
        s_barrier
        ds_read_b128 v[24:27], v19 offset:%d
        ds_read_b128 v[28:31], v19 offset:%d
        ds_read_b128 v[32:35], v19 offset:%d
        ds_read_b128 v[36:39], v19 offset:%d
        s_lshl_b32 s44, s30, 7
        s_add_u32 s44, s44, %d
        v_lshl_add_u32 v6, v2, 3, s44
        s_waitcnt lgkmcnt(0)
        v_max3_f32 v4, v24, v25, v26
        v_max3_f32 v5, v27, v28, v29
        v_max3_f32 v4, v4, v30, v31
        v_max_f32 v4, v4, v5
        v_ceil_f32 v4, v4
        v_add_f32 v32, v32, v33
        v_add_f32 v34, v34, v35
        v_add_f32 v36, v36, v37
        v_add_f32 v38, v38, v39
        v_add_f32 v32, v32, v34
        v_add_f32 v36, v36, v38
        v_add_f32 v5, v32, v36
        s_mov_b32 exec_lo, 0xffff
        s_mov_b32 exec_hi, 0
        global_store_dwordx2 v6, v[4:5], s[26:27] sc1
        ''' % (L_MX, L_MX + 16, L_LS, L_LS + 16, WS_ML))
        self.stamp(6)
        a.branch('s_branch L_end')

    def role_final(self):
        a = self.a
        WV, WO = 24, 72
        CS = 120
        QR = 128
        ZL = 132
        ACC = 188
        ONES = 196
        TM = 200
        a.emit('''
        v_mov_b32 v%d, -1
        v_mov_b32 v%d, -1
        v_mov_b32 v%d, -1
        v_mov_b32 v%d, -1
        s_mul_i32 s33, s30, 86016
        s_add_u32 s33, s33, %d
        v_lshl_add_u32 v4, v0, 4, s33
        ''' % (TM, TM + 1, TM + 2, TM + 3, WS_Z))
        for i in range(10):
            a.emit('global_store_dwordx4 v4, %s, s[26:27] sc1' % vr(TM, 4))
            a.emit('v_add_u32 v4, 8192, v4')
        a.emit('''
        s_mul_i32 s33, s30, 1792
        s_add_u32 s33, s33, %d
        v_lshl_add_u32 v5, v0, 4, s33
        v_cmp_gt_u32 vcc, 256, v0
        v_cndmask_b32 v4, v5, v4, vcc
        v_cmp_gt_u32 vcc, 368, v0
        s_and_saveexec_b64 s[40:41], vcc
        ''' % (WS_ML - 4096))
        lsk = self.lab('initsk')
        a.branch('s_cbranch_execz %s' % lsk)
        a.emit('global_store_dwordx4 v4, %s, s[26:27] sc1' % vr(TM, 4))
        a.label(lsk)
        a.emit('s_mov_b64 exec, -1')
        a.emit('s_waitcnt vmcnt(0)')
        a.emit('s_barrier')
        lnf = self.lab('noflag')
        a.branch('s_cmp_lg_u32 s28, 0')
        a.branch('s_cbranch_scc1 %s' % lnf)
        a.emit('''
        s_and_b32 s33, s30, 1
        s_lshl_b32 s33, s33, 7
        s_lshr_b32 s34, s30, 1
        s_add_u32 s33, s33, s34
        s_add_u32 s33, s33, 64
        ''')
        self.flag_store(33, 5)
        a.label(lnf)
        self.stamp(1)
        a.emit('''
        v_mov_b32 v%d, 0x3f803f80
        v_mov_b32 v%d, 0x3f803f80
        v_mov_b32 v%d, 0x3f803f80
        v_mov_b32 v%d, 0x3f803f80
        s_mul_i32 s33, s28, 9216
        v_lshl_add_u32 v4, v1, 4, s33
        s_add_u32 s34, s33, %d
        s_add_u32 s35, s33, %d
        ''' % (ONES, ONES + 1, ONES + 2, ONES + 3, LF_WV, LF_WO))
        for (sp, sl) in ((18, 34), (20, 35)):
            for i in range(9):
                a.emit('s_add_u32 m0, s%d, %d' % (sl, i * 1024))
                if i % 4 == 0 and i: a.emit('v_add_u32 v5, %d, v4' % (i * 1024))
                a.emit('v_add_u32 v5, %d, v4' % (i * 1024))
                a.emit('global_load_lds_dwordx4 v5, s[%d:%d]' % (sp, sp + 1))
        a.emit('''
        s_mul_i32 s33, s30, 384
        s_lshl_b32 s34, s28, 6
        s_add_u32 s33, s33, s34
        v_lshl_add_u32 v4, v3, 3, s33
        v_min_u32 v4, 6104, v4
        global_load_dwordx2 %s, v4, s[8:9]
        global_load_dwordx2 %s, v4, s[8:9] offset:32
        s_waitcnt vmcnt(0)
        s_barrier
        ''' % (vr(QR, 2), vr(QR + 2, 2)))
        lnw = self.lab('fin_now')
        a.branch('s_cmp_ge_u32 s28, 6')
        a.branch('s_cbranch_scc1 %s' % lnw)
        a.emit('''
        v_bfe_u32 v6, v1, 2, 2
        v_lshl_add_u32 v6, v3, 3, v6
        v_mul_u32_u24 v6, 384, v6
        v_and_b32 v7, 3, v1
        v_lshl_add_u32 v6, v7, 3, v6
        s_lshl_b32 s33, s28, 6
        s_add_u32 s34, s33, %d
        v_add_u32 v7, s34, v6
        s_add_u32 s34, s33, %d
        v_add_u32 v8, s34, v6
        ''' % (LF_WV, LF_WO))
        for (vb, dst) in ((7, WV), (8, WO)):
            for d in range(2):
                for ks in range(6):
                    for h in range(2):
                        a.emit('ds_read_b64_tr_b16 %s, v%d offset:%d' % (vr(dst + (d * 6 + ks) * 4 + 2 * h, 2), vb, ks * 12288 + h * 1536 + d * 32))
        a.emit('s_waitcnt lgkmcnt(0)')
        for ks in range(6):
            for d in range(2):
                a.emit('%s %s, %s, %s, %s' % (MF, vr(CS + 4 * d, 4), vr(WV + (d * 6 + ks) * 4, 4), vr(ONES, 4), '0' if ks == 0 else vr(CS + 4 * d, 4)))
        a.label(lnw)
        self.stamp(2)
        a.emit('''
        s_mul_i32 s33, s28, 28
        v_min_u32 v4, 27, v1
        v_add_u32 v4, s33, v4
        v_lshlrev_b32 v4, 7, v4
        s_lshl_b32 s34, s30, 3
        s_add_u32 s34, s34, %d
        v_add_u32 v4, s34, v4
        s_mul_i32 s34, s30, 224
        s_add_u32 s34, s34, s33
        s_mul_i32 s34, s34, 384
        s_add_u32 s34, s34, %d
        v_min_u32 v5, 47, v1
        v_lshlrev_b32 v5, 4, v5
        v_add_u32 v5, s34, v5
        v_add_u32 v6, 3840, v5
        v_add_u32 v7, 7680, v5
        s_mov_b32 s42, 0
        ''' % (WS_ML, WS_Z))
        lp, ld = self.lab('poll'), self.lab('polld')
        a.label(lp)
        a.emit('''
        global_load_dwordx2 %s, v4, s[26:27] sc1
        s_add_u32 s42, s42, 1
        s_waitcnt vmcnt(0)
        v_max_u32 v8, v%d, v%d
        v_cmp_eq_u32 vcc, -1, v8
        ''' % (vr(TM, 2), TM, TM + 1))
        a.branch('s_cbranch_vccz %s' % ld)
        a.emit('s_sleep %d' % self.opt.get('fsleep', 1))
        a.emit('s_cmp_lt_u32 s42, 0x40000')
        a.branch('s_cbranch_scc1 %s' % lp)
        a.label(ld)
        self.stamp(3)
        def zload(i):
            a.emit('global_load_dwordx4 %s, v%d, s[26:27] offset:%d sc1' % (vr(ZL + 4 * i, 4), 5 + i // 5, (i % 5) * 768))
        for i in range(14): zload(i)
        M, L = TM, TM + 1
        X = TM + 2
        a.emit('v_mov_b32 v%d, v%d' % (X, M))
        for sh in (1, 2, 4, 8):
            a.emit('v_max_f32_dpp v%d, v%d, v%d row_ror:%d row_mask:0xf bank_mask:0xf' % (X, X, X, sh))
        a.emit('v_mov_b32 v%d, v%d' % (X + 1, X))
        a.emit('v_permlane16_swap_b32 v%d, v%d' % (X, X + 1))
        a.emit('v_max_f32 v%d, v%d, v%d' % (X, X, X + 1))
        a.emit('v_mov_b32 v%d, v%d' % (X + 1, X))
        a.emit('v_permlane32_swap_b32 v%d, v%d' % (X, X + 1))
        a.emit('v_max_f32 v%d, v%d, v%d' % (X, X, X + 1))
        a.emit('''
        s_lshl_b32 s35, s28, 2
        v_mov_b32 v8, s35
        v_mov_b32 v9, 0
        ds_write_b32 v8, v%d offset:%d
        s_waitcnt lgkmcnt(0)
        s_barrier
        ds_read_b128 %s, v9 offset:%d
        ds_read_b128 %s, v9 offset:%d
        s_waitcnt lgkmcnt(0)
        v_max3_f32 v%d, v%d, v%d, v%d
        v_max3_f32 v%d, v%d, v%d, v%d
        v_max3_f32 v%d, v%d, v%d, v%d
        v_max_f32 v%d, v%d, v%d
        ''' % (X, LF_WM, vr(TM + 4, 4), LF_WM, vr(TM + 8, 4), LF_WM + 16,
               X, TM + 4, TM + 5, TM + 6, X + 1, TM + 7, TM + 8, TM + 9, X, X, TM + 10, TM + 11, X, X, X + 1))
        a.emit('v_sub_f32 v%d, v%d, v%d' % (M, M, X))
        a.emit('v_exp_f32 v%d, v%d' % (M, M))
        a.emit('v_mul_f32 v%d, v%d, v%d' % (L, L, M))
        a.emit('v_cmp_gt_u32 vcc, 28, v1')
        a.emit('v_cndmask_b32 v%d, 0, v%d, vcc' % (L, L))
        a.emit('''
        v_lshrrev_b32 v%d, 16, v%d
        s_lshl_b32 s34, s28, 7
        s_add_u32 s34, s34, %d
        v_lshl_add_u32 v9, v1, 2, s34
        s_mov_b32 exec_hi, 0
        ds_write_b32 v9, v%d
        s_mov_b32 exec_hi, -1
        v_cmp_lt_u32 vcc, 23, v1
        v_cndmask_b32 v9, 0, 4, vcc
        v_add_u32 v9, s34, v9
        ''' % (M, M, LF_SCT, M))
        for sh in (1, 2, 4, 8):
            a.emit('v_add_f32_dpp v%d, v%d, v%d row_ror:%d row_mask:0xf bank_mask:0xf' % (L, L, L, sh))
        a.emit('v_mov_b32 v%d, v%d' % (X + 1, L))
        a.emit('v_permlane16_swap_b32 v%d, v%d' % (L, X + 1))
        a.emit('v_add_f32 v%d, v%d, v%d' % (L, L, X + 1))
        a.emit('s_waitcnt lgkmcnt(0)')
        SCL = TM + 4
        for i in range(14):
            a.emit('ds_read_b32 v%d, v9 offset:%d' % (SCL + i, i * 8))
        a.emit('''
        s_mov_b64 exec, 1
        ds_write_b32 v8, v%d offset:%d
        s_mov_b64 exec, -1
        ''' % (L, LF_WL))
        HI = TM + 20
        UM = TM + 22
        lredo, lok = self.lab('redo'), self.lab('zok')
        a.label(lredo)
        for i in range(8):
            a.emit('v_mov_b32 v%d, 0' % (ACC + i))
        a.emit('v_mov_b32 v%d, 0' % UM)
        a.emit('s_waitcnt lgkmcnt(0)')
        for i in range(14):
            a.emit('v_lshlrev_b32 v%d, 16, v%d' % (HI + (i & 1), SCL + i))
            a.emit('s_waitcnt vmcnt(%d)' % (13 - i))
            a.emit('v_max3_u32 v%d, v%d, v%d, v%d' % (UM, UM, ZL + 4 * i, ZL + 4 * i + 1))
            for j in range(4):
                a.emit('v_dot2c_f32_bf16 v%d, v%d, v%d' % (ACC + 2 * j, ZL + 4 * i + j, SCL + i))
                a.emit('v_dot2c_f32_bf16 v%d, v%d, v%d' % (ACC + 2 * j + 1, ZL + 4 * i + j, HI + (i & 1)))
            a.emit('v_max3_u32 v%d, v%d, v%d, v%d' % (UM, UM, ZL + 4 * i + 2, ZL + 4 * i + 3))
        a.emit('v_cmp_eq_u32 vcc, -1, v%d' % UM)
        a.branch('s_cbranch_vccz %s' % lok)
        a.emit('s_add_u32 s42, s42, 1')
        a.emit('s_cmp_ge_u32 s42, 0x40000')
        a.branch('s_cbranch_scc1 %s' % lok)
        for i in range(14): zload(i)
        a.branch('s_branch %s' % lredo)
        a.label(lok)
        a.emit('''
        v_cvt_pk_bf16_f32 v%d, v%d, v%d
        v_cvt_pk_bf16_f32 v%d, v%d, v%d
        v_cvt_pk_bf16_f32 v%d, v%d, v%d
        v_cvt_pk_bf16_f32 v%d, v%d, v%d
        v_cmp_lt_u32 vcc, 23, v1
        v_cndmask_b32 v8, 0, 16, vcc
        v_lshl_add_u32 v8, v1, 4, v8
        s_mul_i32 s34, s28, 800
        v_add_u32 v8, s34, v8
        s_mov_b32 exec_hi, 0xffff
        ds_write_b128 v8, %s offset:%d
        s_mov_b32 exec_hi, -1
        s_waitcnt lgkmcnt(0)
        s_barrier
        ''' % (TM + 4, ACC, ACC + 1, TM + 5, ACC + 2, ACC + 3, TM + 6, ACC + 4, ACC + 5, TM + 7, ACC + 6, ACC + 7,
               vr(TM + 4, 4), LF_ZC))
        self.stamp(4)
        a.branch('s_cmp_ge_u32 s28, 6')
        a.branch('s_cbranch_scc1 L_end')
        ZB = ZL
        WL = ZL + 24
        a.emit('''
        v_mul_u32_u24 v6, 400, v2
        v_lshl_add_u32 v6, v3, 4, v6
        v_mov_b32 v7, 0
        ''')
        for ks in range(6):
            a.emit('ds_read_b128 %s, v6 offset:%d' % (vr(ZB + 4 * ks, 4), LF_ZC + ks * 64))
        a.emit('ds_read_b128 %s, v7 offset:%d' % (vr(WL, 4), LF_WL))
        a.emit('ds_read_b128 %s, v7 offset:%d' % (vr(WL + 4, 4), LF_WL + 16))
        DA = TM + 24
        ZS = TM + 32
        for ks in range(6):
            c = lambda r: '0' if ks == 0 else vr(r, 4)
            a.emit('s_waitcnt lgkmcnt(%d)' % (7 - ks))
            a.emit('%s %s, %s, %s, %s' % (MF, vr(ZS, 4), vr(ONES, 4), vr(ZB + 4 * ks, 4), c(ZS)))
            for d in range(2):
                a.emit('%s %s, %s, %s, %s' % (MF, vr(DA + 4 * d, 4), vr(WV + (d * 6 + ks) * 4, 4), vr(ZB + 4 * ks, 4), c(DA + 4 * d)))
        a.emit('s_waitcnt lgkmcnt(0)')
        a.emit('''
        v_add_f32 v%d, v%d, v%d
        v_add_f32 v%d, v%d, v%d
        v_add_f32 v%d, v%d, v%d
        v_add_f32 v%d, v%d, v%d
        v_add_f32 v%d, v%d, v%d
        v_add_f32 v%d, v%d, v%d
        v_add_f32 v%d, v%d, v%d
        v_rcp_f32 v%d, v%d
        ''' % (WL, WL, WL + 1, WL + 2, WL + 2, WL + 3, WL + 4, WL + 4, WL + 5, WL + 6, WL + 6, WL + 7,
               WL, WL, WL + 2, WL + 4, WL + 4, WL + 6, WL, WL, WL + 4, WL, WL))
        a.emit('v_mul_f32 v%d, %s, v%d' % (ZS, f32bits(1.0 / 192), ZS))
        for d in range(2):
            for r in range(4):
                x = DA + 4 * d + r
                a.emit('v_fma_f32 v%d, -v%d, v%d, v%d' % (x, ZS, CS + 4 * d + r, x))
        for d in range(2):
            for r in range(4):
                x = DA + 4 * d + r
                a.emit('v_mul_f32 v%d, v%d, v%d' % (x, x, WL))
        C = TM + 2
        a.emit('''
        v_cvt_pk_bf16_f32 v%d, v%d, v%d
        v_cvt_pk_bf16_f32 v%d, v%d, v%d
        v_cvt_pk_bf16_f32 v%d, v%d, v%d
        v_cvt_pk_bf16_f32 v%d, v%d, v%d
        s_lshl_b32 s34, s28, 6
        v_mul_u32_u24 v7, 400, v2
        v_lshl_add_u32 v7, v3, 3, v7
        v_add_u32 v7, s34, v7
        ds_write_b64 v7, %s offset:%d
        ds_write_b64 v7, %s offset:%d
        s_waitcnt lgkmcnt(0)
        s_barrier
        ''' % (C, DA, DA + 1, C + 1, DA + 2, DA + 3, C + 2, DA + 4, DA + 5, C + 3, DA + 6, DA + 7,
               vr(C, 2), LF_CX, vr(C + 2, 2), LF_CX + 32))
        for ks in range(6):
            a.emit('ds_read_b128 %s, v6 offset:%d' % (vr(ZB + 4 * ks, 4), LF_CX + ks * 64))
        for ks in range(6):
            a.emit('s_waitcnt lgkmcnt(%d)' % (5 - ks))
            for d in range(2):
                a.emit('%s %s, %s, %s, %s' % (MF, vr(DA + 4 * d, 4), vr(WO + (d * 6 + ks) * 4, 4), vr(ZB + 4 * ks, 4), '0' if ks == 0 else vr(DA + 4 * d, 4)))
        for sh in (1, 2, 4, 8):
            for x in range(8):
                a.emit('v_add_f32_dpp v%d, v%d, v%d row_ror:%d row_mask:0xf bank_mask:0xf' % (DA + x, DA + x, DA + x, sh))
        a.emit('''
        v_cvt_pk_bf16_f32 v%d, v%d, v%d
        v_cvt_pk_bf16_f32 v%d, v%d, v%d
        v_cvt_pk_bf16_f32 v%d, v%d, v%d
        v_cvt_pk_bf16_f32 v%d, v%d, v%d
        ''' % (C, DA, DA + 1, C + 1, DA + 2, DA + 3, C + 2, DA + 4, DA + 5, C + 3, DA + 6, DA + 7))
        for i in range(4):
            t0 = DA + 4 * (i & 1)
            a.emit('''
            v_lshlrev_b32 v%d, 16, v%d
            v_and_b32 v%d, 0xffff0000, v%d
            v_lshlrev_b32 v%d, 16, v%d
            v_and_b32 v%d, 0xffff0000, v%d
            v_add_f32 v%d, v%d, v%d
            v_add_f32 v%d, v%d, v%d
            v_cvt_pk_bf16_f32 v%d, v%d, v%d
            ''' % (t0, C + i, t0 + 1, C + i, t0 + 2, QR + i, t0 + 3, QR + i,
                   t0, t0, t0 + 2, t0 + 1, t0 + 1, t0 + 3, C + i, t0, t0 + 1))
        a.emit('''
        s_mul_i32 s33, s30, 384
        s_lshl_b32 s34, s28, 6
        s_add_u32 s33, s33, s34
        v_lshl_add_u32 v4, v3, 3, s33
        s_mov_b32 exec_lo, 0x00010001
        s_mov_b32 exec_hi, 0x00010001
        global_store_dwordx2 v4, %s, s[22:23]
        global_store_dwordx2 v4, %s, s[22:23] offset:32
        ''' % (vr(C, 2), vr(C + 2, 2)))
        self.stamp(5)
        a.branch('s_branch L_end')


HEADER = open('standalone__detection_seg_dino__vision.s.ref').read().split('; Override')[0]

def kd(name, vgpr=256, sgpr=102):
    return '''.amdhsa_kernel %s
  .amdhsa_next_free_vgpr %d
  .amdhsa_next_free_sgpr %d
  .amdhsa_accum_offset %d
  .amdhsa_group_segment_fixed_size 0
  .amdhsa_kernarg_size 80
  .amdhsa_user_sgpr_count 2
  .amdhsa_user_sgpr_kernarg_segment_ptr 1
  .amdhsa_system_sgpr_workgroup_id_x 1
.end_amdhsa_kernel
''' % (name, vgpr, sgpr, (vgpr + 3) // 4 * 4)

def build(stamps=False, opt=None):
    out = HEADER
    out += '; @launch grid=(256,1,1) block=(512,1,1) lds=%d\n' % LDS_TOTAL
    out += '.amdgcn_target "amdgcn-amd-amdhsa--gfx950"\n.text\n'
    G = Gen(stamps, opt)
    a = G.a
    n = KNAME
    a.raw('.globl %s\n.p2align 8\n.type %s,@function\n%s:' % (n, n, n))
    a.branch('s_cmp_ge_u32 s2, 256')
    a.branch('s_cbranch_scc1 L_exit')
    G.stamp_init()
    G.prologue()
    G.stamp(0)
    a.branch('s_cmp_ge_u32 s2, 32')
    a.branch('s_cbranch_scc1 L_role_main')
    a.branch('s_cmp_ge_u32 s2, 16')
    a.branch('s_cbranch_scc1 L_role_final')
    a.branch('s_cmp_ge_u32 s2, 12')
    a.branch('s_cbranch_scc1 L_end')
    a.emit('s_mov_b32 s30, s2')
    G.role_qk()
    a.label('L_role_final')
    a.emit('s_sub_u32 s30, s2, 16')
    G.role_final()
    a.label('L_role_main')
    a.emit('s_sub_u32 s30, s2, 32')
    G.role_main()
    a.label('L_end')
    G.stamp_flush()
    a.label('L_exit')
    a.emit('s_endpgm')
    out += a.text()
    out += '.section .rodata,"a"\n.p2align 6\n' + kd(n)
    return out

if __name__ == '__main__':
    ap = argparse.ArgumentParser()
    ap.add_argument('--stamps', action='store_true')
    ap.add_argument('--opt', default='')
    ap.add_argument('-o', default='standalone__detection_seg_dino__vision.s')
    args = ap.parse_args()
    OPT = {}
    for kv in args.opt.split(','):
        if kv:
            k, v = kv.split('='); OPT[k] = int(v)
    s = build(args.stamps, OPT)
    open(args.o, 'w').write(s)
    print('wrote', args.o, len(s), 'bytes')
```

```python
import sys, argparse, struct
from asmdsl import Asm

KNAME = 'standalone__detection_seg_dino__vision_kernel'

WS_QK = 0
WS_ML = 32768
WS_Z = 65536
NMAIN = 224

XREG = 15392
L_QK = 0
L_WF = L_QK + 6144
L_WC = L_WF + 7168
L_SQ = L_WC + 2048
L_MX = 15424
L_LS = L_MX + 512
L_CO = L_LS + 512
L_X = 17152
LQ_QN = 0
LQ_RED = 6144
LQ_W = 18432
LF_ZC = 0
LF_CX = 6400
LF_SCT = 12800
LF_WM = LF_SCT + 1024
LF_WL = LF_WM + 32
LF_WV = 14336
LF_WO = LF_WV + 73728
LDS_TOTAL = LF_WO + 73728

QSCALE = (192.0 ** -0.5) * 1.4426950408889634

def f32bits(x):
    return '0x%08x' % struct.unpack('<I', struct.pack('<f', x))[0]

def vr(a, n):
    return 'v[%d:%d]' % (a, a + n - 1)

MF = 'v_mfma_f32_16x16x32_bf16'

class Gen:
    def __init__(self, stamps=False, opt=None):
        self.a = Asm()
        self.stamps = stamps
        self.opt = opt or {}
        self.uid = 0

    def lab(self, base):
        self.uid += 1
        return 'L_%s_%d' % (base, self.uid)

    def prologue(self):
        self.a.emit('''
        s_load_dwordx16 s[8:23], s[0:1], 0
        s_load_dwordx4 s[24:27], s[0:1], 64
        v_and_b32 v1, 63, v0
        v_lshrrev_b32 v4, 6, v0
        v_and_b32 v2, 15, v1
        v_readfirstlane_b32 s28, v4
        v_lshrrev_b32 v3, 4, v1
        s_waitcnt lgkmcnt(0)
        ''')

    def stamp(self, idx):
        if not self.stamps: return
        self.a.emit('s_memrealtime s[%d:%d]' % (60 + 2 * idx, 61 + 2 * idx))
        self.a.emit('s_waitcnt lgkmcnt(0)')

    def stamp_init(self):
        if not self.stamps: return
        for i in range(24):
            self.a.emit('s_mov_b32 s%d, 0' % (60 + i))

    def stamp_flush(self):
        if not self.stamps: return
        a = self.a
        a.emit('''
        s_lshl_b32 s92, s2, 3
        s_add_u32 s92, s92, s28
        s_lshl_b32 s92, s92, 7
        s_add_u32 s92, s92, %d
        v_mov_b32 v250, s92
        s_mov_b64 exec, 1
        ''' % 0x1000000)
        for i in range(12):
            a.emit('v_mov_b32 v252, s%d' % (60 + 2 * i))
            a.emit('v_mov_b32 v253, s%d' % (61 + 2 * i))
            a.emit('global_store_dwordx2 v250, v[252:253], s[26:27] offset:%d' % (i * 8))
            a.emit('s_nop 1')

    def setexec(self, mask):
        a = self.a
        lo, hi = mask & 0xffffffff, mask >> 32
        if mask == (1 << 64) - 1:
            a.emit('s_mov_b64 exec, -1')
        else:
            a.emit('s_mov_b32 exec_lo, 0x%x' % lo)
            a.emit('s_mov_b32 exec_hi, 0x%x' % hi)

    def flag_store(self, byte_sreg, vt):
        a = self.a
        self.setexec(1)
        a.emit('''
        v_mov_b32 v%d, 1
        v_mov_b32 v%d, s%d
        global_store_byte v%d, v%d, s[24:25] sc1
        ''' % (vt, vt + 1, byte_sreg, vt + 1, vt))
        self.setexec((1 << 64) - 1)

    def role_qk(self):
        a = self.a
        VQ = 8
        VWK = 32
        VWQ = 40
        VQN = 64
        T = 88
        a.emit('''
        s_mul_i32 s32, s30, 86
        s_lshr_b32 s32, s32, 8
        s_mul_i32 s31, s32, 3
        s_sub_u32 s31, s30, s31
        ''')
        a.emit('''
        v_mul_u32_u24 v4, 384, v2
        v_lshl_add_u32 v4, v3, 4, v4
        ''')
        for ks in range(6):
            a.emit('global_load_dwordx4 %s, v4, s[8:9] offset:%d' % (vr(VQ + 4 * ks, 4), ks * 64))
        a.emit('''
        v_lshrrev_b32 v5, 3, v1
        v_mul_u32_u24 v5, 384, v5
        v_and_b32 v6, 7, v1
        v_bfe_u32 v7, v1, 4, 1
        v_lshlrev_b32 v7, 1, v7
        v_xor_b32 v6, v6, v7
        s_lshl_b32 s33, s31, 7
        s_mul_i32 s34, s28, 9216
        s_add_u32 s33, s33, s34
        v_add_u32 v5, s33, v5
        v_lshl_add_u32 v7, v6, 4, v5
        v_xor_b32 v6, 4, v6
        v_lshl_add_u32 v6, v6, 4, v5
        s_mul_i32 s34, s28, 3072
        s_add_u32 s34, s34, %d
        s_and_b32 s35, s28, 1
        ''' % LQ_W)
        a.emit('''
        s_cmp_eq_u32 s35, 1
        s_cselect_b64 vcc, -1, 0
        v_cndmask_b32 v5, v7, v6, vcc
        v_cndmask_b32 v6, v6, v7, vcc
        ''')
        for k in range(3):
            a.emit('s_add_u32 m0, s34, %d' % (k * 1024))
            src = 5 if k % 2 == 0 else 6
            if k:
                a.emit('v_add_u32 v%d, %d, v%d' % (src, k * 3072, src))
            a.emit('global_load_lds_dwordx4 v%d, s[14:15]' % src)
        a.emit('''
        s_mul_i32 s33, s32, 48
        v_add_u32 v4, s33, v2
        v_mul_u32_u24 v4, 384, v4
        v_lshl_add_u32 v4, v3, 3, v4
        s_lshl_b32 s33, s31, 7
        s_and_b32 s35, s28, 3
        s_lshl_b32 s35, s35, 5
        s_add_u32 s33, s33, s35
        v_add_u32 v4, s33, v4
        global_load_dwordx2 %s, v4, s[16:17]
        v_add_u32 v4, 6144, v4
        global_load_dwordx2 %s, v4, s[16:17]
        v_add_u32 v4, 6144, v4
        global_load_dwordx2 %s, v4, s[16:17]
        ''' % (vr(VWK, 2), vr(VWK + 2, 2), vr(VWK + 4, 2)))
        a.emit('''
        v_mov_b32 v%d, 0x3f803f80
        v_mov_b32 v%d, 1.0
        v_mov_b32 v%d, 0
        v_mov_b32 v%d, 0
        v_mov_b32 v%d, 0
        v_mov_b32 v%d, 0
        s_waitcnt vmcnt(6)
        ''' % (T, T + 1, T + 2, T + 3, T + 12, T + 13))
        for i in range(0, 24, 2):
            a.emit('v_dot2c_f32_bf16 v%d, v%d, v%d' % (T + 2, VQ + i, T))
            a.emit('v_dot2c_f32_bf16 v%d, v%d, v%d' % (T + 3, VQ + i, VQ + i))
            a.emit('v_dot2c_f32_bf16 v%d, v%d, v%d' % (T + 12, VQ + i + 1, T))
            a.emit('v_dot2c_f32_bf16 v%d, v%d, v%d' % (T + 13, VQ + i + 1, VQ + i + 1))
        a.emit('v_add_f32 v%d, v%d, v%d' % (T + 2, T + 2, T + 12))
        a.emit('v_add_f32 v%d, v%d, v%d' % (T + 3, T + 3, T + 13))
        a.emit('v_mfma_f32_16x16x4_f32 %s, v%d, v%d, 0' % (vr(T + 4, 4), T + 1, T + 2))
        a.emit('v_mfma_f32_16x16x4_f32 %s, v%d, v%d, 0' % (vr(T + 8, 4), T + 1, T + 3))
        MEAN, SSQ = T + 4, T + 8
        a.emit('''
        s_mov_b32 s36, %s
        v_mul_f32 v%d, s36, v%d
        v_mul_f32 v%d, s36, v%d
        ''' % (f32bits(1.0 / 192), MEAN, MEAN, SSQ, SSQ))
        a.emit('v_fma_f32 v%d, -v%d, v%d, v%d' % (SSQ, MEAN, MEAN, SSQ))
        a.emit('v_max_f32 v%d, 0, v%d' % (SSQ, SSQ))
        a.emit('v_cvt_pk_bf16_f32 v%d, v%d, v%d' % (T + 12, MEAN, SSQ))
        a.emit('v_lshlrev_b32 v%d, 16, v%d' % (MEAN, T + 12))
        a.emit('v_and_b32 v%d, 0xffff0000, v%d' % (SSQ, T + 12))
        a.emit('v_add_f32 v%d, %s, v%d' % (SSQ, f32bits(1e-5), SSQ))
        a.emit('v_cvt_pk_bf16_f32 v%d, v%d, v%d' % (T + 12, SSQ, SSQ))
        a.emit('v_lshlrev_b32 v%d, 16, v%d' % (SSQ, T + 12))
        a.emit('v_sqrt_f32 v%d, v%d' % (SSQ, SSQ))
        a.emit('v_cvt_pk_bf16_f32 v%d, v%d, v%d' % (T + 12, SSQ, SSQ))
        a.emit('v_lshlrev_b32 v%d, 16, v%d' % (SSQ, T + 12))
        a.emit('v_rcp_f32 v%d, v%d' % (SSQ, SSQ))
        labs = [self.lab('qkn') for _ in range(7)]
        a.branch('s_cmp_ge_u32 s28, 6')
        a.branch('s_cbranch_scc1 %s' % labs[6])
        for t in range(6):
            if t < 5:
                a.branch('s_cmp_lg_u32 s28, %d' % t)
                a.branch('s_cbranch_scc1 %s' % labs[t])
            for j in range(4):
                src = VQ + 4 * t + j
                x, y, z = T + 16 + 3 * j, T + 17 + 3 * j, T + 18 + 3 * j
                a.emit('v_lshlrev_b32 v%d, 16, v%d' % (x, src))
                a.emit('v_and_b32 v%d, 0xffff0000, v%d' % (y, src))
            for j in range(4):
                x, y, z = T + 16 + 3 * j, T + 17 + 3 * j, T + 18 + 3 * j
                a.emit('v_sub_f32 v%d, v%d, v%d' % (x, x, MEAN))
                a.emit('v_sub_f32 v%d, v%d, v%d' % (y, y, MEAN))
            for j in range(4):
                x, y, z = T + 16 + 3 * j, T + 17 + 3 * j, T + 18 + 3 * j
                a.emit('v_cvt_pk_bf16_f32 v%d, v%d, v%d' % (z, x, y))
            for j in range(4):
                x, y, z = T + 16 + 3 * j, T + 17 + 3 * j, T + 18 + 3 * j
                a.emit('v_lshlrev_b32 v%d, 16, v%d' % (x, z))
                a.emit('v_and_b32 v%d, 0xffff0000, v%d' % (y, z))
            for j in range(4):
                x, y, z = T + 16 + 3 * j, T + 17 + 3 * j, T + 18 + 3 * j
                a.emit('v_mul_f32 v%d, v%d, v%d' % (x, x, SSQ))
                a.emit('v_mul_f32 v%d, v%d, v%d' % (y, y, SSQ))
            for j in range(4):
                x, y, z = T + 16 + 3 * j, T + 17 + 3 * j, T + 18 + 3 * j
                a.emit('v_cvt_pk_bf16_f32 v%d, v%d, v%d' % (T + 28 + j, x, y))
            a.emit('''
            v_lshlrev_b32 v4, 4, v1
            ds_write_b128 v4, %s offset:%d
            ''' % (vr(T + 28, 4), LQ_QN + t * 1024))
            if t < 5:
                a.branch('s_branch %s' % labs[6])
                a.label(labs[t])
        a.label(labs[6])
        a.emit('''
        s_waitcnt vmcnt(0) lgkmcnt(0)
        s_barrier
        ''')
        self.stamp(1)
        a.branch('s_cmp_ge_u32 s28, 4')
        a.branch('s_cbranch_scc1 %s' % 'L_qk_b2')
        a.emit('v_lshlrev_b32 v4, 4, v1')
        for ks in range(6):
            a.emit('ds_read_b128 %s, v4 offset:%d' % (vr(VQN + 4 * ks, 4), LQ_QN + ks * 1024))
        a.emit('''
        v_bfe_u32 v5, v1, 2, 2
        v_lshl_add_u32 v6, v3, 3, v5
        v_lshlrev_b32 v6, 7, v6
        v_lshrrev_b32 v5, 1, v5
        v_and_b32 v7, 1, v3
        v_lshl_or_b32 v5, v7, 1, v5
        v_lshlrev_b32 v5, 1, v5
        v_bfe_u32 v7, v1, 1, 1
        s_lshl_b32 s33, s28, 1
        v_or_b32 v7, s33, v7
        v_xor_b32 v5, v5, v7
        v_lshl_add_u32 v6, v5, 4, v6
        v_and_b32 v7, 1, v1
        v_lshl_add_u32 v6, v7, 3, v6
        ''')
        for ks in range(6):
            for h in range(2):
                a.emit('ds_read_b64_tr_b16 %s, v6 offset:%d' % (vr(VWQ + 4 * ks + 2 * h, 2), LQ_W + ks * 4096 + h * 512))
        D1 = T + 32
        for ks in range(6):
            a.emit('s_waitcnt lgkmcnt(%d)' % (10 - 2 * ks))
            a.emit('%s %s, %s, %s, %s' % (MF, vr(D1, 4), vr(VWQ + 4 * ks, 4), vr(VQN + 4 * ks, 4), '0' if ks == 0 else vr(D1, 4)))
        P = T + 36
        a.emit('v_cvt_pk_bf16_f32 v%d, v%d, v%d' % (P, D1, D1 + 1))
        a.emit('v_cvt_pk_bf16_f32 v%d, v%d, v%d' % (P + 1, D1 + 2, D1 + 3))
        D2 = T + 40
        for tau in range(3):
            a.emit('v_mfma_f32_16x16x16_bf16 %s, %s, %s, 0' % (vr(D2 + 4 * tau, 4), vr(VWK + 2 * tau, 2), vr(P, 2)))
        a.emit('''
        s_mul_i32 s33, s28, 3072
        v_add_u32 v5, s33, v4
        ''')
        for tau in range(3):
            a.emit('ds_write_b128 v5, %s offset:%d' % (vr(D2 + 4 * tau, 4), LQ_RED + tau * 1024))
        a.emit('s_waitcnt lgkmcnt(0)')
        a.label('L_qk_b2')
        a.emit('s_barrier')
        a.branch('s_cmp_ge_u32 s28, 3')
        a.branch('s_cbranch_scc1 L_end')
        a.emit('''
        v_lshlrev_b32 v4, 4, v1
        s_lshl_b32 s33, s28, 10
        v_add_u32 v5, s33, v4
        ''')
        for d in range(4):
            a.emit('ds_read_b128 %s, v5 offset:%d' % (vr(VQ + 4 * d, 4), LQ_RED + d * 3072))
        a.emit('s_mov_b32 s36, %s' % f32bits(QSCALE))
        a.emit('''
        s_mul_i32 s33, s32, 3
        s_add_u32 s33, s33, s28
        s_lshr_b32 s34, s33, 1
        s_lshl_b32 s34, s34, 10
        s_and_b32 s33, s33, 1
        s_lshl_b32 s33, s33, 8
        s_add_u32 s34, s34, s33
        s_mul_i32 s33, s31, 6144
        s_add_u32 s34, s34, s33
        v_lshrrev_b32 v5, 1, v3
        v_lshlrev_b32 v5, 9, v5
        v_lshl_add_u32 v5, v2, 4, v5
        v_and_b32 v6, 1, v3
        v_lshl_add_u32 v5, v6, 3, v5
        v_add_u32 v5, s34, v5
        s_waitcnt lgkmcnt(0)
        ''')
        for r in range(4):
            a.emit('v_add_f32 v%d, v%d, v%d' % (VQ + r, VQ + r, VQ + 4 + r))
            a.emit('v_add_f32 v%d, v%d, v%d' % (VQ + 8 + r, VQ + 8 + r, VQ + 12 + r))
        for r in range(4):
            a.emit('v_add_f32 v%d, v%d, v%d' % (VQ + r, VQ + r, VQ + 8 + r))
        for r in range(4):
            a.emit('v_mul_f32 v%d, s36, v%d' % (VQ + r, VQ + r))
        a.emit('v_cvt_pk_bf16_f32 v%d, v%d, v%d' % (P, VQ, VQ + 1))
        a.emit('v_cvt_pk_bf16_f32 v%d, v%d, v%d' % (P + 1, VQ + 2, VQ + 3))
        a.emit('global_store_dwordx2 v5, %s, s[26:27] offset:%d sc1' % (vr(P, 2), WS_QK))
        a.emit('s_waitcnt vmcnt(0)')
        a.emit('s_barrier')
        a.branch('s_cmp_lg_u32 s28, 0')
        a.branch('s_cbranch_scc1 L_end')
        a.emit('''
        s_and_b32 s33, s30, 1
        s_lshl_b32 s33, s33, 7
        s_lshr_b32 s34, s30, 1
        s_add_u32 s33, s33, s34
        ''')
        self.flag_store(33, 5)
        self.stamp(3)
        a.branch('s_branch L_end')

    def role_main(self):
        a = self.a
        lh = self.lab('helper')
        a.branch('s_cmp_eq_u32 s28, 7')
        a.branch('s_cbranch_scc1 %s' % lh)
        NT = ' nt'
        F1, T0, T1, QK = 24, 48, 72, 96
        ONES = 20
        S1, S0, S0b = 120, 124, 128
        SS0, SS1 = 132, 136
        AC = 140
        RS = 148
        MR = 156
        L1, L0, L0b = 164, 168, 172
        TM = 176
        XQ = [120 + 4 * i for i in range(7)] + [200 + 4 * i for i in range(11)]
        win = self.opt.get('win', 99)
        a.emit('''
        s_lshr_b32 s31, s30, 1
        s_and_b32 s32, s30, 1
        s_mul_i32 s32, s32, 56
        s_lshl_b32 s33, s28, 3
        s_add_u32 s32, s32, s33
        s_mul_i32 s33, s31, 112
        s_add_u32 s33, s33, s32
        s_mul_i32 s33, s33, 384
        s_add_u32 s34, s12, s33
        s_addc_u32 s35, s13, 0
        s_mul_i32 s33, s31, 448
        s_lshl_b32 s32, s32, 1
        s_add_u32 s33, s33, s32
        s_mul_i32 s33, s33, 384
        s_add_u32 s36, s10, s33
        s_addc_u32 s37, s11, 0
        s_add_u32 s38, s36, 86016
        s_addc_u32 s39, s37, 0
        s_mul_i32 s43, s28, %d
        s_add_u32 s43, s43, %d
        s_movk_i32 s44, 2731
        ''' % (XREG, L_X))
        nissued = [0]
        def dma(txt):
            if nissued[0] >= win:
                a.emit('s_waitcnt vmcnt(%d)' % (win - 1))
            a.emit(txt); nissued[0] += 1
        for jj in range(3):
            u, p = TM + 4 * jj, TM + 4 * jj + 1
            a.emit('''
            v_add_u32 v%d, %d, v1
            v_mul_u32_u24 v%d, s44, v%d
            v_lshrrev_b32 v%d, 16, v%d
            v_mul_u32_u24 v%d, 24, v%d
            v_sub_u32 v%d, v%d, v%d
            v_bfe_u32 v%d, v%d, 1, 1
            v_bfe_u32 v%d, v%d, 2, 1
            v_lshl_add_u32 v%d, v%d, 2, v%d
            v_xor_b32 v%d, v%d, v%d
            v_mul_u32_u24 v%d, 384, v%d
            v_lshl_add_u32 v%d, v%d, 4, v%d
            s_add_u32 m0, s43, %d
            ''' % (u, 64 * jj, p, u, p, p, u + 2, p, u, u, u + 2,
                   u + 2, p, u + 3, p, u + 2, u + 2, u + 3, u + 2, u + 2, u, u + 3, p,
                   4 + jj, u + 2, u + 3, jj * 1024))
            dma('global_load_lds_dwordx4 v%d, s[34:35]%s' % (4 + jj, NT))
        for jj in range(3):
            u, p = TM + 4 * jj, TM + 4 * jj + 1
            a.emit('''
            v_bfe_u32 v%d, v%d, 1, 2
            v_lshlrev_b32 v%d, 1, v%d
            v_xor_b32 v%d, v%d, v%d
            v_lshl_add_u32 v%d, v%d, 4, v%d
            v_xor_b32 v%d, 16, v%d
            ''' % (u + 2, p, u + 2, u + 2, u + 2, u + 2, u, 7 + jj, u + 2, u + 3, 10 + jj, 7 + jj))
        for t, sp in ((0, 36), (1, 38)):
            for jj in range(3):
                a.emit('s_add_u32 m0, s43, %d' % (3072 + t * 6144 + jj * 1024))
                dma('global_load_lds_dwordx4 v%d, s[%d:%d]%s' % (7 + jj, sp, sp + 1, NT))
                dma('global_load_lds_dwordx4 v%d, s[%d:%d] offset:3072%s' % (10 + jj, sp, sp + 1, NT))
        self.stamp(1)
        a.emit('''
        v_and_b32 v%d, 1, v3
        v_lshlrev_b32 v%d, 1, v%d
        v_lshrrev_b32 v%d, 1, v3
        v_or_b32 v%d, v%d, v%d
        v_bfe_u32 v%d, v2, 1, 2
        v_lshlrev_b32 v%d, 1, v%d
        v_lshrrev_b32 v%d, 3, v2
        v_or_b32 v%d, v%d, v%d
        v_xor_b32 v%d, v%d, v%d
        v_mul_u32_u24 v%d, 384, v2
        v_add_u32 v%d, s43, v%d
        v_lshl_add_u32 v13, v%d, 4, v%d
        v_xor_b32 v%d, 4, v%d
        v_lshl_add_u32 v14, v%d, 4, v%d
        ''' % (TM, TM, TM, TM + 1, TM, TM, TM + 1,
               TM + 1, TM + 1, TM + 1, TM + 2, TM + 1, TM + 1, TM + 2,
               TM + 1, TM + 1, TM,
               TM + 3, TM + 3, TM + 3,
               TM + 1, TM + 3, TM + 1, TM + 1, TM + 1, TM + 3))
        a.emit('''
        v_bfe_u32 v%d, v2, 2, 1
        v_lshlrev_b32 v%d, 2, v%d
        v_lshrrev_b32 v%d, 3, v2
        v_or_b32 v%d, v%d, v%d
        v_xor_b32 v%d, v%d, v%d
        v_lshrrev_b32 v%d, 1, v2
        v_mul_u32_u24 v%d, 384, v%d
        v_add_u32 v%d, s43, v%d
        v_lshl_add_u32 v16, v%d, 4, v%d
        v_xor_b32 v%d, 4, v%d
        v_lshl_add_u32 v15, v%d, 4, v%d
        ''' % (TM + 1, TM + 1, TM + 1, TM + 2, TM + 1, TM + 1, TM + 2,
               TM + 1, TM + 1, TM,
               TM + 2, TM + 2, TM + 2, TM + 2, TM + 2,
               TM + 1, TM + 2, TM + 1, TM + 1, TM + 1, TM + 2))
        a.emit('''
        v_mov_b32 v17, 1.0
        v_lshlrev_b32 v18, 4, v1
        v_lshlrev_b32 v19, 5, v2
        v_mov_b32 v20, 0x3f803f80
        v_mov_b32 v21, 0x3f803f80
        v_mov_b32 v22, 0x3f803f80
        v_mov_b32 v23, 0x3f803f80
        ''')
        for i in range(8):
            a.emit('v_mov_b32 v%d, 0' % (AC + i))
        A0, A1, A2, A3 = 4, 5, 6, 7
        C0, C1, C2, C3, C4, C5 = 8, 9, 10, 11, 12, 188
        a.emit('''
        v_bfe_u32 v%d, v1, 2, 4
        v_bfe_u32 v%d, v%d, 1, 2
        v_lshlrev_b32 v%d, 1, v%d
        v_lshrrev_b32 v%d, 3, v%d
        v_or_b32 v%d, v%d, v%d
        v_bfe_u32 v%d, v1, 1, 1
        s_and_b32 s44, s28, 1
        s_lshl_b32 s44, s44, 2
        v_or_b32 v%d, s44, v%d
        v_xor_b32 v%d, v%d, v%d
        v_mul_u32_u24 v%d, 384, v%d
        v_and_b32 v%d, 1, v1
        v_lshl_add_u32 v%d, v%d, 3, v%d
        s_lshr_b32 s45, s28, 1
        s_lshl_b32 s45, s45, 7
        s_add_u32 s45, s45, %d
        v_add_u32 v%d, s45, v%d
        v_lshl_add_u32 v%d, v%d, 4, v%d
        v_xor_b32 v%d, 2, v%d
        v_lshl_add_u32 v%d, v%d, 4, v%d
        v_add_u32 v%d, %d, v%d
        v_add_u32 v%d, %d, v%d
        ''' % (TM,
               TM + 1, TM, TM + 1, TM + 1, TM + 2, TM, TM + 1, TM + 1, TM + 2,
               TM + 2,
               TM + 2, TM + 2,
               TM + 1, TM + 1, TM + 2,
               TM + 3, TM,
               TM + 4,
               TM + 3, TM + 4, TM + 3,
               L_X,
               TM + 3, TM + 3,
               A0, TM + 1, TM + 3,
               TM + 1, TM + 1,
               A1, TM + 1, TM + 3,
               A2, 4 * XREG, A0,
               A3, 4 * XREG, A1))
        a.emit('''
        v_and_b32 v%d, 1, v3
        v_lshlrev_b32 v%d, 2, v%d
        v_lshrrev_b32 v%d, 1, v3
        v_or_b32 v%d, v%d, v%d
        v_xor_b32 v%d, v%d, v%d
        v_bfe_u32 v%d, v1, 2, 1
        v_lshl_add_u32 v%d, v3, 1, v%d
        v_mul_u32_u24 v%d, 384, v%d
        v_lshl_add_u32 v%d, v%d, 3, v%d
        v_add_u32 v%d, s45, v%d
        v_bfe_u32 v%d, v1, 3, 1
        v_mul_u32_u24 v%d, %d, v%d
        v_add_u32 v%d, v%d, v%d
        v_lshl_add_u32 v%d, v%d, 4, v%d
        v_xor_b32 v%d, 2, v%d
        v_lshl_add_u32 v%d, v%d, 4, v%d
        v_add_u32 v%d, %d, v%d
        v_add_u32 v%d, %d, v%d
        v_lshl_add_u32 v%d, v%d, 4, v%d
        v_xor_b32 v%d, 2, v%d
        v_lshl_add_u32 v%d, v%d, 4, v%d
        v_add_u32 v%d, %d, v%d
        v_add_u32 v%d, %d, v%d
        ''' % (TM, TM, TM,
               TM + 1, TM, TM, TM + 1,
               TM, TM, TM + 2,
               TM + 1,
               TM + 1, TM + 1,
               TM + 1, TM + 1,
               TM + 1, TM + 4, TM + 1,
               TM + 1, TM + 1,
               TM + 3,
               TM + 3, XREG, TM + 3,
               TM + 3, TM + 3, TM + 1,
               C0, TM, TM + 3,
               TM, TM,
               C1, TM, TM + 3,
               C2, 4 * XREG, C0,
               C3, 4 * XREG, C1,
               C5, TM, TM + 1,
               TM, TM,
               C4, TM, TM + 1,
               C4, 6 * XREG, C4,
               C5, 6 * XREG, C5))

        def aread(dst, ve, vo, off):
            for ks in range(6):
                a.emit('ds_read_b128 %s, v%d offset:%d' % (vr(dst + 4 * ks, 4), ve if ks % 2 == 0 else vo, off + (ks >> 1) * 128))

        a.emit('s_mov_b32 s44, %s' % f32bits(1.0 / 192))
        a.emit('s_mov_b32 s45, %s' % f32bits(1e-5))
        def finalize(t, SD, SSD):
            for r in range(4):
                a.emit('v_mul_f32 v%d, s44, v%d' % (SD + r, SD + r))
            for r in range(4):
                a.emit('v_mul_f32 v%d, v%d, v%d' % (TM + r, SD + r, SD + r))
            for r in range(4):
                a.emit('v_fma_f32 v%d, v%d, s44, -v%d' % (SSD + r, SSD + r, TM + r))
            for r in range(4):
                a.emit('v_max_f32 v%d, 0, v%d' % (SSD + r, SSD + r))
            for r in range(4):
                a.emit('v_add_f32 v%d, s45, v%d' % (SSD + r, SSD + r))
            for r in range(4):
                a.emit('v_rsq_f32 v%d, v%d' % (RS + 4 * t + r, SSD + r))
            for r in range(4):
                a.emit('v_mul_f32 v%d, v%d, v%d' % (MR + 4 * t + r, SD + r, RS + 4 * t + r))

        a.emit('s_waitcnt vmcnt(12)')
        aread(F1, 16, 15, 0)
        for ks in range(6):
            a.emit('s_waitcnt lgkmcnt(%d)' % (5 - ks))
            a.emit('%s %s, %s, %s, %s' % (MF, vr(S1, 4), vr(F1 + 4 * ks, 4), vr(ONES, 4), '0' if ks == 0 else vr(S1, 4)))
            for j in range(4):
                r = F1 + 4 * ks + j
                a.emit('v_dot2c_f32_bf16 v%d, v%d, v%d' % (AC + (j & 1), r, r))
        a.emit('v_add_f32 v%d, v%d, v%d' % (AC, AC, AC + 1))
        for t, (TT, SD, SSD, wait) in enumerate(((T0, S0, SS0, 6), (T1, S0b, SS1, 0))):
            ac = AC + 2
            if t == 1:
                for i in range(4):
                    a.emit('v_mov_b32 v%d, 0' % (ac + i))
                finalize(0, S0, SS0)
            a.emit('s_waitcnt vmcnt(%d)' % wait)
            aread(TT, 13, 14, 3072 + t * 6144)
            for ks in range(6):
                a.emit('s_waitcnt lgkmcnt(%d)' % (5 - ks))
                a.emit('%s %s, %s, %s, %s' % (MF, vr(SD, 4), vr(TT + 4 * ks, 4), vr(ONES, 4), vr(S1, 4) if ks == 0 else vr(SD, 4)))
                for j in range(4):
                    r = TT + 4 * ks + j
                    a.emit('v_dot2c_f32_bf16 v%d, v%d, v%d' % (ac + (j & 1), r, r))
                    a.emit('v_dot2c_f32_bf16 v%d, v%d, v%d' % (ac + 2 + (j & 1), r, F1 + 4 * ks + j))
            a.emit('''
            v_add_f32 v%d, v%d, v%d
            v_add_f32 v%d, v%d, v%d
            v_add_f32 v%d, v%d, v%d
            v_fma_f32 v%d, 2.0, v%d, v%d
            v_mfma_f32_16x16x4_f32 %s, v%d, v17, 0
            ''' % (ac, ac, ac + 1, ac + 2, ac + 2, ac + 3, ac, ac, AC, ac, ac + 2, ac, vr(SSD, 4), ac))
        finalize(1, S0b, SS1)
        self.stamp(2)
        a.emit('s_barrier')
        self.stamp(3)
        for ks in range(6):
            a.emit('ds_read_b128 %s, v18 offset:%d' % (vr(QK + 4 * ks, 4), L_QK + ks * 1024))
        a.emit('v_lshlrev_b32 v%d, 2, v2' % (TM + 1))
        a.emit('ds_read_b32 v%d, v%d offset:%d' % (TM, TM + 1, L_SQ))
        for ks in range(6):
            a.emit('s_waitcnt lgkmcnt(%d)' % (6 - ks))
            a.emit('%s %s, %s, %s, %s' % (MF, vr(L1, 4), vr(F1 + 4 * ks, 4), vr(QK + 4 * ks, 4), '0' if ks == 0 else vr(L1, 4)))
        def xissue(k):
            if k < 7:
                for e in range(2):
                    base = (A0, A1)[e] if k < 4 else (A2, A3)[e]
                    uoff = (k if k < 4 else k - 4) * XREG
                    for tt in range(2):
                        a.emit('ds_read_b64_tr_b16 %s, v%d offset:%d' % (vr(XQ[k * 2 + e] + tt * 2, 2), base, uoff + 3072 + tt * 6144))
            else:
                aa = k - 7
                for e in range(2):
                    for hh in range(2):
                        if aa == 0:
                            base, off = (C0, C1)[e], hh * 2 * XREG
                        elif hh == 0:
                            base, off = (C2, C3)[e], 0
                        else:
                            base, off = (C4, C5)[e], 0
                        a.emit('ds_read_b64_tr_b16 %s, v%d offset:%d' % (vr(XQ[k * 2 + e] + hh * 2, 2), base, off))
        for ks in range(6):
            a.emit('%s %s, %s, %s, %s' % (MF, vr(L0, 4), vr(T0 + 4 * ks, 4), vr(QK + 4 * ks, 4), vr(L1, 4) if ks == 0 else vr(L0, 4)))
            a.emit('%s %s, %s, %s, %s' % (MF, vr(L0b, 4), vr(T1 + 4 * ks, 4), vr(QK + 4 * ks, 4), vr(L1, 4) if ks == 0 else vr(L0b, 4)))
            if ks == 0:
                a.emit('s_waitcnt lgkmcnt(0)')
                for e in range(8):
                    a.emit('v_mul_f32 v%d, v%d, v%d' % (TM + 4 + e, MR + e, TM))
                lsk = self.lab('skipx')
                a.branch('s_cmp_ge_u32 s28, 6')
                a.branch('s_cbranch_scc1 %s' % lsk)
                for k in range(9): xissue(k)
                a.label(lsk)
        for t, LD in enumerate((L0, L0b)):
            for r in range(4):
                a.emit('v_fma_f32 v%d, v%d, v%d, -v%d' % (LD + r, LD + r, RS + 4 * t + r, TM + 4 + 4 * t + r))
        a.emit('''
        v_max3_f32 v%d, v%d, v%d, v%d
        v_max3_f32 v%d, v%d, v%d, v%d
        v_max3_f32 v%d, v%d, v%d, v%d
        v_max_f32 v%d, v%d, v%d
        v_mov_b32 v%d, v%d
        v_permlane16_swap_b32 v%d, v%d
        v_max_f32 v%d, v%d, v%d
        v_mov_b32 v%d, v%d
        v_permlane32_swap_b32 v%d, v%d
        v_max_f32 v%d, v%d, v%d
        s_lshl_b32 s46, s28, 2
        v_add_u32 v%d, s46, v19
        ds_write_b32 v%d, v%d offset:%d
        s_waitcnt lgkmcnt(0)
        s_barrier
        ds_read_b128 %s, v19 offset:%d
        ds_read_b128 %s, v19 offset:%d
        s_waitcnt lgkmcnt(0)
        v_max3_f32 v%d, v%d, v%d, v%d
        v_max3_f32 v%d, v%d, v%d, v%d
        v_max3_f32 v%d, v%d, v%d, v%d
        v_max_f32 v%d, v%d, v%d
        v_ceil_f32 v%d, v%d
        ''' % (TM, L0, L0 + 1, L0 + 2,
               TM + 1, L0 + 3, L0b, L0b + 1,
               TM, TM, L0b + 2, L0b + 3,
               TM, TM, TM + 1,
               TM + 1, TM, TM, TM + 1, TM, TM, TM + 1,
               TM + 1, TM, TM, TM + 1, TM, TM, TM + 1,
               TM + 2,
               TM + 2, TM, L_MX,
               vr(TM + 4, 4), L_MX, vr(TM + 8, 4), L_MX + 16,
               TM, TM + 4, TM + 5, TM + 6,
               TM + 1, TM + 7, TM + 8, TM + 9,
               TM, TM, TM + 10, TM + 11,
               TM, TM, TM + 1,
               TM, TM))
        self.stamp(4)
        for LD in (L0, L0b):
            for r in range(4):
                a.emit('v_sub_f32 v%d, v%d, v%d' % (LD + r, LD + r, TM))
        for LD in (L0, L0b):
            for r in range(4):
                a.emit('v_exp_f32 v%d, v%d' % (LD + r, LD + r))
        P = [L0, L0 + 1, L0 + 2, L0 + 3, L0b, L0b + 1, L0b + 2, L0b + 3]
        W = TM + 4
        a.emit('v_add_f32 v%d, v%d, v%d' % (TM, P[0], P[1]))
        a.emit('v_add_f32 v%d, v%d, v%d' % (TM + 1, P[2], P[3]))
        a.emit('v_mul_f32 v%d, v%d, v%d' % (TM + 2, P[0], MR))
        a.emit('v_mul_f32 v%d, v%d, v%d' % (TM + 3, P[1], MR + 1))
        for e in range(4, 8, 2):
            a.emit('v_add_f32 v%d, v%d, v%d' % (TM, TM, P[e]))
            a.emit('v_add_f32 v%d, v%d, v%d' % (TM + 1, TM + 1, P[e + 1]))
        for e in range(2, 8, 2):
            a.emit('v_fmac_f32 v%d, v%d, v%d' % (TM + 2, P[e], MR + e))
            a.emit('v_fmac_f32 v%d, v%d, v%d' % (TM + 3, P[e + 1], MR + e + 1))
        for e in range(8):
            a.emit('v_mul_f32 v%d, v%d, v%d' % (P[e], P[e], RS + e))
        a.emit('v_add_f32 v%d, v%d, v%d' % (TM, TM, TM + 1))
        a.emit('v_add_f32 v%d, v%d, v%d' % (TM + 2, TM + 2, TM + 3))
        for i in range(4):
            a.emit('v_cvt_pk_bf16_f32 v%d, v%d, v%d' % (W + i, P[2 * i], P[2 * i + 1]))
        a.emit('v_mfma_f32_16x16x4_f32 %s, v17, v%d, 0' % (vr(QK, 4), TM))
        a.emit('v_mfma_f32_16x16x4_f32 %s, v17, v%d, 0' % (vr(QK + 4, 4), TM + 2))
        a.emit('''
        s_lshl_b32 s46, s28, 10
        v_add_u32 v%d, s46, v18
        ds_write_b128 v%d, %s offset:%d
        v_add_f32 v%d, v%d, v%d
        v_add_f32 v%d, v%d, v%d
        v_add_f32 v%d, v%d, v%d
        v_add_f32 v%d, v%d, v%d
        v_add_f32 v%d, v%d, v%d
        v_add_f32 v%d, v%d, v%d
        v_cvt_pk_bf16_f32 v%d, v%d, v%d
        s_lshr_b32 s46, s28, 2
        s_lshl_b32 s46, s46, 10
        s_and_b32 s47, s28, 3
        s_lshl_b32 s47, s47, 2
        s_add_u32 s46, s46, s47
        v_add_u32 v%d, s46, v18
        ds_write_b32 v%d, v%d offset:%d
        s_lshl_b32 s46, s28, 2
        v_add_u32 v%d, s46, v19
        ds_write_b32 v%d, v%d offset:%d
        ds_write_b32 v%d, v%d offset:%d
        s_waitcnt lgkmcnt(0)
        s_barrier
        ''' % (TM + 3, TM + 3, vr(W, 4), L_WF,
               TM + 8, P[0], P[1],
               TM + 9, P[4], P[5],
               TM + 10, P[2], P[3],
               TM + 11, P[6], P[7],
               TM + 8, TM + 8, TM + 9,
               TM + 10, TM + 10, TM + 11,
               TM + 8, TM + 8, TM + 10,
               TM + 3, TM + 3, TM + 8, L_WC,
               TM + 3,
               TM + 3, QK, L_LS,
               TM + 3, QK + 4, L_CO))
        self.stamp(5)
        a.branch('s_cmp_ge_u32 s28, 6')
        a.branch('s_cbranch_scc1 L_end')
        WB = 24
        ACC = 60
        CW = 68
        for k in range(9):
            a.emit('ds_read_b128 %s, v18 offset:%d' % (vr(WB + 4 * k, 4), (L_WF + k * 1024) if k < 7 else (L_WC + (k - 7) * 1024)))
        a.emit('ds_read_b128 %s, v19 offset:%d' % (vr(CW, 4), L_CO))
        a.emit('ds_read_b128 %s, v19 offset:%d' % (vr(CW + 4, 4), L_CO + 16))
        a.emit('''
        v_mul_u32_u24 v%d, %d, v2
        v_and_b32 v%d, 1, v3
        v_lshlrev_b32 v%d, 5, v%d
        v_lshrrev_b32 v%d, 1, v3
        v_lshl_add_u32 v%d, v%d, 4, v%d
        v_add_u32 v%d, v%d, v%d
        s_mul_i32 s46, s30, 384
        s_lshl_b32 s47, s28, 6
        s_add_u32 s46, s46, s47
        s_add_u32 s46, s46, %d
        v_add_u32 v%d, s46, v%d
        ''' % (TM, 224 * 384, TM + 1, TM + 1, TM + 1, TM + 2, TM + 1, TM + 2, TM + 1, TM, TM, TM + 1, WS_Z, TM, TM))
        for k in range(9):
            a.emit('s_waitcnt lgkmcnt(%d)' % (10 - k))
            for e in range(2):
                a.emit('%s %s, %s, %s, %s' % (MF, vr(ACC + 4 * e, 4), vr(XQ[k * 2 + e], 4), vr(WB + 4 * k, 4), '0' if k == 0 else vr(ACC + 4 * e, 4)))
        a.emit('s_waitcnt lgkmcnt(0)')
        a.emit('''
        v_add_f32 v%d, v%d, v%d
        v_add_f32 v%d, v%d, v%d
        v_add_f32 v%d, v%d, v%d
        v_add_f32 v%d, v%d, v%d
        v_add_f32 v%d, v%d, v%d
        v_add_f32 v%d, v%d, v%d
        v_add_f32 v%d, v%d, v%d
        ''' % (CW, CW, CW + 1, CW + 2, CW + 2, CW + 3, CW + 4, CW + 4, CW + 5, CW + 6, CW + 6, CW + 7,
               CW, CW, CW + 2, CW + 4, CW + 4, CW + 6, CW, CW, CW + 4))
        for e in range(2):
            for r in range(4):
                a.emit('v_sub_f32 v%d, v%d, v%d' % (ACC + 4 * e + r, ACC + 4 * e + r, CW))
        O = 76
        a.emit('''
        v_cvt_pk_bf16_f32 v%d, v%d, v%d
        v_cvt_pk_bf16_f32 v%d, v%d, v%d
        v_cvt_pk_bf16_f32 v%d, v%d, v%d
        v_cvt_pk_bf16_f32 v%d, v%d, v%d
        v_permlane16_swap_b32 v%d, v%d
        v_permlane16_swap_b32 v%d, v%d
        global_store_dwordx4 v%d, %s, s[26:27] sc1
        ''' % (O, ACC, ACC + 1, O + 1, ACC + 2, ACC + 3, O + 2, ACC + 4, ACC + 5, O + 3, ACC + 6, ACC + 7,
               O, O + 2, O + 1, O + 3, TM, vr(O, 4)))
        self.stamp(6)
        a.branch('s_branch L_end')

        a.label(lh)
        a.emit('''
        v_lshlrev_b32 v18, 4, v1
        v_lshlrev_b32 v19, 5, v2
        v_mov_b32 v4, 0
        v_mov_b32 v5, 0xff800000
        v_mov_b32 v17, 1.0
        v_mov_b32 v20, 0x3f803f80
        v_mov_b32 v21, 0x00003f80
        v_mov_b32 v22, 0x3f800000
        ds_write_b32 v18, v4 offset:%d
        ds_write_b32 v19, v5 offset:%d
        ds_write_b32 v19, v4 offset:%d
        ds_write_b32 v19, v4 offset:%d
        ''' % (L_WC + 1024 + 12, L_MX + 28, L_LS + 28, L_CO + 28))
        lp, ld = self.lab('poll'), self.lab('polld')
        a.emit('''
        v_and_b32 v6, 1, v1
        v_bfe_u32 v7, v1, 1, 1
        v_lshl_add_u32 v6, v7, 4, v6
        v_bfe_u32 v7, v1, 2, 1
        v_lshl_add_u32 v6, v7, 5, v6
        v_lshlrev_b32 v6, 2, v6
        v_and_b32 v7, 3, v1
        v_mov_b32 v8, 0x01010101
        v_mov_b32 v9, 0x00000101
        v_cmp_eq_u32 vcc, 1, v7
        v_cndmask_b32 v7, v8, v9, vcc
        s_mov_b32 exec_lo, 0xff
        s_mov_b32 exec_hi, 0
        s_mov_b32 s42, 0
        ''')
        a.label(lp)
        a.emit('''
        global_load_dword v8, v6, s[24:25] sc1
        s_add_u32 s42, s42, 1
        s_waitcnt vmcnt(0)
        v_cmp_ne_u32 vcc, v8, v7
        ''')
        a.branch('s_cbranch_vccz %s' % ld)
        a.emit('s_sleep %d' % self.opt.get('sleep', 2))
        a.emit('s_cmp_lt_u32 s42, 0x40000')
        a.branch('s_cbranch_scc1 %s' % lp)
        a.label(ld)
        a.emit('s_mov_b64 exec, -1')
        self.stamp(2)
        PB = 24
        a.emit('v_add_u32 v9, 6144, v18')
        a.emit('v_add_u32 v10, 12288, v18')
        a.emit('v_add_u32 v11, 4096, v18')
        a.emit('v_add_u32 v12, 4096, v9')
        a.emit('v_add_u32 v13, 4096, v10')
        for ks in range(6):
            for p in range(3):
                base = (18, 9, 10)[p] if ks < 4 else (11, 12, 13)[p]
                a.emit('global_load_dwordx4 %s, v%d, s[26:27] offset:%d sc1' % (vr(PB + (ks * 3 + p) * 4, 4), base, (ks % 4) * 1024))
        R = 96
        TL = 120
        a.emit('v_mov_b32 v14, 0')
        a.emit('v_mov_b32 v15, 0')
        for ks in range(6):
            a.emit('s_waitcnt vmcnt(%d)' % (15 - 3 * ks))
            tl = TL + (ks & 1) * 8
            for p in range(3):
                for j in range(4):
                    src = PB + (ks * 3 + p) * 4 + j
                    c = lambda x: '0' if p == 0 else 'v%d' % x
                    a.emit('v_dot2_f32_bf16 v%d, v%d, v21, %s' % (tl + 2 * j, src, c(tl + 2 * j)))
                    a.emit('v_dot2_f32_bf16 v%d, v%d, v22, %s' % (tl + 2 * j + 1, src, c(tl + 2 * j + 1)))
            for j in range(4):
                a.emit('v_cvt_pk_bf16_f32 v%d, v%d, v%d' % (R + 4 * ks + j, tl + 2 * j, tl + 2 * j + 1))
            a.emit('ds_write_b128 v18, %s offset:%d' % (vr(R + 4 * ks, 4), L_QK + ks * 1024))
            for j in range(4):
                a.emit('v_dot2c_f32_bf16 v%d, v%d, v20' % (14 + (j & 1), R + 4 * ks + j))
        a.emit('''
        v_add_f32 v14, v14, v15
        v_mfma_f32_16x16x4_f32 v[136:139], v17, v14, 0
        v_lshlrev_b32 v4, 2, v2
        ds_write_b32 v4, v136 offset:%d
        s_waitcnt lgkmcnt(0)
        s_barrier
        ''' % L_SQ)
        self.stamp(3)
        a.emit('''
        s_barrier
        s_barrier
        ds_read_b128 v[24:27], v19 offset:%d
        ds_read_b128 v[28:31], v19 offset:%d
        ds_read_b128 v[32:35], v19 offset:%d
        ds_read_b128 v[36:39], v19 offset:%d
        s_lshl_b32 s44, s30, 7
        s_add_u32 s44, s44, %d
        v_lshl_add_u32 v6, v2, 3, s44
        s_waitcnt lgkmcnt(0)
        v_max3_f32 v4, v24, v25, v26
        v_max3_f32 v5, v27, v28, v29
        v_max3_f32 v4, v4, v30, v31
        v_max_f32 v4, v4, v5
        v_ceil_f32 v4, v4
        v_add_f32 v32, v32, v33
        v_add_f32 v34, v34, v35
        v_add_f32 v36, v36, v37
        v_add_f32 v38, v38, v39
        v_add_f32 v32, v32, v34
        v_add_f32 v36, v36, v38
        v_add_f32 v5, v32, v36
        s_mov_b32 exec_lo, 0xffff
        s_mov_b32 exec_hi, 0
        global_store_dwordx2 v6, v[4:5], s[26:27] sc1
        ''' % (L_MX, L_MX + 16, L_LS, L_LS + 16, WS_ML))
        self.stamp(6)
        a.branch('s_branch L_end')

    def role_final(self):
        a = self.a
        WV, WO = 24, 72
        CS = 120
        QR = 128
        ZL = 132
        ACC = 188
        ONES = 196
        TM = 200
        a.emit('''
        v_mov_b32 v%d, -1
        v_mov_b32 v%d, -1
        v_mov_b32 v%d, -1
        v_mov_b32 v%d, -1
        s_mul_i32 s33, s30, 86016
        s_add_u32 s33, s33, %d
        v_lshl_add_u32 v4, v0, 4, s33
        ''' % (TM, TM + 1, TM + 2, TM + 3, WS_Z))
        for i in range(10):
            a.emit('global_store_dwordx4 v4, %s, s[26:27] sc1' % vr(TM, 4))
            a.emit('v_add_u32 v4, 8192, v4')
        a.emit('''
        s_mul_i32 s33, s30, 1792
        s_add_u32 s33, s33, %d
        v_lshl_add_u32 v5, v0, 4, s33
        v_cmp_gt_u32 vcc, 256, v0
        v_cndmask_b32 v4, v5, v4, vcc
        v_cmp_gt_u32 vcc, 368, v0
        s_and_saveexec_b64 s[40:41], vcc
        ''' % (WS_ML - 4096))
        lsk = self.lab('initsk')
        a.branch('s_cbranch_execz %s' % lsk)
        a.emit('global_store_dwordx4 v4, %s, s[26:27] sc1' % vr(TM, 4))
        a.label(lsk)
        a.emit('s_mov_b64 exec, -1')
        a.emit('s_waitcnt vmcnt(0)')
        a.emit('s_barrier')
        lnf = self.lab('noflag')
        a.branch('s_cmp_lg_u32 s28, 0')
        a.branch('s_cbranch_scc1 %s' % lnf)
        a.emit('''
        s_and_b32 s33, s30, 1
        s_lshl_b32 s33, s33, 7
        s_lshr_b32 s34, s30, 1
        s_add_u32 s33, s33, s34
        s_add_u32 s33, s33, 64
        ''')
        self.flag_store(33, 5)
        a.label(lnf)
        self.stamp(1)
        a.emit('''
        v_mov_b32 v%d, 0x3f803f80
        v_mov_b32 v%d, 0x3f803f80
        v_mov_b32 v%d, 0x3f803f80
        v_mov_b32 v%d, 0x3f803f80
        s_mul_i32 s33, s28, 9216
        v_lshl_add_u32 v4, v1, 4, s33
        s_add_u32 s34, s33, %d
        s_add_u32 s35, s33, %d
        ''' % (ONES, ONES + 1, ONES + 2, ONES + 3, LF_WV, LF_WO))
        for (sp, sl) in ((18, 34), (20, 35)):
            for i in range(9):
                a.emit('s_add_u32 m0, s%d, %d' % (sl, i * 1024))
                if i % 4 == 0 and i: a.emit('v_add_u32 v5, %d, v4' % (i * 1024))
                a.emit('v_add_u32 v5, %d, v4' % (i * 1024))
                a.emit('global_load_lds_dwordx4 v5, s[%d:%d]' % (sp, sp + 1))
        a.emit('''
        s_mul_i32 s33, s30, 384
        s_lshl_b32 s34, s28, 6
        s_add_u32 s33, s33, s34
        v_lshl_add_u32 v4, v3, 3, s33
        v_min_u32 v4, 6104, v4
        global_load_dwordx2 %s, v4, s[8:9]
        global_load_dwordx2 %s, v4, s[8:9] offset:32
        s_waitcnt vmcnt(0)
        s_barrier
        ''' % (vr(QR, 2), vr(QR + 2, 2)))
        lnw = self.lab('fin_now')
        a.branch('s_cmp_ge_u32 s28, 6')
        a.branch('s_cbranch_scc1 %s' % lnw)
        a.emit('''
        v_bfe_u32 v6, v1, 2, 2
        v_lshl_add_u32 v6, v3, 3, v6
        v_mul_u32_u24 v6, 384, v6
        v_and_b32 v7, 3, v1
        v_lshl_add_u32 v6, v7, 3, v6
        s_lshl_b32 s33, s28, 6
        s_add_u32 s34, s33, %d
        v_add_u32 v7, s34, v6
        s_add_u32 s34, s33, %d
        v_add_u32 v8, s34, v6
        ''' % (LF_WV, LF_WO))
        for (vb, dst) in ((7, WV), (8, WO)):
            for d in range(2):
                for ks in range(6):
                    for h in range(2):
                        a.emit('ds_read_b64_tr_b16 %s, v%d offset:%d' % (vr(dst + (d * 6 + ks) * 4 + 2 * h, 2), vb, ks * 12288 + h * 1536 + d * 32))
        a.emit('s_waitcnt lgkmcnt(0)')
        for ks in range(6):
            for d in range(2):
                a.emit('%s %s, %s, %s, %s' % (MF, vr(CS + 4 * d, 4), vr(WV + (d * 6 + ks) * 4, 4), vr(ONES, 4), '0' if ks == 0 else vr(CS + 4 * d, 4)))
        a.label(lnw)
        self.stamp(2)
        a.emit('''
        s_mul_i32 s33, s28, 28
        v_min_u32 v4, 27, v1
        v_add_u32 v4, s33, v4
        v_lshlrev_b32 v4, 7, v4
        s_lshl_b32 s34, s30, 3
        s_add_u32 s34, s34, %d
        v_add_u32 v4, s34, v4
        s_mul_i32 s34, s30, 224
        s_add_u32 s34, s34, s33
        s_mul_i32 s34, s34, 384
        s_add_u32 s34, s34, %d
        v_min_u32 v5, 47, v1
        v_lshlrev_b32 v5, 4, v5
        v_add_u32 v5, s34, v5
        v_add_u32 v6, 3840, v5
        v_add_u32 v7, 7680, v5
        s_mov_b32 s42, 0
        ''' % (WS_ML, WS_Z))
        lp, ld = self.lab('poll'), self.lab('polld')
        a.label(lp)
        a.emit('''
        global_load_dwordx2 %s, v4, s[26:27] sc1
        s_add_u32 s42, s42, 1
        s_waitcnt vmcnt(0)
        v_max_u32 v8, v%d, v%d
        v_cmp_eq_u32 vcc, -1, v8
        ''' % (vr(TM, 2), TM, TM + 1))
        a.branch('s_cbranch_vccz %s' % ld)
        a.emit('s_sleep %d' % self.opt.get('fsleep', 1))
        a.emit('s_cmp_lt_u32 s42, 0x40000')
        a.branch('s_cbranch_scc1 %s' % lp)
        a.label(ld)
        self.stamp(3)
        def zload(i):
            a.emit('global_load_dwordx4 %s, v%d, s[26:27] offset:%d sc1' % (vr(ZL + 4 * i, 4), 5 + i // 5, (i % 5) * 768))
        for i in range(14): zload(i)
        M, L = TM, TM + 1
        X = TM + 2
        a.emit('v_mov_b32 v%d, v%d' % (X, M))
        for sh in (1, 2, 4, 8):
            a.emit('v_max_f32_dpp v%d, v%d, v%d row_ror:%d row_mask:0xf bank_mask:0xf' % (X, X, X, sh))
        a.emit('v_mov_b32 v%d, v%d' % (X + 1, X))
        a.emit('v_permlane16_swap_b32 v%d, v%d' % (X, X + 1))
        a.emit('v_max_f32 v%d, v%d, v%d' % (X, X, X + 1))
        a.emit('v_mov_b32 v%d, v%d' % (X + 1, X))
        a.emit('v_permlane32_swap_b32 v%d, v%d' % (X, X + 1))
        a.emit('v_max_f32 v%d, v%d, v%d' % (X, X, X + 1))
        a.emit('''
        s_lshl_b32 s35, s28, 2
        v_mov_b32 v8, s35
        v_mov_b32 v9, 0
        ds_write_b32 v8, v%d offset:%d
        s_waitcnt lgkmcnt(0)
        s_barrier
        ds_read_b128 %s, v9 offset:%d
        ds_read_b128 %s, v9 offset:%d
        s_waitcnt lgkmcnt(0)
        v_max3_f32 v%d, v%d, v%d, v%d
        v_max3_f32 v%d, v%d, v%d, v%d
        v_max3_f32 v%d, v%d, v%d, v%d
        v_max_f32 v%d, v%d, v%d
        ''' % (X, LF_WM, vr(TM + 4, 4), LF_WM, vr(TM + 8, 4), LF_WM + 16,
               X, TM + 4, TM + 5, TM + 6, X + 1, TM + 7, TM + 8, TM + 9, X, X, TM + 10, TM + 11, X, X, X + 1))
        a.emit('v_sub_f32 v%d, v%d, v%d' % (M, M, X))
        a.emit('v_exp_f32 v%d, v%d' % (M, M))
        a.emit('v_mul_f32 v%d, v%d, v%d' % (L, L, M))
        a.emit('v_cmp_gt_u32 vcc, 28, v1')
        a.emit('v_cndmask_b32 v%d, 0, v%d, vcc' % (L, L))
        a.emit('''
        v_lshrrev_b32 v%d, 16, v%d
        s_lshl_b32 s34, s28, 7
        s_add_u32 s34, s34, %d
        v_lshl_add_u32 v9, v1, 2, s34
        s_mov_b32 exec_hi, 0
        ds_write_b32 v9, v%d
        s_mov_b32 exec_hi, -1
        v_cmp_lt_u32 vcc, 23, v1
        v_cndmask_b32 v9, 0, 4, vcc
        v_add_u32 v9, s34, v9
        ''' % (M, M, LF_SCT, M))
        for sh in (1, 2, 4, 8):
            a.emit('v_add_f32_dpp v%d, v%d, v%d row_ror:%d row_mask:0xf bank_mask:0xf' % (L, L, L, sh))
        a.emit('v_mov_b32 v%d, v%d' % (X + 1, L))
        a.emit('v_permlane16_swap_b32 v%d, v%d' % (L, X + 1))
        a.emit('v_add_f32 v%d, v%d, v%d' % (L, L, X + 1))
        a.emit('s_waitcnt lgkmcnt(0)')
        SCL = TM + 4
        for i in range(14):
            a.emit('ds_read_b32 v%d, v9 offset:%d' % (SCL + i, i * 8))
        a.emit('''
        s_mov_b64 exec, 1
        ds_write_b32 v8, v%d offset:%d
        s_mov_b64 exec, -1
        ''' % (L, LF_WL))
        HI = TM + 20
        UM = TM + 22
        lredo, lok = self.lab('redo'), self.lab('zok')
        a.label(lredo)
        for i in range(8):
            a.emit('v_mov_b32 v%d, 0' % (ACC + i))
        a.emit('v_mov_b32 v%d, 0' % UM)
        a.emit('s_waitcnt lgkmcnt(0)')
        for i in range(14):
            a.emit('v_lshlrev_b32 v%d, 16, v%d' % (HI + (i & 1), SCL + i))
            a.emit('s_waitcnt vmcnt(%d)' % (13 - i))
            a.emit('v_max3_u32 v%d, v%d, v%d, v%d' % (UM, UM, ZL + 4 * i, ZL + 4 * i + 1))
            for j in range(4):
                a.emit('v_dot2c_f32_bf16 v%d, v%d, v%d' % (ACC + 2 * j, ZL + 4 * i + j, SCL + i))
                a.emit('v_dot2c_f32_bf16 v%d, v%d, v%d' % (ACC + 2 * j + 1, ZL + 4 * i + j, HI + (i & 1)))
            a.emit('v_max3_u32 v%d, v%d, v%d, v%d' % (UM, UM, ZL + 4 * i + 2, ZL + 4 * i + 3))
        a.emit('v_cmp_eq_u32 vcc, -1, v%d' % UM)
        a.branch('s_cbranch_vccz %s' % lok)
        a.emit('s_add_u32 s42, s42, 1')
        a.emit('s_cmp_ge_u32 s42, 0x40000')
        a.branch('s_cbranch_scc1 %s' % lok)
        for i in range(14): zload(i)
        a.branch('s_branch %s' % lredo)
        a.label(lok)
        a.emit('''
        v_cvt_pk_bf16_f32 v%d, v%d, v%d
        v_cvt_pk_bf16_f32 v%d, v%d, v%d
        v_cvt_pk_bf16_f32 v%d, v%d, v%d
        v_cvt_pk_bf16_f32 v%d, v%d, v%d
        v_cmp_lt_u32 vcc, 23, v1
        v_cndmask_b32 v8, 0, 16, vcc
        v_lshl_add_u32 v8, v1, 4, v8
        s_mul_i32 s34, s28, 800
        v_add_u32 v8, s34, v8
        s_mov_b32 exec_hi, 0xffff
        ds_write_b128 v8, %s offset:%d
        s_mov_b32 exec_hi, -1
        s_waitcnt lgkmcnt(0)
        s_barrier
        ''' % (TM + 4, ACC, ACC + 1, TM + 5, ACC + 2, ACC + 3, TM + 6, ACC + 4, ACC + 5, TM + 7, ACC + 6, ACC + 7,
               vr(TM + 4, 4), LF_ZC))
        self.stamp(4)
        a.branch('s_cmp_ge_u32 s28, 6')
        a.branch('s_cbranch_scc1 L_end')
        ZB = ZL
        WL = ZL + 24
        a.emit('''
        v_mul_u32_u24 v6, 400, v2
        v_lshl_add_u32 v6, v3, 4, v6
        v_mov_b32 v7, 0
        ''')
        for ks in range(6):
            a.emit('ds_read_b128 %s, v6 offset:%d' % (vr(ZB + 4 * ks, 4), LF_ZC + ks * 64))
        a.emit('ds_read_b128 %s, v7 offset:%d' % (vr(WL, 4), LF_WL))
        a.emit('ds_read_b128 %s, v7 offset:%d' % (vr(WL + 4, 4), LF_WL + 16))
        DA = TM + 24
        ZS = TM + 32
        for ks in range(6):
            c = lambda r: '0' if ks == 0 else vr(r, 4)
            a.emit('s_waitcnt lgkmcnt(%d)' % (7 - ks))
            a.emit('%s %s, %s, %s, %s' % (MF, vr(ZS, 4), vr(ONES, 4), vr(ZB + 4 * ks, 4), c(ZS)))
            for d in range(2):
                a.emit('%s %s, %s, %s, %s' % (MF, vr(DA + 4 * d, 4), vr(WV + (d * 6 + ks) * 4, 4), vr(ZB + 4 * ks, 4), c(DA + 4 * d)))
        a.emit('s_waitcnt lgkmcnt(0)')
        a.emit('''
        v_add_f32 v%d, v%d, v%d
        v_add_f32 v%d, v%d, v%d
        v_add_f32 v%d, v%d, v%d
        v_add_f32 v%d, v%d, v%d
        v_add_f32 v%d, v%d, v%d
        v_add_f32 v%d, v%d, v%d
        v_add_f32 v%d, v%d, v%d
        v_rcp_f32 v%d, v%d
        ''' % (WL, WL, WL + 1, WL + 2, WL + 2, WL + 3, WL + 4, WL + 4, WL + 5, WL + 6, WL + 6, WL + 7,
               WL, WL, WL + 2, WL + 4, WL + 4, WL + 6, WL, WL, WL + 4, WL, WL))
        a.emit('v_mul_f32 v%d, %s, v%d' % (ZS, f32bits(1.0 / 192), ZS))
        for d in range(2):
            for r in range(4):
                x = DA + 4 * d + r
                a.emit('v_fma_f32 v%d, -v%d, v%d, v%d' % (x, ZS, CS + 4 * d + r, x))
        for d in range(2):
            for r in range(4):
                x = DA + 4 * d + r
                a.emit('v_mul_f32 v%d, v%d, v%d' % (x, x, WL))
        C = TM + 2
        a.emit('''
        v_cvt_pk_bf16_f32 v%d, v%d, v%d
        v_cvt_pk_bf16_f32 v%d, v%d, v%d
        v_cvt_pk_bf16_f32 v%d, v%d, v%d
        v_cvt_pk_bf16_f32 v%d, v%d, v%d
        s_lshl_b32 s34, s28, 6
        v_mul_u32_u24 v7, 400, v2
        v_lshl_add_u32 v7, v3, 3, v7
        v_add_u32 v7, s34, v7
        ds_write_b64 v7, %s offset:%d
        ds_write_b64 v7, %s offset:%d
        s_waitcnt lgkmcnt(0)
        s_barrier
        ''' % (C, DA, DA + 1, C + 1, DA + 2, DA + 3, C + 2, DA + 4, DA + 5, C + 3, DA + 6, DA + 7,
               vr(C, 2), LF_CX, vr(C + 2, 2), LF_CX + 32))
        for ks in range(6):
            a.emit('ds_read_b128 %s, v6 offset:%d' % (vr(ZB + 4 * ks, 4), LF_CX + ks * 64))
        for ks in range(6):
            a.emit('s_waitcnt lgkmcnt(%d)' % (5 - ks))
            for d in range(2):
                a.emit('%s %s, %s, %s, %s' % (MF, vr(DA + 4 * d, 4), vr(WO + (d * 6 + ks) * 4, 4), vr(ZB + 4 * ks, 4), '0' if ks == 0 else vr(DA + 4 * d, 4)))
        for sh in (1, 2, 4, 8):
            for x in range(8):
                a.emit('v_add_f32_dpp v%d, v%d, v%d row_ror:%d row_mask:0xf bank_mask:0xf' % (DA + x, DA + x, DA + x, sh))
        a.emit('''
        v_cvt_pk_bf16_f32 v%d, v%d, v%d
        v_cvt_pk_bf16_f32 v%d, v%d, v%d
        v_cvt_pk_bf16_f32 v%d, v%d, v%d
        v_cvt_pk_bf16_f32 v%d, v%d, v%d
        ''' % (C, DA, DA + 1, C + 1, DA + 2, DA + 3, C + 2, DA + 4, DA + 5, C + 3, DA + 6, DA + 7))
        for i in range(4):
            t0 = DA + 4 * (i & 1)
            a.emit('''
            v_lshlrev_b32 v%d, 16, v%d
            v_and_b32 v%d, 0xffff0000, v%d
            v_lshlrev_b32 v%d, 16, v%d
            v_and_b32 v%d, 0xffff0000, v%d
            v_add_f32 v%d, v%d, v%d
            v_add_f32 v%d, v%d, v%d
            v_cvt_pk_bf16_f32 v%d, v%d, v%d
            ''' % (t0, C + i, t0 + 1, C + i, t0 + 2, QR + i, t0 + 3, QR + i,
                   t0, t0, t0 + 2, t0 + 1, t0 + 1, t0 + 3, C + i, t0, t0 + 1))
        a.emit('''
        s_mul_i32 s33, s30, 384
        s_lshl_b32 s34, s28, 6
        s_add_u32 s33, s33, s34
        v_lshl_add_u32 v4, v3, 3, s33
        s_mov_b32 exec_lo, 0x00010001
        s_mov_b32 exec_hi, 0x00010001
        global_store_dwordx2 v4, %s, s[22:23]
        global_store_dwordx2 v4, %s, s[22:23] offset:32
        ''' % (vr(C, 2), vr(C + 2, 2)))
        self.stamp(5)
        a.branch('s_branch L_end')


HEADER = open('standalone__detection_seg_dino__vision.s.ref').read().split('; Override')[0]

def kd(name, vgpr=256, sgpr=102):
    return '''.amdhsa_kernel %s
  .amdhsa_next_free_vgpr %d
  .amdhsa_next_free_sgpr %d
  .amdhsa_accum_offset %d
  .amdhsa_group_segment_fixed_size 0
  .amdhsa_kernarg_size 80
  .amdhsa_user_sgpr_count 2
  .amdhsa_user_sgpr_kernarg_segment_ptr 1
  .amdhsa_system_sgpr_workgroup_id_x 1
.end_amdhsa_kernel
''' % (name, vgpr, sgpr, (vgpr + 3) // 4 * 4)

def build(stamps=False, opt=None):
    out = HEADER
    out += '; @launch grid=(256,1,1) block=(512,1,1) lds=%d\n' % LDS_TOTAL
    out += '.amdgcn_target "amdgcn-amd-amdhsa--gfx950"\n.text\n'
    G = Gen(stamps, opt)
    a = G.a
    n = KNAME
    a.raw('.globl %s\n.p2align 8\n.type %s,@function\n%s:' % (n, n, n))
    a.branch('s_cmp_ge_u32 s2, 256')
    a.branch('s_cbranch_scc1 L_exit')
    G.stamp_init()
    G.prologue()
    G.stamp(0)
    a.branch('s_cmp_ge_u32 s2, 32')
    a.branch('s_cbranch_scc1 L_role_main')
    a.branch('s_cmp_ge_u32 s2, 16')
    a.branch('s_cbranch_scc1 L_role_final')
    a.branch('s_cmp_ge_u32 s2, 12')
    a.branch('s_cbranch_scc1 L_end')
    a.emit('s_mov_b32 s30, s2')
    G.role_qk()
    a.label('L_role_final')
    a.emit('s_sub_u32 s30, s2, 16')
    G.role_final()
    a.label('L_role_main')
    a.emit('s_sub_u32 s30, s2, 32')
    G.role_main()
    a.label('L_end')
    G.stamp_flush()
    a.label('L_exit')
    a.emit('s_endpgm')
    out += a.text()
    out += '.section .rodata,"a"\n.p2align 6\n' + kd(n)
    return out

if __name__ == '__main__':
    ap = argparse.ArgumentParser()
    ap.add_argument('--stamps', action='store_true')
    ap.add_argument('--opt', default='')
    ap.add_argument('-o', default='standalone__detection_seg_dino__vision.s')
    args = ap.parse_args()
    OPT = {}
    for kv in args.opt.split(','):
        if kv:
            k, v = kv.split('='); OPT[k] = int(v)
    s = build(args.stamps, OPT)
    open(args.o, 'w').write(s)
    print('wrote', args.o, len(s), 'bytes')
```

```python
import sys, argparse, struct
from asmdsl import Asm

KNAME = 'standalone__detection_seg_dino__vision_kernel'

WS_QK = 0
WS_ML = 32768
WS_Z = 65536
NMAIN = 224

XREG = 15392
L_QK = 0
L_WF = L_QK + 6144
L_WC = L_WF + 7168
L_SQ = L_WC + 2048
L_MX = 15424
L_LS = L_MX + 512
L_CO = L_LS + 512
L_X = 17152
LQ_QN = 0
LQ_RED = 6144
LQ_W = 18432
LF_ZC = 0
LF_CX = 6400
LF_SCT = 12800
LF_WM = LF_SCT + 1024
LF_WL = LF_WM + 32
LF_WV = 14336
LF_WO = LF_WV + 73728
LDS_TOTAL = LF_WO + 73728

QSCALE = (192.0 ** -0.5) * 1.4426950408889634

def f32bits(x):
    return '0x%08x' % struct.unpack('<I', struct.pack('<f', x))[0]

def vr(a, n):
    return 'v[%d:%d]' % (a, a + n - 1)

MF = 'v_mfma_f32_16x16x32_bf16'

class Gen:
    def __init__(self, stamps=False, opt=None):
        self.a = Asm()
        self.stamps = stamps
        self.opt = opt or {}
        self.uid = 0

    def lab(self, base):
        self.uid += 1
        return 'L_%s_%d' % (base, self.uid)

    def prologue(self):
        self.a.emit('''
        s_load_dwordx16 s[8:23], s[0:1], 0
        s_load_dwordx4 s[24:27], s[0:1], 64
        v_and_b32 v1, 63, v0
        v_lshrrev_b32 v4, 6, v0
        v_and_b32 v2, 15, v1
        v_readfirstlane_b32 s28, v4
        v_lshrrev_b32 v3, 4, v1
        s_waitcnt lgkmcnt(0)
        ''')

    def stamp(self, idx):
        if not self.stamps: return
        self.a.emit('s_memrealtime s[%d:%d]' % (60 + 2 * idx, 61 + 2 * idx))
        self.a.emit('s_waitcnt lgkmcnt(0)')

    def stamp_init(self):
        if not self.stamps: return
        for i in range(24):
            self.a.emit('s_mov_b32 s%d, 0' % (60 + i))

    def stamp_flush(self):
        if not self.stamps: return
        a = self.a
        if self.opt.get('dbgout'):
            for (wg, base, idxs) in ((16, 8, (1, 2, 3, 4, 5)), (32, 2, (1, 2, 3, 4, 5, 6)), (0, 14, (1, 3))):
                l = self.lab('dbg')
                a.emit('s_lshl_b32 s92, s2, 3')
                a.emit('s_add_u32 s92, s92, s28')
                a.branch('s_cmp_lg_u32 s92, %d' % (wg * 8))
                a.branch('s_cbranch_scc1 %s' % l)
                a.emit('s_mov_b64 exec, 1')
                a.emit('v_mov_b32 v250, 0')
                for n, i in enumerate(idxs):
                    a.emit('s_sub_u32 s93, s%d, s60' % (60 + 2 * i))
                    a.emit('v_mov_b32 v252, s93')
                    a.emit('global_store_dword v250, v252, s[24:25] offset:%d' % ((base + n) * 4))
                a.label(l)
            return
        a.emit('''
        s_lshl_b32 s92, s2, 3
        s_add_u32 s92, s92, s28
        s_lshl_b32 s92, s92, 7
        s_add_u32 s92, s92, %d
        v_mov_b32 v250, s92
        s_mov_b64 exec, 1
        ''' % 0x1000000)
        for i in range(12):
            a.emit('v_mov_b32 v252, s%d' % (60 + 2 * i))
            a.emit('v_mov_b32 v253, s%d' % (61 + 2 * i))
            a.emit('global_store_dwordx2 v250, v[252:253], s[26:27] offset:%d' % (i * 8))
            a.emit('s_nop 1')

    def setexec(self, mask):
        a = self.a
        lo, hi = mask & 0xffffffff, mask >> 32
        if mask == (1 << 64) - 1:
            a.emit('s_mov_b64 exec, -1')
        else:
            a.emit('s_mov_b32 exec_lo, 0x%x' % lo)
            a.emit('s_mov_b32 exec_hi, 0x%x' % hi)

    def flag_store(self, byte_sreg, vt):
        a = self.a
        self.setexec(1)
        a.emit('''
        v_mov_b32 v%d, 1
        v_mov_b32 v%d, s%d
        global_store_byte v%d, v%d, s[24:25] sc1
        ''' % (vt, vt + 1, byte_sreg, vt + 1, vt))
        self.setexec((1 << 64) - 1)

    def role_qk(self):
        a = self.a
        VQ = 8
        VWK = 32
        VWQ = 40
        VQN = 64
        T = 88
        a.emit('''
        s_mul_i32 s32, s30, 86
        s_lshr_b32 s32, s32, 8
        s_mul_i32 s31, s32, 3
        s_sub_u32 s31, s30, s31
        ''')
        a.emit('''
        v_mul_u32_u24 v4, 384, v2
        v_lshl_add_u32 v4, v3, 4, v4
        ''')
        for ks in range(6):
            a.emit('global_load_dwordx4 %s, v4, s[8:9] offset:%d' % (vr(VQ + 4 * ks, 4), ks * 64))
        a.emit('''
        v_lshrrev_b32 v5, 3, v1
        v_mul_u32_u24 v5, 384, v5
        v_and_b32 v6, 7, v1
        v_bfe_u32 v7, v1, 4, 1
        v_lshlrev_b32 v7, 1, v7
        v_xor_b32 v6, v6, v7
        s_lshl_b32 s33, s31, 7
        s_mul_i32 s34, s28, 9216
        s_add_u32 s33, s33, s34
        v_add_u32 v5, s33, v5
        v_lshl_add_u32 v7, v6, 4, v5
        v_xor_b32 v6, 4, v6
        v_lshl_add_u32 v6, v6, 4, v5
        s_mul_i32 s34, s28, 3072
        s_add_u32 s34, s34, %d
        s_and_b32 s35, s28, 1
        ''' % LQ_W)
        a.emit('''
        s_cmp_eq_u32 s35, 1
        s_cselect_b64 vcc, -1, 0
        v_cndmask_b32 v5, v7, v6, vcc
        v_cndmask_b32 v6, v6, v7, vcc
        ''')
        for k in range(3):
            a.emit('s_add_u32 m0, s34, %d' % (k * 1024))
            src = 5 if k % 2 == 0 else 6
            if k:
                a.emit('v_add_u32 v%d, %d, v%d' % (src, k * 3072, src))
            a.emit('global_load_lds_dwordx4 v%d, s[14:15]' % src)
        a.emit('''
        s_mul_i32 s33, s32, 48
        v_add_u32 v4, s33, v2
        v_mul_u32_u24 v4, 384, v4
        v_lshl_add_u32 v4, v3, 3, v4
        s_lshl_b32 s33, s31, 7
        s_and_b32 s35, s28, 3
        s_lshl_b32 s35, s35, 5
        s_add_u32 s33, s33, s35
        v_add_u32 v4, s33, v4
        global_load_dwordx2 %s, v4, s[16:17]
        v_add_u32 v4, 6144, v4
        global_load_dwordx2 %s, v4, s[16:17]
        v_add_u32 v4, 6144, v4
        global_load_dwordx2 %s, v4, s[16:17]
        ''' % (vr(VWK, 2), vr(VWK + 2, 2), vr(VWK + 4, 2)))
        a.emit('''
        v_mov_b32 v%d, 0x3f803f80
        v_mov_b32 v%d, 1.0
        v_mov_b32 v%d, 0
        v_mov_b32 v%d, 0
        v_mov_b32 v%d, 0
        v_mov_b32 v%d, 0
        s_waitcnt vmcnt(6)
        ''' % (T, T + 1, T + 2, T + 3, T + 12, T + 13))
        self.stamp(4)
        for i in range(0, 24, 2):
            a.emit('v_dot2c_f32_bf16 v%d, v%d, v%d' % (T + 2, VQ + i, T))
            a.emit('v_dot2c_f32_bf16 v%d, v%d, v%d' % (T + 3, VQ + i, VQ + i))
            a.emit('v_dot2c_f32_bf16 v%d, v%d, v%d' % (T + 12, VQ + i + 1, T))
            a.emit('v_dot2c_f32_bf16 v%d, v%d, v%d' % (T + 13, VQ + i + 1, VQ + i + 1))
        a.emit('v_add_f32 v%d, v%d, v%d' % (T + 2, T + 2, T + 12))
        a.emit('v_add_f32 v%d, v%d, v%d' % (T + 3, T + 3, T + 13))
        a.emit('v_mfma_f32_16x16x4_f32 %s, v%d, v%d, 0' % (vr(T + 4, 4), T + 1, T + 2))
        a.emit('v_mfma_f32_16x16x4_f32 %s, v%d, v%d, 0' % (vr(T + 8, 4), T + 1, T + 3))
        MEAN, SSQ = T + 4, T + 8
        a.emit('''
        s_mov_b32 s36, %s
        v_mul_f32 v%d, s36, v%d
        v_mul_f32 v%d, s36, v%d
        ''' % (f32bits(1.0 / 192), MEAN, MEAN, SSQ, SSQ))
        a.emit('v_fma_f32 v%d, -v%d, v%d, v%d' % (SSQ, MEAN, MEAN, SSQ))
        a.emit('v_max_f32 v%d, 0, v%d' % (SSQ, SSQ))
        a.emit('v_cvt_pk_bf16_f32 v%d, v%d, v%d' % (T + 12, MEAN, SSQ))
        a.emit('v_lshlrev_b32 v%d, 16, v%d' % (MEAN, T + 12))
        a.emit('v_and_b32 v%d, 0xffff0000, v%d' % (SSQ, T + 12))
        a.emit('v_add_f32 v%d, %s, v%d' % (SSQ, f32bits(1e-5), SSQ))
        a.emit('v_cvt_pk_bf16_f32 v%d, v%d, v%d' % (T + 12, SSQ, SSQ))
        a.emit('v_lshlrev_b32 v%d, 16, v%d' % (SSQ, T + 12))
        a.emit('v_sqrt_f32 v%d, v%d' % (SSQ, SSQ))
        a.emit('v_cvt_pk_bf16_f32 v%d, v%d, v%d' % (T + 12, SSQ, SSQ))
        a.emit('v_lshlrev_b32 v%d, 16, v%d' % (SSQ, T + 12))
        a.emit('v_rcp_f32 v%d, v%d' % (SSQ, SSQ))
        labs = [self.lab('qkn') for _ in range(7)]
        a.branch('s_cmp_ge_u32 s28, 6')
        a.branch('s_cbranch_scc1 %s' % labs[6])
        for t in range(6):
            if t < 5:
                a.branch('s_cmp_lg_u32 s28, %d' % t)
                a.branch('s_cbranch_scc1 %s' % labs[t])
            for j in range(4):
                src = VQ + 4 * t + j
                x, y, z = T + 16 + 3 * j, T + 17 + 3 * j, T + 18 + 3 * j
                a.emit('v_lshlrev_b32 v%d, 16, v%d' % (x, src))
                a.emit('v_and_b32 v%d, 0xffff0000, v%d' % (y, src))
            for j in range(4):
                x, y, z = T + 16 + 3 * j, T + 17 + 3 * j, T + 18 + 3 * j
                a.emit('v_sub_f32 v%d, v%d, v%d' % (x, x, MEAN))
                a.emit('v_sub_f32 v%d, v%d, v%d' % (y, y, MEAN))
            for j in range(4):
                x, y, z = T + 16 + 3 * j, T + 17 + 3 * j, T + 18 + 3 * j
                a.emit('v_cvt_pk_bf16_f32 v%d, v%d, v%d' % (z, x, y))
            for j in range(4):
                x, y, z = T + 16 + 3 * j, T + 17 + 3 * j, T + 18 + 3 * j
                a.emit('v_lshlrev_b32 v%d, 16, v%d' % (x, z))
                a.emit('v_and_b32 v%d, 0xffff0000, v%d' % (y, z))
            for j in range(4):
                x, y, z = T + 16 + 3 * j, T + 17 + 3 * j, T + 18 + 3 * j
                a.emit('v_mul_f32 v%d, v%d, v%d' % (x, x, SSQ))
                a.emit('v_mul_f32 v%d, v%d, v%d' % (y, y, SSQ))
            for j in range(4):
                x, y, z = T + 16 + 3 * j, T + 17 + 3 * j, T + 18 + 3 * j
                a.emit('v_cvt_pk_bf16_f32 v%d, v%d, v%d' % (T + 28 + j, x, y))
            a.emit('''
            v_lshlrev_b32 v4, 4, v1
            ds_write_b128 v4, %s offset:%d
            ''' % (vr(T + 28, 4), LQ_QN + t * 1024))
            if t < 5:
                a.branch('s_branch %s' % labs[6])
                a.label(labs[t])
        a.label(labs[6])
        self.stamp(5)
        a.emit('s_waitcnt vmcnt(3)')
        self.stamp(6)
        a.emit('''
        s_waitcnt vmcnt(0) lgkmcnt(0)
        ''')
        self.stamp(7)
        a.emit('s_barrier')
        self.stamp(1)
        a.branch('s_cmp_ge_u32 s28, 4')
        a.branch('s_cbranch_scc1 %s' % 'L_qk_b2')
        a.emit('v_lshlrev_b32 v4, 4, v1')
        for ks in range(6):
            a.emit('ds_read_b128 %s, v4 offset:%d' % (vr(VQN + 4 * ks, 4), LQ_QN + ks * 1024))
        a.emit('''
        v_bfe_u32 v5, v1, 2, 2
        v_lshl_add_u32 v6, v3, 3, v5
        v_lshlrev_b32 v6, 7, v6
        v_lshrrev_b32 v5, 1, v5
        v_and_b32 v7, 1, v3
        v_lshl_or_b32 v5, v7, 1, v5
        v_lshlrev_b32 v5, 1, v5
        v_bfe_u32 v7, v1, 1, 1
        s_lshl_b32 s33, s28, 1
        v_or_b32 v7, s33, v7
        v_xor_b32 v5, v5, v7
        v_lshl_add_u32 v6, v5, 4, v6
        v_and_b32 v7, 1, v1
        v_lshl_add_u32 v6, v7, 3, v6
        ''')
        for ks in range(6):
            for h in range(2):
                a.emit('ds_read_b64_tr_b16 %s, v6 offset:%d' % (vr(VWQ + 4 * ks + 2 * h, 2), LQ_W + ks * 4096 + h * 512))
        D1 = T + 32
        for ks in range(6):
            a.emit('s_waitcnt lgkmcnt(%d)' % (10 - 2 * ks))
            a.emit('%s %s, %s, %s, %s' % (MF, vr(D1, 4), vr(VWQ + 4 * ks, 4), vr(VQN + 4 * ks, 4), '0' if ks == 0 else vr(D1, 4)))
        P = T + 36
        a.emit('v_cvt_pk_bf16_f32 v%d, v%d, v%d' % (P, D1, D1 + 1))
        a.emit('v_cvt_pk_bf16_f32 v%d, v%d, v%d' % (P + 1, D1 + 2, D1 + 3))
        D2 = T + 40
        for tau in range(3):
            a.emit('v_mfma_f32_16x16x16_bf16 %s, %s, %s, 0' % (vr(D2 + 4 * tau, 4), vr(VWK + 2 * tau, 2), vr(P, 2)))
        a.emit('''
        s_mul_i32 s33, s28, 3072
        v_add_u32 v5, s33, v4
        ''')
        for tau in range(3):
            a.emit('ds_write_b128 v5, %s offset:%d' % (vr(D2 + 4 * tau, 4), LQ_RED + tau * 1024))
        a.emit('s_waitcnt lgkmcnt(0)')
        a.label('L_qk_b2')
        a.emit('s_barrier')
        a.branch('s_cmp_ge_u32 s28, 3')
        a.branch('s_cbranch_scc1 L_end')
        a.emit('''
        v_lshlrev_b32 v4, 4, v1
        s_lshl_b32 s33, s28, 10
        v_add_u32 v5, s33, v4
        ''')
        for d in range(4):
            a.emit('ds_read_b128 %s, v5 offset:%d' % (vr(VQ + 4 * d, 4), LQ_RED + d * 3072))
        a.emit('s_mov_b32 s36, %s' % f32bits(QSCALE))
        a.emit('''
        s_mul_i32 s33, s32, 3
        s_add_u32 s33, s33, s28
        s_lshr_b32 s34, s33, 1
        s_lshl_b32 s34, s34, 10
        s_and_b32 s33, s33, 1
        s_lshl_b32 s33, s33, 8
        s_add_u32 s34, s34, s33
        s_mul_i32 s33, s31, 6144
        s_add_u32 s34, s34, s33
        v_lshrrev_b32 v5, 1, v3
        v_lshlrev_b32 v5, 9, v5
        v_lshl_add_u32 v5, v2, 4, v5
        v_and_b32 v6, 1, v3
        v_lshl_add_u32 v5, v6, 3, v5
        v_add_u32 v5, s34, v5
        s_waitcnt lgkmcnt(0)
        ''')
        for r in range(4):
            a.emit('v_add_f32 v%d, v%d, v%d' % (VQ + r, VQ + r, VQ + 4 + r))
            a.emit('v_add_f32 v%d, v%d, v%d' % (VQ + 8 + r, VQ + 8 + r, VQ + 12 + r))
        for r in range(4):
            a.emit('v_add_f32 v%d, v%d, v%d' % (VQ + r, VQ + r, VQ + 8 + r))
        for r in range(4):
            a.emit('v_mul_f32 v%d, s36, v%d' % (VQ + r, VQ + r))
        a.emit('v_cvt_pk_bf16_f32 v%d, v%d, v%d' % (P, VQ, VQ + 1))
        a.emit('v_cvt_pk_bf16_f32 v%d, v%d, v%d' % (P + 1, VQ + 2, VQ + 3))
        a.emit('global_store_dwordx2 v5, %s, s[26:27] offset:%d sc1' % (vr(P, 2), WS_QK))
        self.stamp(8)
        a.emit('s_waitcnt vmcnt(0)')
        self.stamp(9)
        a.emit('s_barrier')
        a.branch('s_cmp_lg_u32 s28, 0')
        a.branch('s_cbranch_scc1 L_end')
        a.emit('''
        s_and_b32 s33, s30, 1
        s_lshl_b32 s33, s33, 7
        s_lshr_b32 s34, s30, 1
        s_add_u32 s33, s33, s34
        ''')
        self.flag_store(33, 5)
        self.stamp(3)
        a.branch('s_branch L_end')

    def role_main(self):
        a = self.a
        lh = self.lab('helper')
        a.branch('s_cmp_eq_u32 s28, 7')
        a.branch('s_cbranch_scc1 %s' % lh)
        NT = ' nt'
        F1, T0, T1, QK = 24, 48, 72, 96
        ONES = 20
        S1, S0, S0b = 120, 124, 128
        SS0, SS1 = 132, 136
        AC = 140
        RS = 148
        MR = 156
        L1, L0, L0b = 164, 168, 172
        TM = 176
        XQ = [120 + 4 * i for i in range(7)] + [200 + 4 * i for i in range(11)]
        win = self.opt.get('win', 99)
        a.emit('''
        s_lshr_b32 s31, s30, 1
        s_and_b32 s32, s30, 1
        s_mul_i32 s32, s32, 56
        s_lshl_b32 s33, s28, 3
        s_add_u32 s32, s32, s33
        s_mul_i32 s33, s31, 112
        s_add_u32 s33, s33, s32
        s_mul_i32 s33, s33, 384
        s_add_u32 s34, s12, s33
        s_addc_u32 s35, s13, 0
        s_mul_i32 s33, s31, 448
        s_lshl_b32 s32, s32, 1
        s_add_u32 s33, s33, s32
        s_mul_i32 s33, s33, 384
        s_add_u32 s36, s10, s33
        s_addc_u32 s37, s11, 0
        s_add_u32 s38, s36, 86016
        s_addc_u32 s39, s37, 0
        s_mul_i32 s43, s28, %d
        s_add_u32 s43, s43, %d
        s_movk_i32 s44, 2731
        ''' % (XREG, L_X))
        nissued = [0]
        def dma(txt):
            if nissued[0] >= win:
                a.emit('s_waitcnt vmcnt(%d)' % (win - 1))
            a.emit(txt); nissued[0] += 1
        for jj in range(3):
            u, p = TM + 4 * jj, TM + 4 * jj + 1
            a.emit('''
            v_add_u32 v%d, %d, v1
            v_mul_u32_u24 v%d, s44, v%d
            v_lshrrev_b32 v%d, 16, v%d
            v_mul_u32_u24 v%d, 24, v%d
            v_sub_u32 v%d, v%d, v%d
            v_bfe_u32 v%d, v%d, 1, 1
            v_bfe_u32 v%d, v%d, 2, 1
            v_lshl_add_u32 v%d, v%d, 2, v%d
            v_xor_b32 v%d, v%d, v%d
            v_mul_u32_u24 v%d, 384, v%d
            v_lshl_add_u32 v%d, v%d, 4, v%d
            s_add_u32 m0, s43, %d
            ''' % (u, 64 * jj, p, u, p, p, u + 2, p, u, u, u + 2,
                   u + 2, p, u + 3, p, u + 2, u + 2, u + 3, u + 2, u + 2, u, u + 3, p,
                   4 + jj, u + 2, u + 3, jj * 1024))
            dma('global_load_lds_dwordx4 v%d, s[34:35]%s' % (4 + jj, NT))
        for jj in range(3):
            u, p = TM + 4 * jj, TM + 4 * jj + 1
            a.emit('''
            v_bfe_u32 v%d, v%d, 1, 2
            v_lshlrev_b32 v%d, 1, v%d
            v_xor_b32 v%d, v%d, v%d
            v_lshl_add_u32 v%d, v%d, 4, v%d
            v_xor_b32 v%d, 16, v%d
            ''' % (u + 2, p, u + 2, u + 2, u + 2, u + 2, u, 7 + jj, u + 2, u + 3, 10 + jj, 7 + jj))
        for t, sp in ((0, 36), (1, 38)):
            for jj in range(3):
                a.emit('s_add_u32 m0, s43, %d' % (3072 + t * 6144 + jj * 1024))
                dma('global_load_lds_dwordx4 v%d, s[%d:%d]%s' % (7 + jj, sp, sp + 1, NT))
                dma('global_load_lds_dwordx4 v%d, s[%d:%d] offset:3072%s' % (10 + jj, sp, sp + 1, NT))
        self.stamp(1)
        a.emit('''
        v_and_b32 v%d, 1, v3
        v_lshlrev_b32 v%d, 1, v%d
        v_lshrrev_b32 v%d, 1, v3
        v_or_b32 v%d, v%d, v%d
        v_bfe_u32 v%d, v2, 1, 2
        v_lshlrev_b32 v%d, 1, v%d
        v_lshrrev_b32 v%d, 3, v2
        v_or_b32 v%d, v%d, v%d
        v_xor_b32 v%d, v%d, v%d
        v_mul_u32_u24 v%d, 384, v2
        v_add_u32 v%d, s43, v%d
        v_lshl_add_u32 v13, v%d, 4, v%d
        v_xor_b32 v%d, 4, v%d
        v_lshl_add_u32 v14, v%d, 4, v%d
        ''' % (TM, TM, TM, TM + 1, TM, TM, TM + 1,
               TM + 1, TM + 1, TM + 1, TM + 2, TM + 1, TM + 1, TM + 2,
               TM + 1, TM + 1, TM,
               TM + 3, TM + 3, TM + 3,
               TM + 1, TM + 3, TM + 1, TM + 1, TM + 1, TM + 3))
        a.emit('''
        v_bfe_u32 v%d, v2, 2, 1
        v_lshlrev_b32 v%d, 2, v%d
        v_lshrrev_b32 v%d, 3, v2
        v_or_b32 v%d, v%d, v%d
        v_xor_b32 v%d, v%d, v%d
        v_lshrrev_b32 v%d, 1, v2
        v_mul_u32_u24 v%d, 384, v%d
        v_add_u32 v%d, s43, v%d
        v_lshl_add_u32 v16, v%d, 4, v%d
        v_xor_b32 v%d, 4, v%d
        v_lshl_add_u32 v15, v%d, 4, v%d
        ''' % (TM + 1, TM + 1, TM + 1, TM + 2, TM + 1, TM + 1, TM + 2,
               TM + 1, TM + 1, TM,
               TM + 2, TM + 2, TM + 2, TM + 2, TM + 2,
               TM + 1, TM + 2, TM + 1, TM + 1, TM + 1, TM + 2))
        a.emit('''
        v_mov_b32 v17, 1.0
        v_lshlrev_b32 v18, 4, v1
        v_lshlrev_b32 v19, 5, v2
        v_mov_b32 v20, 0x3f803f80
        v_mov_b32 v21, 0x3f803f80
        v_mov_b32 v22, 0x3f803f80
        v_mov_b32 v23, 0x3f803f80
        ''')
        for i in range(8):
            a.emit('v_mov_b32 v%d, 0' % (AC + i))
        A0, A1, A2, A3 = 4, 5, 6, 7
        C0, C1, C2, C3, C4, C5 = 8, 9, 10, 11, 12, 188
        a.emit('''
        v_bfe_u32 v%d, v1, 2, 4
        v_bfe_u32 v%d, v%d, 1, 2
        v_lshlrev_b32 v%d, 1, v%d
        v_lshrrev_b32 v%d, 3, v%d
        v_or_b32 v%d, v%d, v%d
        v_bfe_u32 v%d, v1, 1, 1
        s_and_b32 s44, s28, 1
        s_lshl_b32 s44, s44, 2
        v_or_b32 v%d, s44, v%d
        v_xor_b32 v%d, v%d, v%d
        v_mul_u32_u24 v%d, 384, v%d
        v_and_b32 v%d, 1, v1
        v_lshl_add_u32 v%d, v%d, 3, v%d
        s_lshr_b32 s45, s28, 1
        s_lshl_b32 s45, s45, 7
        s_add_u32 s45, s45, %d
        v_add_u32 v%d, s45, v%d
        v_lshl_add_u32 v%d, v%d, 4, v%d
        v_xor_b32 v%d, 2, v%d
        v_lshl_add_u32 v%d, v%d, 4, v%d
        v_add_u32 v%d, %d, v%d
        v_add_u32 v%d, %d, v%d
        ''' % (TM,
               TM + 1, TM, TM + 1, TM + 1, TM + 2, TM, TM + 1, TM + 1, TM + 2,
               TM + 2,
               TM + 2, TM + 2,
               TM + 1, TM + 1, TM + 2,
               TM + 3, TM,
               TM + 4,
               TM + 3, TM + 4, TM + 3,
               L_X,
               TM + 3, TM + 3,
               A0, TM + 1, TM + 3,
               TM + 1, TM + 1,
               A1, TM + 1, TM + 3,
               A2, 4 * XREG, A0,
               A3, 4 * XREG, A1))
        a.emit('''
        v_and_b32 v%d, 1, v3
        v_lshlrev_b32 v%d, 2, v%d
        v_lshrrev_b32 v%d, 1, v3
        v_or_b32 v%d, v%d, v%d
        v_xor_b32 v%d, v%d, v%d
        v_bfe_u32 v%d, v1, 2, 1
        v_lshl_add_u32 v%d, v3, 1, v%d
        v_mul_u32_u24 v%d, 384, v%d
        v_lshl_add_u32 v%d, v%d, 3, v%d
        v_add_u32 v%d, s45, v%d
        v_bfe_u32 v%d, v1, 3, 1
        v_mul_u32_u24 v%d, %d, v%d
        v_add_u32 v%d, v%d, v%d
        v_lshl_add_u32 v%d, v%d, 4, v%d
        v_xor_b32 v%d, 2, v%d
        v_lshl_add_u32 v%d, v%d, 4, v%d
        v_add_u32 v%d, %d, v%d
        v_add_u32 v%d, %d, v%d
        v_lshl_add_u32 v%d, v%d, 4, v%d
        v_xor_b32 v%d, 2, v%d
        v_lshl_add_u32 v%d, v%d, 4, v%d
        v_add_u32 v%d, %d, v%d
        v_add_u32 v%d, %d, v%d
        ''' % (TM, TM, TM,
               TM + 1, TM, TM, TM + 1,
               TM, TM, TM + 2,
               TM + 1,
               TM + 1, TM + 1,
               TM + 1, TM + 1,
               TM + 1, TM + 4, TM + 1,
               TM + 1, TM + 1,
               TM + 3,
               TM + 3, XREG, TM + 3,
               TM + 3, TM + 3, TM + 1,
               C0, TM, TM + 3,
               TM, TM,
               C1, TM, TM + 3,
               C2, 4 * XREG, C0,
               C3, 4 * XREG, C1,
               C5, TM, TM + 1,
               TM, TM,
               C4, TM, TM + 1,
               C4, 6 * XREG, C4,
               C5, 6 * XREG, C5))

        def aread(dst, ve, vo, off):
            for ks in range(6):
                a.emit('ds_read_b128 %s, v%d offset:%d' % (vr(dst + 4 * ks, 4), ve if ks % 2 == 0 else vo, off + (ks >> 1) * 128))

        a.emit('s_mov_b32 s44, %s' % f32bits(1.0 / 192))
        a.emit('s_mov_b32 s45, %s' % f32bits(1e-5))
        def finalize(t, SD, SSD):
            for r in range(4):
                a.emit('v_mul_f32 v%d, s44, v%d' % (SD + r, SD + r))
            for r in range(4):
                a.emit('v_mul_f32 v%d, v%d, v%d' % (TM + r, SD + r, SD + r))
            for r in range(4):
                a.emit('v_fma_f32 v%d, v%d, s44, -v%d' % (SSD + r, SSD + r, TM + r))
            for r in range(4):
                a.emit('v_max_f32 v%d, 0, v%d' % (SSD + r, SSD + r))
            for r in range(4):
                a.emit('v_add_f32 v%d, s45, v%d' % (SSD + r, SSD + r))
            for r in range(4):
                a.emit('v_rsq_f32 v%d, v%d' % (RS + 4 * t + r, SSD + r))
            for r in range(4):
                a.emit('v_mul_f32 v%d, v%d, v%d' % (MR + 4 * t + r, SD + r, RS + 4 * t + r))

        a.emit('s_waitcnt vmcnt(12)')
        aread(F1, 16, 15, 0)
        for ks in range(6):
            a.emit('s_waitcnt lgkmcnt(%d)' % (5 - ks))
            a.emit('%s %s, %s, %s, %s' % (MF, vr(S1, 4), vr(F1 + 4 * ks, 4), vr(ONES, 4), '0' if ks == 0 else vr(S1, 4)))
            for j in range(4):
                r = F1 + 4 * ks + j
                a.emit('v_dot2c_f32_bf16 v%d, v%d, v%d' % (AC + (j & 1), r, r))
        a.emit('v_add_f32 v%d, v%d, v%d' % (AC, AC, AC + 1))
        for t, (TT, SD, SSD, wait) in enumerate(((T0, S0, SS0, 6), (T1, S0b, SS1, 0))):
            ac = AC + 2
            if t == 1:
                for i in range(4):
                    a.emit('v_mov_b32 v%d, 0' % (ac + i))
                finalize(0, S0, SS0)
            a.emit('s_waitcnt vmcnt(%d)' % wait)
            aread(TT, 13, 14, 3072 + t * 6144)
            for ks in range(6):
                a.emit('s_waitcnt lgkmcnt(%d)' % (5 - ks))
                a.emit('%s %s, %s, %s, %s' % (MF, vr(SD, 4), vr(TT + 4 * ks, 4), vr(ONES, 4), vr(S1, 4) if ks == 0 else vr(SD, 4)))
                for j in range(4):
                    r = TT + 4 * ks + j
                    a.emit('v_dot2c_f32_bf16 v%d, v%d, v%d' % (ac + (j & 1), r, r))
                    a.emit('v_dot2c_f32_bf16 v%d, v%d, v%d' % (ac + 2 + (j & 1), r, F1 + 4 * ks + j))
            a.emit('''
            v_add_f32 v%d, v%d, v%d
            v_add_f32 v%d, v%d, v%d
            v_add_f32 v%d, v%d, v%d
            v_fma_f32 v%d, 2.0, v%d, v%d
            v_mfma_f32_16x16x4_f32 %s, v%d, v17, 0
            ''' % (ac, ac, ac + 1, ac + 2, ac + 2, ac + 3, ac, ac, AC, ac, ac + 2, ac, vr(SSD, 4), ac))
        finalize(1, S0b, SS1)
        self.stamp(2)
        a.emit('s_barrier')
        self.stamp(3)
        for ks in range(6):
            a.emit('ds_read_b128 %s, v18 offset:%d' % (vr(QK + 4 * ks, 4), L_QK + ks * 1024))
        a.emit('v_lshlrev_b32 v%d, 2, v2' % (TM + 1))
        a.emit('ds_read_b32 v%d, v%d offset:%d' % (TM, TM + 1, L_SQ))
        for ks in range(6):
            a.emit('s_waitcnt lgkmcnt(%d)' % (6 - ks))
            a.emit('%s %s, %s, %s, %s' % (MF, vr(L1, 4), vr(F1 + 4 * ks, 4), vr(QK + 4 * ks, 4), '0' if ks == 0 else vr(L1, 4)))
        def xissue(k):
            if k < 7:
                for e in range(2):
                    base = (A0, A1)[e] if k < 4 else (A2, A3)[e]
                    uoff = (k if k < 4 else k - 4) * XREG
                    for tt in range(2):
                        a.emit('ds_read_b64_tr_b16 %s, v%d offset:%d' % (vr(XQ[k * 2 + e] + tt * 2, 2), base, uoff + 3072 + tt * 6144))
            else:
                aa = k - 7
                for e in range(2):
                    for hh in range(2):
                        if aa == 0:
                            base, off = (C0, C1)[e], hh * 2 * XREG
                        elif hh == 0:
                            base, off = (C2, C3)[e], 0
                        else:
                            base, off = (C4, C5)[e], 0
                        a.emit('ds_read_b64_tr_b16 %s, v%d offset:%d' % (vr(XQ[k * 2 + e] + hh * 2, 2), base, off))
        for ks in range(6):
            a.emit('%s %s, %s, %s, %s' % (MF, vr(L0, 4), vr(T0 + 4 * ks, 4), vr(QK + 4 * ks, 4), vr(L1, 4) if ks == 0 else vr(L0, 4)))
            a.emit('%s %s, %s, %s, %s' % (MF, vr(L0b, 4), vr(T1 + 4 * ks, 4), vr(QK + 4 * ks, 4), vr(L1, 4) if ks == 0 else vr(L0b, 4)))
            if ks == 0:
                a.emit('s_waitcnt lgkmcnt(0)')
                for e in range(8):
                    a.emit('v_mul_f32 v%d, v%d, v%d' % (TM + 4 + e, MR + e, TM))
                lsk = self.lab('skipx')
                a.branch('s_cmp_ge_u32 s28, 6')
                a.branch('s_cbranch_scc1 %s' % lsk)
                for k in range(9): xissue(k)
                a.label(lsk)
        for t, LD in enumerate((L0, L0b)):
            for r in range(4):
                a.emit('v_fma_f32 v%d, v%d, v%d, -v%d' % (LD + r, LD + r, RS + 4 * t + r, TM + 4 + 4 * t + r))
        a.emit('''
        v_max3_f32 v%d, v%d, v%d, v%d
        v_max3_f32 v%d, v%d, v%d, v%d
        v_max3_f32 v%d, v%d, v%d, v%d
        v_max_f32 v%d, v%d, v%d
        v_mov_b32 v%d, v%d
        v_permlane16_swap_b32 v%d, v%d
        v_max_f32 v%d, v%d, v%d
        v_mov_b32 v%d, v%d
        v_permlane32_swap_b32 v%d, v%d
        v_max_f32 v%d, v%d, v%d
        s_lshl_b32 s46, s28, 2
        v_add_u32 v%d, s46, v19
        ds_write_b32 v%d, v%d offset:%d
        s_waitcnt lgkmcnt(0)
        s_barrier
        ds_read_b128 %s, v19 offset:%d
        ds_read_b128 %s, v19 offset:%d
        s_waitcnt lgkmcnt(0)
        v_max3_f32 v%d, v%d, v%d, v%d
        v_max3_f32 v%d, v%d, v%d, v%d
        v_max3_f32 v%d, v%d, v%d, v%d
        v_max_f32 v%d, v%d, v%d
        v_ceil_f32 v%d, v%d
        ''' % (TM, L0, L0 + 1, L0 + 2,
               TM + 1, L0 + 3, L0b, L0b + 1,
               TM, TM, L0b + 2, L0b + 3,
               TM, TM, TM + 1,
               TM + 1, TM, TM, TM + 1, TM, TM, TM + 1,
               TM + 1, TM, TM, TM + 1, TM, TM, TM + 1,
               TM + 2,
               TM + 2, TM, L_MX,
               vr(TM + 4, 4), L_MX, vr(TM + 8, 4), L_MX + 16,
               TM, TM + 4, TM + 5, TM + 6,
               TM + 1, TM + 7, TM + 8, TM + 9,
               TM, TM, TM + 10, TM + 11,
               TM, TM, TM + 1,
               TM, TM))
        self.stamp(4)
        for LD in (L0, L0b):
            for r in range(4):
                a.emit('v_sub_f32 v%d, v%d, v%d' % (LD + r, LD + r, TM))
        for LD in (L0, L0b):
            for r in range(4):
                a.emit('v_exp_f32 v%d, v%d' % (LD + r, LD + r))
        P = [L0, L0 + 1, L0 + 2, L0 + 3, L0b, L0b + 1, L0b + 2, L0b + 3]
        W = TM + 4
        a.emit('v_add_f32 v%d, v%d, v%d' % (TM, P[0], P[1]))
        a.emit('v_add_f32 v%d, v%d, v%d' % (TM + 1, P[2], P[3]))
        a.emit('v_mul_f32 v%d, v%d, v%d' % (TM + 2, P[0], MR))
        a.emit('v_mul_f32 v%d, v%d, v%d' % (TM + 3, P[1], MR + 1))
        for e in range(4, 8, 2):
            a.emit('v_add_f32 v%d, v%d, v%d' % (TM, TM, P[e]))
            a.emit('v_add_f32 v%d, v%d, v%d' % (TM + 1, TM + 1, P[e + 1]))
        for e in range(2, 8, 2):
            a.emit('v_fmac_f32 v%d, v%d, v%d' % (TM + 2, P[e], MR + e))
            a.emit('v_fmac_f32 v%d, v%d, v%d' % (TM + 3, P[e + 1], MR + e + 1))
        for e in range(8):
            a.emit('v_mul_f32 v%d, v%d, v%d' % (P[e], P[e], RS + e))
        a.emit('v_add_f32 v%d, v%d, v%d' % (TM, TM, TM + 1))
        a.emit('v_add_f32 v%d, v%d, v%d' % (TM + 2, TM + 2, TM + 3))
        for i in range(4):
            a.emit('v_cvt_pk_bf16_f32 v%d, v%d, v%d' % (W + i, P[2 * i], P[2 * i + 1]))
        a.emit('v_mfma_f32_16x16x4_f32 %s, v17, v%d, 0' % (vr(QK, 4), TM))
        a.emit('v_mfma_f32_16x16x4_f32 %s, v17, v%d, 0' % (vr(QK + 4, 4), TM + 2))
        a.emit('''
        s_lshl_b32 s46, s28, 10
        v_add_u32 v%d, s46, v18
        ds_write_b128 v%d, %s offset:%d
        v_add_f32 v%d, v%d, v%d
        v_add_f32 v%d, v%d, v%d
        v_add_f32 v%d, v%d, v%d
        v_add_f32 v%d, v%d, v%d
        v_add_f32 v%d, v%d, v%d
        v_add_f32 v%d, v%d, v%d
        v_cvt_pk_bf16_f32 v%d, v%d, v%d
        s_lshr_b32 s46, s28, 2
        s_lshl_b32 s46, s46, 10
        s_and_b32 s47, s28, 3
        s_lshl_b32 s47, s47, 2
        s_add_u32 s46, s46, s47
        v_add_u32 v%d, s46, v18
        ds_write_b32 v%d, v%d offset:%d
        s_lshl_b32 s46, s28, 2
        v_add_u32 v%d, s46, v19
        ds_write_b32 v%d, v%d offset:%d
        ds_write_b32 v%d, v%d offset:%d
        s_waitcnt lgkmcnt(0)
        s_barrier
        ''' % (TM + 3, TM + 3, vr(W, 4), L_WF,
               TM + 8, P[0], P[1],
               TM + 9, P[4], P[5],
               TM + 10, P[2], P[3],
               TM + 11, P[6], P[7],
               TM + 8, TM + 8, TM + 9,
               TM + 10, TM + 10, TM + 11,
               TM + 8, TM + 8, TM + 10,
               TM + 3, TM + 3, TM + 8, L_WC,
               TM + 3,
               TM + 3, QK, L_LS,
               TM + 3, QK + 4, L_CO))
        self.stamp(5)
        a.branch('s_cmp_ge_u32 s28, 6')
        a.branch('s_cbranch_scc1 L_end')
        WB = 24
        ACC = 60
        CW = 68
        for k in range(9):
            a.emit('ds_read_b128 %s, v18 offset:%d' % (vr(WB + 4 * k, 4), (L_WF + k * 1024) if k < 7 else (L_WC + (k - 7) * 1024)))
        a.emit('ds_read_b128 %s, v19 offset:%d' % (vr(CW, 4), L_CO))
        a.emit('ds_read_b128 %s, v19 offset:%d' % (vr(CW + 4, 4), L_CO + 16))
        a.emit('''
        v_mul_u32_u24 v%d, %d, v2
        v_and_b32 v%d, 1, v3
        v_lshlrev_b32 v%d, 5, v%d
        v_lshrrev_b32 v%d, 1, v3
        v_lshl_add_u32 v%d, v%d, 4, v%d
        v_add_u32 v%d, v%d, v%d
        s_mul_i32 s46, s30, 384
        s_lshl_b32 s47, s28, 6
        s_add_u32 s46, s46, s47
        s_add_u32 s46, s46, %d
        v_add_u32 v%d, s46, v%d
        ''' % (TM, 224 * 384, TM + 1, TM + 1, TM + 1, TM + 2, TM + 1, TM + 2, TM + 1, TM, TM, TM + 1, WS_Z, TM, TM))
        for k in range(9):
            a.emit('s_waitcnt lgkmcnt(%d)' % (10 - k))
            for e in range(2):
                a.emit('%s %s, %s, %s, %s' % (MF, vr(ACC + 4 * e, 4), vr(XQ[k * 2 + e], 4), vr(WB + 4 * k, 4), '0' if k == 0 else vr(ACC + 4 * e, 4)))
        a.emit('s_waitcnt lgkmcnt(0)')
        a.emit('''
        v_add_f32 v%d, v%d, v%d
        v_add_f32 v%d, v%d, v%d
        v_add_f32 v%d, v%d, v%d
        v_add_f32 v%d, v%d, v%d
        v_add_f32 v%d, v%d, v%d
        v_add_f32 v%d, v%d, v%d
        v_add_f32 v%d, v%d, v%d
        ''' % (CW, CW, CW + 1, CW + 2, CW + 2, CW + 3, CW + 4, CW + 4, CW + 5, CW + 6, CW + 6, CW + 7,
               CW, CW, CW + 2, CW + 4, CW + 4, CW + 6, CW, CW, CW + 4))
        for e in range(2):
            for r in range(4):
                a.emit('v_sub_f32 v%d, v%d, v%d' % (ACC + 4 * e + r, ACC + 4 * e + r, CW))
        O = 76
        a.emit('''
        v_cvt_pk_bf16_f32 v%d, v%d, v%d
        v_cvt_pk_bf16_f32 v%d, v%d, v%d
        v_cvt_pk_bf16_f32 v%d, v%d, v%d
        v_cvt_pk_bf16_f32 v%d, v%d, v%d
        v_permlane16_swap_b32 v%d, v%d
        v_permlane16_swap_b32 v%d, v%d
        global_store_dwordx4 v%d, %s, s[26:27] sc1
        ''' % (O, ACC, ACC + 1, O + 1, ACC + 2, ACC + 3, O + 2, ACC + 4, ACC + 5, O + 3, ACC + 6, ACC + 7,
               O, O + 2, O + 1, O + 3, TM, vr(O, 4)))
        self.stamp(6)
        a.branch('s_branch L_end')

        a.label(lh)
        a.emit('''
        v_lshlrev_b32 v18, 4, v1
        v_lshlrev_b32 v19, 5, v2
        v_mov_b32 v4, 0
        v_mov_b32 v5, 0xff800000
        v_mov_b32 v17, 1.0
        v_mov_b32 v20, 0x3f803f80
        v_mov_b32 v21, 0x00003f80
        v_mov_b32 v22, 0x3f800000
        ds_write_b32 v18, v4 offset:%d
        ds_write_b32 v19, v5 offset:%d
        ds_write_b32 v19, v4 offset:%d
        ds_write_b32 v19, v4 offset:%d
        ''' % (L_WC + 1024 + 12, L_MX + 28, L_LS + 28, L_CO + 28))
        lp, ld = self.lab('poll'), self.lab('polld')
        a.emit('''
        v_and_b32 v6, 1, v1
        v_bfe_u32 v7, v1, 1, 1
        v_lshl_add_u32 v6, v7, 4, v6
        v_bfe_u32 v7, v1, 2, 1
        v_lshl_add_u32 v6, v7, 5, v6
        v_lshlrev_b32 v6, 2, v6
        v_and_b32 v7, 3, v1
        v_mov_b32 v8, 0x01010101
        v_mov_b32 v9, 0x00000101
        v_cmp_eq_u32 vcc, 1, v7
        v_cndmask_b32 v7, v8, v9, vcc
        s_mov_b32 exec_lo, 0xff
        s_mov_b32 exec_hi, 0
        s_mov_b32 s42, 0
        ''')
        a.label(lp)
        a.emit('''
        global_load_dword v8, v6, s[24:25] sc1
        s_add_u32 s42, s42, 1
        s_waitcnt vmcnt(0)
        v_cmp_ne_u32 vcc, v8, v7
        ''')
        a.branch('s_cbranch_vccz %s' % ld)
        a.emit('s_sleep %d' % self.opt.get('sleep', 2))
        a.emit('s_cmp_lt_u32 s42, 0x40000')
        a.branch('s_cbranch_scc1 %s' % lp)
        a.label(ld)
        a.emit('s_mov_b64 exec, -1')
        self.stamp(2)
        PB = 24
        a.emit('v_add_u32 v9, 6144, v18')
        a.emit('v_add_u32 v10, 12288, v18')
        a.emit('v_add_u32 v11, 4096, v18')
        a.emit('v_add_u32 v12, 4096, v9')
        a.emit('v_add_u32 v13, 4096, v10')
        for ks in range(6):
            for p in range(3):
                base = (18, 9, 10)[p] if ks < 4 else (11, 12, 13)[p]
                a.emit('global_load_dwordx4 %s, v%d, s[26:27] offset:%d sc1' % (vr(PB + (ks * 3 + p) * 4, 4), base, (ks % 4) * 1024))
        R = 96
        TL = 120
        a.emit('v_mov_b32 v14, 0')
        a.emit('v_mov_b32 v15, 0')
        for ks in range(6):
            a.emit('s_waitcnt vmcnt(%d)' % (15 - 3 * ks))
            tl = TL + (ks & 1) * 8
            for p in range(3):
                for j in range(4):
                    src = PB + (ks * 3 + p) * 4 + j
                    c = lambda x: '0' if p == 0 else 'v%d' % x
                    a.emit('v_dot2_f32_bf16 v%d, v%d, v21, %s' % (tl + 2 * j, src, c(tl + 2 * j)))
                    a.emit('v_dot2_f32_bf16 v%d, v%d, v22, %s' % (tl + 2 * j + 1, src, c(tl + 2 * j + 1)))
            for j in range(4):
                a.emit('v_cvt_pk_bf16_f32 v%d, v%d, v%d' % (R + 4 * ks + j, tl + 2 * j, tl + 2 * j + 1))
            a.emit('ds_write_b128 v18, %s offset:%d' % (vr(R + 4 * ks, 4), L_QK + ks * 1024))
            for j in range(4):
                a.emit('v_dot2c_f32_bf16 v%d, v%d, v20' % (14 + (j & 1), R + 4 * ks + j))
        a.emit('''
        v_add_f32 v14, v14, v15
        v_mfma_f32_16x16x4_f32 v[136:139], v17, v14, 0
        v_lshlrev_b32 v4, 2, v2
        ds_write_b32 v4, v136 offset:%d
        s_waitcnt lgkmcnt(0)
        s_barrier
        ''' % L_SQ)
        self.stamp(3)
        a.emit('''
        s_barrier
        s_barrier
        ds_read_b128 v[24:27], v19 offset:%d
        ds_read_b128 v[28:31], v19 offset:%d
        ds_read_b128 v[32:35], v19 offset:%d
        ds_read_b128 v[36:39], v19 offset:%d
        s_lshl_b32 s44, s30, 7
        s_add_u32 s44, s44, %d
        v_lshl_add_u32 v6, v2, 3, s44
        s_waitcnt lgkmcnt(0)
        v_max3_f32 v4, v24, v25, v26
        v_max3_f32 v5, v27, v28, v29
        v_max3_f32 v4, v4, v30, v31
        v_max_f32 v4, v4, v5
        v_ceil_f32 v4, v4
        v_add_f32 v32, v32, v33
        v_add_f32 v34, v34, v35
        v_add_f32 v36, v36, v37
        v_add_f32 v38, v38, v39
        v_add_f32 v32, v32, v34
        v_add_f32 v36, v36, v38
        v_add_f32 v5, v32, v36
        s_mov_b32 exec_lo, 0xffff
        s_mov_b32 exec_hi, 0
        global_store_dwordx2 v6, v[4:5], s[26:27] sc1
        ''' % (L_MX, L_MX + 16, L_LS, L_LS + 16, WS_ML))
        self.stamp(6)
        a.branch('s_branch L_end')

    def role_final(self):
        a = self.a
        WV, WO = 24, 72
        CS = 120
        QR = 128
        ZL = 132
        ACC = 188
        ONES = 196
        TM = 200
        a.emit('''
        v_mov_b32 v%d, -1
        v_mov_b32 v%d, -1
        v_mov_b32 v%d, -1
        v_mov_b32 v%d, -1
        s_mul_i32 s33, s30, 86016
        s_add_u32 s33, s33, %d
        v_lshl_add_u32 v4, v0, 4, s33
        ''' % (TM, TM + 1, TM + 2, TM + 3, WS_Z))
        for i in range(10):
            a.emit('global_store_dwordx4 v4, %s, s[26:27] sc1' % vr(TM, 4))
            a.emit('v_add_u32 v4, 8192, v4')
        a.emit('''
        s_mul_i32 s33, s30, 1792
        s_add_u32 s33, s33, %d
        v_lshl_add_u32 v5, v0, 4, s33
        v_cmp_gt_u32 vcc, 256, v0
        v_cndmask_b32 v4, v5, v4, vcc
        v_cmp_gt_u32 vcc, 368, v0
        s_and_saveexec_b64 s[40:41], vcc
        ''' % (WS_ML - 4096))
        lsk = self.lab('initsk')
        a.branch('s_cbranch_execz %s' % lsk)
        a.emit('global_store_dwordx4 v4, %s, s[26:27] sc1' % vr(TM, 4))
        a.label(lsk)
        a.emit('s_mov_b64 exec, -1')
        a.emit('s_waitcnt vmcnt(0)')
        a.emit('s_barrier')
        lnf = self.lab('noflag')
        a.branch('s_cmp_lg_u32 s28, 0')
        a.branch('s_cbranch_scc1 %s' % lnf)
        a.emit('''
        s_and_b32 s33, s30, 1
        s_lshl_b32 s33, s33, 7
        s_lshr_b32 s34, s30, 1
        s_add_u32 s33, s33, s34
        s_add_u32 s33, s33, 64
        ''')
        self.flag_store(33, 5)
        a.label(lnf)
        self.stamp(1)
        a.emit('''
        v_mov_b32 v%d, 0x3f803f80
        v_mov_b32 v%d, 0x3f803f80
        v_mov_b32 v%d, 0x3f803f80
        v_mov_b32 v%d, 0x3f803f80
        s_mul_i32 s33, s28, 9216
        v_lshl_add_u32 v4, v1, 4, s33
        s_add_u32 s34, s33, %d
        s_add_u32 s35, s33, %d
        ''' % (ONES, ONES + 1, ONES + 2, ONES + 3, LF_WV, LF_WO))
        for (sp, sl) in ((18, 34), (20, 35)):
            for i in range(9):
                a.emit('s_add_u32 m0, s%d, %d' % (sl, i * 1024))
                if i % 4 == 0 and i: a.emit('v_add_u32 v5, %d, v4' % (i * 1024))
                a.emit('v_add_u32 v5, %d, v4' % (i * 1024))
                a.emit('global_load_lds_dwordx4 v5, s[%d:%d]' % (sp, sp + 1))
        a.emit('''
        s_mul_i32 s33, s30, 384
        s_lshl_b32 s34, s28, 6
        s_add_u32 s33, s33, s34
        v_lshl_add_u32 v4, v3, 3, s33
        v_min_u32 v4, 6104, v4
        global_load_dwordx2 %s, v4, s[8:9]
        global_load_dwordx2 %s, v4, s[8:9] offset:32
        s_waitcnt vmcnt(0)
        s_barrier
        ''' % (vr(QR, 2), vr(QR + 2, 2)))
        lnw = self.lab('fin_now')
        a.branch('s_cmp_ge_u32 s28, 6')
        a.branch('s_cbranch_scc1 %s' % lnw)
        a.emit('''
        v_bfe_u32 v6, v1, 2, 2
        v_lshl_add_u32 v6, v3, 3, v6
        v_mul_u32_u24 v6, 384, v6
        v_and_b32 v7, 3, v1
        v_lshl_add_u32 v6, v7, 3, v6
        s_lshl_b32 s33, s28, 6
        s_add_u32 s34, s33, %d
        v_add_u32 v7, s34, v6
        s_add_u32 s34, s33, %d
        v_add_u32 v8, s34, v6
        ''' % (LF_WV, LF_WO))
        for (vb, dst) in ((7, WV), (8, WO)):
            for d in range(2):
                for ks in range(6):
                    for h in range(2):
                        a.emit('ds_read_b64_tr_b16 %s, v%d offset:%d' % (vr(dst + (d * 6 + ks) * 4 + 2 * h, 2), vb, ks * 12288 + h * 1536 + d * 32))
        a.emit('s_waitcnt lgkmcnt(0)')
        for ks in range(6):
            for d in range(2):
                a.emit('%s %s, %s, %s, %s' % (MF, vr(CS + 4 * d, 4), vr(WV + (d * 6 + ks) * 4, 4), vr(ONES, 4), '0' if ks == 0 else vr(CS + 4 * d, 4)))
        a.label(lnw)
        self.stamp(2)
        a.emit('''
        s_mul_i32 s33, s28, 28
        v_min_u32 v4, 27, v1
        v_add_u32 v4, s33, v4
        v_lshlrev_b32 v4, 7, v4
        s_lshl_b32 s34, s30, 3
        s_add_u32 s34, s34, %d
        v_add_u32 v4, s34, v4
        s_mul_i32 s34, s30, 224
        s_add_u32 s34, s34, s33
        s_mul_i32 s34, s34, 384
        s_add_u32 s34, s34, %d
        v_min_u32 v5, 47, v1
        v_lshlrev_b32 v5, 4, v5
        v_add_u32 v5, s34, v5
        v_add_u32 v6, 3840, v5
        v_add_u32 v7, 7680, v5
        s_mov_b32 s42, 0
        ''' % (WS_ML, WS_Z))
        lp, ld = self.lab('poll'), self.lab('polld')
        a.label(lp)
        a.emit('''
        global_load_dwordx2 %s, v4, s[26:27] sc1
        s_add_u32 s42, s42, 1
        s_waitcnt vmcnt(0)
        v_max_u32 v8, v%d, v%d
        v_cmp_eq_u32 vcc, -1, v8
        ''' % (vr(TM, 2), TM, TM + 1))
        a.branch('s_cbranch_vccz %s' % ld)
        a.emit('s_sleep %d' % self.opt.get('fsleep', 1))
        a.emit('s_cmp_lt_u32 s42, 0x40000')
        a.branch('s_cbranch_scc1 %s' % lp)
        a.label(ld)
        self.stamp(3)
        def zload(i):
            a.emit('global_load_dwordx4 %s, v%d, s[26:27] offset:%d sc1' % (vr(ZL + 4 * i, 4), 5 + i // 5, (i % 5) * 768))
        for i in range(14): zload(i)
        M, L = TM, TM + 1
        X = TM + 2
        a.emit('v_mov_b32 v%d, v%d' % (X, M))
        for sh in (1, 2, 4, 8):
            a.emit('v_max_f32_dpp v%d, v%d, v%d row_ror:%d row_mask:0xf bank_mask:0xf' % (X, X, X, sh))
        a.emit('v_mov_b32 v%d, v%d' % (X + 1, X))
        a.emit('v_permlane16_swap_b32 v%d, v%d' % (X, X + 1))
        a.emit('v_max_f32 v%d, v%d, v%d' % (X, X, X + 1))
        a.emit('v_mov_b32 v%d, v%d' % (X + 1, X))
        a.emit('v_permlane32_swap_b32 v%d, v%d' % (X, X + 1))
        a.emit('v_max_f32 v%d, v%d, v%d' % (X, X, X + 1))
        a.emit('''
        s_lshl_b32 s35, s28, 2
        v_mov_b32 v8, s35
        v_mov_b32 v9, 0
        ds_write_b32 v8, v%d offset:%d
        s_waitcnt lgkmcnt(0)
        s_barrier
        ds_read_b128 %s, v9 offset:%d
        ds_read_b128 %s, v9 offset:%d
        s_waitcnt lgkmcnt(0)
        v_max3_f32 v%d, v%d, v%d, v%d
        v_max3_f32 v%d, v%d, v%d, v%d
        v_max3_f32 v%d, v%d, v%d, v%d
        v_max_f32 v%d, v%d, v%d
        ''' % (X, LF_WM, vr(TM + 4, 4), LF_WM, vr(TM + 8, 4), LF_WM + 16,
               X, TM + 4, TM + 5, TM + 6, X + 1, TM + 7, TM + 8, TM + 9, X, X, TM + 10, TM + 11, X, X, X + 1))
        a.emit('v_sub_f32 v%d, v%d, v%d' % (M, M, X))
        a.emit('v_exp_f32 v%d, v%d' % (M, M))
        a.emit('v_mul_f32 v%d, v%d, v%d' % (L, L, M))
        a.emit('v_cmp_gt_u32 vcc, 28, v1')
        a.emit('v_cndmask_b32 v%d, 0, v%d, vcc' % (L, L))
        a.emit('''
        v_lshrrev_b32 v%d, 16, v%d
        s_lshl_b32 s34, s28, 7
        s_add_u32 s34, s34, %d
        v_lshl_add_u32 v9, v1, 2, s34
        s_mov_b32 exec_hi, 0
        ds_write_b32 v9, v%d
        s_mov_b32 exec_hi, -1
        v_cmp_lt_u32 vcc, 23, v1
        v_cndmask_b32 v9, 0, 4, vcc
        v_add_u32 v9, s34, v9
        ''' % (M, M, LF_SCT, M))
        for sh in (1, 2, 4, 8):
            a.emit('v_add_f32_dpp v%d, v%d, v%d row_ror:%d row_mask:0xf bank_mask:0xf' % (L, L, L, sh))
        a.emit('v_mov_b32 v%d, v%d' % (X + 1, L))
        a.emit('v_permlane16_swap_b32 v%d, v%d' % (L, X + 1))
        a.emit('v_add_f32 v%d, v%d, v%d' % (L, L, X + 1))
        a.emit('s_waitcnt lgkmcnt(0)')
        SCL = TM + 4
        for i in range(14):
            a.emit('ds_read_b32 v%d, v9 offset:%d' % (SCL + i, i * 8))
        a.emit('''
        s_mov_b64 exec, 1
        ds_write_b32 v8, v%d offset:%d
        s_mov_b64 exec, -1
        ''' % (L, LF_WL))
        HI = TM + 20
        UM = TM + 22
        lredo, lok = self.lab('redo'), self.lab('zok')
        a.label(lredo)
        for i in range(8):
            a.emit('v_mov_b32 v%d, 0' % (ACC + i))
        a.emit('v_mov_b32 v%d, 0' % UM)
        a.emit('s_waitcnt lgkmcnt(0)')
        for i in range(14):
            a.emit('v_lshlrev_b32 v%d, 16, v%d' % (HI + (i & 1), SCL + i))
            a.emit('s_waitcnt vmcnt(%d)' % (13 - i))
            a.emit('v_max3_u32 v%d, v%d, v%d, v%d' % (UM, UM, ZL + 4 * i, ZL + 4 * i + 1))
            for j in range(4):
                a.emit('v_dot2c_f32_bf16 v%d, v%d, v%d' % (ACC + 2 * j, ZL + 4 * i + j, SCL + i))
                a.emit('v_dot2c_f32_bf16 v%d, v%d, v%d' % (ACC + 2 * j + 1, ZL + 4 * i + j, HI + (i & 1)))
            a.emit('v_max3_u32 v%d, v%d, v%d, v%d' % (UM, UM, ZL + 4 * i + 2, ZL + 4 * i + 3))
        a.emit('v_cmp_eq_u32 vcc, -1, v%d' % UM)
        a.branch('s_cbranch_vccz %s' % lok)
        a.emit('s_add_u32 s42, s42, 1')
        a.emit('s_cmp_ge_u32 s42, 0x40000')
        a.branch('s_cbranch_scc1 %s' % lok)
        for i in range(14): zload(i)
        a.branch('s_branch %s' % lredo)
        a.label(lok)
        a.emit('''
        v_cvt_pk_bf16_f32 v%d, v%d, v%d
        v_cvt_pk_bf16_f32 v%d, v%d, v%d
        v_cvt_pk_bf16_f32 v%d, v%d, v%d
        v_cvt_pk_bf16_f32 v%d, v%d, v%d
        v_cmp_lt_u32 vcc, 23, v1
        v_cndmask_b32 v8, 0, 16, vcc
        v_lshl_add_u32 v8, v1, 4, v8
        s_mul_i32 s34, s28, 800
        v_add_u32 v8, s34, v8
        s_mov_b32 exec_hi, 0xffff
        ds_write_b128 v8, %s offset:%d
        s_mov_b32 exec_hi, -1
        s_waitcnt lgkmcnt(0)
        s_barrier
        ''' % (TM + 4, ACC, ACC + 1, TM + 5, ACC + 2, ACC + 3, TM + 6, ACC + 4, ACC + 5, TM + 7, ACC + 6, ACC + 7,
               vr(TM + 4, 4), LF_ZC))
        self.stamp(4)
        a.branch('s_cmp_ge_u32 s28, 6')
        a.branch('s_cbranch_scc1 L_end')
        ZB = ZL
        WL = ZL + 24
        a.emit('''
        v_mul_u32_u24 v6, 400, v2
        v_lshl_add_u32 v6, v3, 4, v6
        v_mov_b32 v7, 0
        ''')
        for ks in range(6):
            a.emit('ds_read_b128 %s, v6 offset:%d' % (vr(ZB + 4 * ks, 4), LF_ZC + ks * 64))
        a.emit('ds_read_b128 %s, v7 offset:%d' % (vr(WL, 4), LF_WL))
        a.emit('ds_read_b128 %s, v7 offset:%d' % (vr(WL + 4, 4), LF_WL + 16))
        DA = TM + 24
        ZS = TM + 32
        for ks in range(6):
            c = lambda r: '0' if ks == 0 else vr(r, 4)
            a.emit('s_waitcnt lgkmcnt(%d)' % (7 - ks))
            a.emit('%s %s, %s, %s, %s' % (MF, vr(ZS, 4), vr(ONES, 4), vr(ZB + 4 * ks, 4), c(ZS)))
            for d in range(2):
                a.emit('%s %s, %s, %s, %s' % (MF, vr(DA + 4 * d, 4), vr(WV + (d * 6 + ks) * 4, 4), vr(ZB + 4 * ks, 4), c(DA + 4 * d)))
        a.emit('s_waitcnt lgkmcnt(0)')
        a.emit('''
        v_add_f32 v%d, v%d, v%d
        v_add_f32 v%d, v%d, v%d
        v_add_f32 v%d, v%d, v%d
        v_add_f32 v%d, v%d, v%d
        v_add_f32 v%d, v%d, v%d
        v_add_f32 v%d, v%d, v%d
        v_add_f32 v%d, v%d, v%d
        v_rcp_f32 v%d, v%d
        ''' % (WL, WL, WL + 1, WL + 2, WL + 2, WL + 3, WL + 4, WL + 4, WL + 5, WL + 6, WL + 6, WL + 7,
               WL, WL, WL + 2, WL + 4, WL + 4, WL + 6, WL, WL, WL + 4, WL, WL))
        a.emit('v_mul_f32 v%d, %s, v%d' % (ZS, f32bits(1.0 / 192), ZS))
        for d in range(2):
            for r in range(4):
                x = DA + 4 * d + r
                a.emit('v_fma_f32 v%d, -v%d, v%d, v%d' % (x, ZS, CS + 4 * d + r, x))
        for d in range(2):
            for r in range(4):
                x = DA + 4 * d + r
                a.emit('v_mul_f32 v%d, v%d, v%d' % (x, x, WL))
        C = TM + 2
        a.emit('''
        v_cvt_pk_bf16_f32 v%d, v%d, v%d
        v_cvt_pk_bf16_f32 v%d, v%d, v%d
        v_cvt_pk_bf16_f32 v%d, v%d, v%d
        v_cvt_pk_bf16_f32 v%d, v%d, v%d
        s_lshl_b32 s34, s28, 6
        v_mul_u32_u24 v7, 400, v2
        v_lshl_add_u32 v7, v3, 3, v7
        v_add_u32 v7, s34, v7
        ds_write_b64 v7, %s offset:%d
        ds_write_b64 v7, %s offset:%d
        s_waitcnt lgkmcnt(0)
        s_barrier
        ''' % (C, DA, DA + 1, C + 1, DA + 2, DA + 3, C + 2, DA + 4, DA + 5, C + 3, DA + 6, DA + 7,
               vr(C, 2), LF_CX, vr(C + 2, 2), LF_CX + 32))
        for ks in range(6):
            a.emit('ds_read_b128 %s, v6 offset:%d' % (vr(ZB + 4 * ks, 4), LF_CX + ks * 64))
        for ks in range(6):
            a.emit('s_waitcnt lgkmcnt(%d)' % (5 - ks))
            for d in range(2):
                a.emit('%s %s, %s, %s, %s' % (MF, vr(DA + 4 * d, 4), vr(WO + (d * 6 + ks) * 4, 4), vr(ZB + 4 * ks, 4), '0' if ks == 0 else vr(DA + 4 * d, 4)))
        for sh in (1, 2, 4, 8):
            for x in range(8):
                a.emit('v_add_f32_dpp v%d, v%d, v%d row_ror:%d row_mask:0xf bank_mask:0xf' % (DA + x, DA + x, DA + x, sh))
        a.emit('''
        v_cvt_pk_bf16_f32 v%d, v%d, v%d
        v_cvt_pk_bf16_f32 v%d, v%d, v%d
        v_cvt_pk_bf16_f32 v%d, v%d, v%d
        v_cvt_pk_bf16_f32 v%d, v%d, v%d
        ''' % (C, DA, DA + 1, C + 1, DA + 2, DA + 3, C + 2, DA + 4, DA + 5, C + 3, DA + 6, DA + 7))
        for i in range(4):
            t0 = DA + 4 * (i & 1)
            a.emit('''
            v_lshlrev_b32 v%d, 16, v%d
            v_and_b32 v%d, 0xffff0000, v%d
            v_lshlrev_b32 v%d, 16, v%d
            v_and_b32 v%d, 0xffff0000, v%d
            v_add_f32 v%d, v%d, v%d
            v_add_f32 v%d, v%d, v%d
            v_cvt_pk_bf16_f32 v%d, v%d, v%d
            ''' % (t0, C + i, t0 + 1, C + i, t0 + 2, QR + i, t0 + 3, QR + i,
                   t0, t0, t0 + 2, t0 + 1, t0 + 1, t0 + 3, C + i, t0, t0 + 1))
        a.emit('''
        s_mul_i32 s33, s30, 384
        s_lshl_b32 s34, s28, 6
        s_add_u32 s33, s33, s34
        v_lshl_add_u32 v4, v3, 3, s33
        s_mov_b32 exec_lo, 0x00010001
        s_mov_b32 exec_hi, 0x00010001
        global_store_dwordx2 v4, %s, s[22:23]
        global_store_dwordx2 v4, %s, s[22:23] offset:32
        ''' % (vr(C, 2), vr(C + 2, 2)))
        self.stamp(5)
        a.branch('s_branch L_end')


HEADER = open('standalone__detection_seg_dino__vision.s.ref').read().split('; Override')[0]

def kd(name, vgpr=256, sgpr=102):
    return '''.amdhsa_kernel %s
  .amdhsa_next_free_vgpr %d
  .amdhsa_next_free_sgpr %d
  .amdhsa_accum_offset %d
  .amdhsa_group_segment_fixed_size 0
  .amdhsa_kernarg_size 80
  .amdhsa_user_sgpr_count 2
  .amdhsa_user_sgpr_kernarg_segment_ptr 1
  .amdhsa_system_sgpr_workgroup_id_x 1
.end_amdhsa_kernel
''' % (name, vgpr, sgpr, (vgpr + 3) // 4 * 4)

def build(stamps=False, opt=None):
    out = HEADER
    out += '; @launch grid=(256,1,1) block=(512,1,1) lds=%d\n' % LDS_TOTAL
    out += '.amdgcn_target "amdgcn-amd-amdhsa--gfx950"\n.text\n'
    G = Gen(stamps, opt)
    a = G.a
    n = KNAME
    a.raw('.globl %s\n.p2align 8\n.type %s,@function\n%s:' % (n, n, n))
    a.branch('s_cmp_ge_u32 s2, 256')
    a.branch('s_cbranch_scc1 L_exit')
    G.stamp_init()
    G.prologue()
    G.stamp(0)
    a.branch('s_cmp_ge_u32 s2, 32')
    a.branch('s_cbranch_scc1 L_role_main')
    a.branch('s_cmp_ge_u32 s2, 16')
    a.branch('s_cbranch_scc1 L_role_final')
    a.branch('s_cmp_ge_u32 s2, 12')
    a.branch('s_cbranch_scc1 L_end')
    a.emit('s_mov_b32 s30, s2')
    G.role_qk()
    a.label('L_role_final')
    a.emit('s_sub_u32 s30, s2, 16')
    G.role_final()
    a.label('L_role_main')
    a.emit('s_sub_u32 s30, s2, 32')
    G.role_main()
    a.label('L_end')
    G.stamp_flush()
    a.label('L_exit')
    a.emit('s_endpgm')
    out += a.text()
    out += '.section .rodata,"a"\n.p2align 6\n' + kd(n)
    return out

if __name__ == '__main__':
    ap = argparse.ArgumentParser()
    ap.add_argument('--stamps', action='store_true')
    ap.add_argument('--opt', default='')
    ap.add_argument('-o', default='standalone__detection_seg_dino__vision.s')
    args = ap.parse_args()
    OPT = {}
    for kv in args.opt.split(','):
        if kv:
            k, v = kv.split('='); OPT[k] = int(v)
    s = build(args.stamps, OPT)
    open(args.o, 'w').write(s)
    print('wrote', args.o, len(s), 'bytes')
```

```python
import sys, argparse, struct
from asmdsl import Asm

KNAME = 'standalone__detection_seg_dino__vision_kernel'

WS_QK = 0
WS_ML = 32768
WS_Z = 131072
ZREG = 224 * 192
WS_WVO = 0x200000
WS_WF = 0x220000

XREG = 15392
L_QK = 0
L_WF = 6400
L_WC = L_WF + 7168
L_SQ = L_WC + 2048
L_MX = L_SQ + 256
L_LS = L_MX + 512
L_CO = L_LS + 512
L_X = 17408
H_RED = 0
H_ZC = 0
H_SCT = 6656
H_WM = 7680
H_WL = 7712
H_NON = 12288
H_Q = 12544
H_WK = 18688
H_WQ = 24832
H_WV = 12544
H_WO = 49408
LDS_TOTAL = 61696

QSCALE = (192.0 ** -0.5) * 1.4426950408889634

def f32bits(x):
    return '0x%08x' % struct.unpack('<I', struct.pack('<f', x))[0]

def vr(a, n):
    return 'v[%d:%d]' % (a, a + n - 1)

MF = 'v_mfma_f32_16x16x32_bf16'
MF4 = 'v_mfma_f32_16x16x4_f32'

class Gen:
    def __init__(self, stamps=False, opt=None):
        self.a = Asm()
        self.stamps = stamps
        self.opt = opt or {}
        self.uid = 0

    def lab(self, base):
        self.uid += 1
        return 'L_%s_%d' % (base, self.uid)

    def e(self, text):
        self.a.emit(text)

    def br(self, text):
        for l in text.strip().split('\n'):
            self.a.branch(l.strip())

    def prologue(self):
        self.e('''
        s_load_dwordx16 s[8:23], s[0:1], 0
        s_load_dwordx4 s[24:27], s[0:1], 64
        v_and_b32 v1, 63, v0
        v_lshrrev_b32 v4, 6, v0
        v_and_b32 v2, 15, v1
        v_readfirstlane_b32 s28, v4
        v_lshrrev_b32 v3, 4, v1
        s_waitcnt lgkmcnt(0)
        ''')

    def stamp(self, idx):
        if not self.stamps: return
        self.e('s_memrealtime s[%d:%d]' % (60 + 2 * idx, 61 + 2 * idx))
        self.e('s_waitcnt lgkmcnt(0)')

    def stamp_init(self):
        if not self.stamps: return
        for i in range(24):
            self.e('s_mov_b32 s%d, 0' % (60 + i))

    def stamp_flush(self):
        if not self.stamps: return
        self.e('''
        s_lshl_b32 s92, s2, 3
        s_add_u32 s92, s92, s28
        s_lshl_b32 s92, s92, 7
        s_add_u32 s92, s92, %d
        s_mov_b64 exec, 1
        v_mov_b32 v4, s92
        ''' % 0x1000000)
        for i in range(12):
            self.e('v_mov_b32 v6, s%d' % (60 + 2 * i))
            self.e('v_mov_b32 v7, s%d' % (61 + 2 * i))
            self.e('global_store_dwordx2 v4, v[6:7], s[26:27] offset:%d' % (i * 8))
            self.e('s_nop 1')

    def setexec(self, mask):
        lo, hi = mask & 0xffffffff, mask >> 32
        if mask == (1 << 64) - 1:
            self.e('s_mov_b64 exec, -1')
        else:
            self.e('s_mov_b32 exec_lo, 0x%x' % lo)
            self.e('s_mov_b32 exec_hi, 0x%x' % hi)

    def poll_dbg(self, byte_off, ndw, vt, sleep):
        lp, ld = self.lab('poll'), self.lab('polld')
        self.e(f'''
        v_lshlrev_b32 v{vt}, 2, v1
        v_mov_b32 v{vt+1}, 0x01010101
        s_mov_b32 s42, 0
        ''')
        self.setexec((1 << ndw) - 1)
        self.a.label(lp)
        self.e(f'''
        global_load_dword v{vt+2}, v{vt}, s[24:25] offset:{byte_off} sc1
        s_add_u32 s42, s42, 1
        s_waitcnt vmcnt(0)
        v_cmp_ne_u32 vcc, v{vt+2}, v{vt+1}
        ''')
        self.br(f's_cbranch_vccz {ld}')
        self.e(f's_sleep {sleep}')
        self.e('s_cmp_lt_u32 s42, 0x40000')
        self.br(f's_cbranch_scc1 {lp}')
        self.a.label(ld)
        self.e('s_mov_b64 exec, -1')

    def poll_nonce0(self, vdst, vt):
        lp, ld = self.lab('poll'), self.lab('polld')
        self.e(f'''
        v_mov_b32 v{vt}, 0
        s_mov_b32 s42, 0
        ''')
        self.a.label(lp)
        self.e(f'''
        global_load_dword v{vdst}, v{vt}, s[24:25] sc1
        s_add_u32 s42, s42, 1
        s_waitcnt vmcnt(0)
        v_cmp_eq_u32 vcc, 0, v{vdst}
        ''')
        self.br(f's_cbranch_vccz {ld}')
        self.e('s_sleep 2')
        self.e('s_cmp_lt_u32 s42, 0x40000')
        self.br(f's_cbranch_scc1 {lp}')
        self.a.label(ld)

    def role_wvo(self):
        a, e = self.a, self.e
        WO, AV, DD = 24, 72, 96
        e(f'''
        s_cmp_ge_u32 s30, 6
        s_cselect_b32 s31, 1, 0
        s_mul_i32 s32, s31, 6
        s_sub_u32 s32, s30, s32
        ''')
        lw, lw2 = self.lab('wvo_a'), self.lab('wvo_b')
        self.br(f'''
        s_cmp_ge_u32 s28, 6
        s_cbranch_scc1 {lw}''')
        e(f'''
        s_mul_i32 s33, s28, 6144
        s_mul_i32 s34, s31, 36864
        s_add_u32 s34, s34, s33
        v_lshl_add_u32 v9, v1, 4, s34
        s_add_u32 s34, s33, {H_WV}
        ''')
        for i in range(6):
            e(f's_add_u32 m0, s34, {i*1024}')
            if i: e('v_add_u32 v9, 1024, v9')
            e('global_load_lds_dwordx4 v9, s[18:19]')
        self.br(f's_branch {lw2}')
        a.label(lw)
        e(f'''
        s_sub_u32 s33, s28, 6
        v_lshrrev_b32 v9, 2, v1
        v_mul_u32_u24 v9, 384, v9
        v_and_b32 v8, 3, v1
        v_lshl_add_u32 v9, v8, 4, v9
        s_mul_i32 s34, s33, 36864
        s_lshl_b32 s35, s32, 6
        s_add_u32 s34, s34, s35
        v_add_u32 v9, s34, v9
        s_mul_i32 s34, s33, 6144
        s_add_u32 s34, s34, {H_WO}
        ''')
        for i in range(6):
            e(f's_add_u32 m0, s34, {i*1024}')
            if i: e('v_add_u32 v9, 6144, v9')
            e('global_load_lds_dwordx4 v9, s[20:21]')
        a.label(lw2)
        e('s_waitcnt vmcnt(0)')
        e('s_barrier')
        ldone = self.lab('wvo_d')
        self.br(f'''
        s_cmp_ge_u32 s28, 6
        s_cbranch_scc1 {ldone}''')
        e(f'''
        v_bfe_u32 v6, v1, 2, 2
        v_lshl_add_u32 v6, v3, 3, v6
        v_lshlrev_b32 v6, 6, v6
        v_and_b32 v7, 3, v1
        v_lshl_add_u32 v6, v7, 3, v6
        v_mul_u32_u24 v7, 384, v2
        v_lshl_add_u32 v7, v3, 4, v7
        s_mul_i32 s33, s28, 6144
        s_add_u32 s33, s33, {H_WV}
        v_add_u32 v7, s33, v7
        ''')
        for ks in range(6):
            e(f'ds_read_b128 {vr(AV+4*ks,4)}, v7 offset:{ks*64}')
        for d in range(2):
            for ks in range(6):
                for h in range(2):
                    e(f'ds_read_b64_tr_b16 {vr(WO + (d*6+ks)*4 + 2*h, 2)}, v6 offset:{H_WO + ks*2048 + h*256 + d*32}')
        e('s_waitcnt lgkmcnt(0)')
        for ks in range(6):
            for ee in range(2):
                D = DD + 4 * ee
                e(f'{MF} {vr(D,4)}, {vr(AV+4*ks,4)}, {vr(WO + (ee*6+ks)*4, 4)}, ' + ('0' if ks == 0 else vr(D, 4)))
        e(f'''
        s_mul_i32 s33, s30, 6144
        s_lshr_b32 s34, s28, 1
        s_lshl_b32 s34, s34, 10
        s_add_u32 s33, s33, s34
        s_and_b32 s34, s28, 1
        s_lshl_b32 s34, s34, 3
        s_add_u32 s33, s33, s34
        s_add_u32 s33, s33, {WS_WVO}
        v_lshl_add_u32 v5, v1, 4, s33
        v_cvt_pk_bf16_f32 v{DD+8}, v{DD}, v{DD+1}
        v_cvt_pk_bf16_f32 v{DD+9}, v{DD+2}, v{DD+3}
        v_cvt_pk_bf16_f32 v{DD+10}, v{DD+4}, v{DD+5}
        v_cvt_pk_bf16_f32 v{DD+11}, v{DD+6}, v{DD+7}
        global_store_dwordx2 v5, {vr(DD+8,2)}, s[26:27] sc1
        global_store_dwordx2 v5, {vr(DD+10,2)}, s[26:27] offset:3072 sc1
        s_waitcnt vmcnt(0)
        ''')
        a.label(ldone)
        e('s_barrier')
        lnf = self.lab('wvo_nf')
        self.br(f'''
        s_cmp_lg_u32 s28, 0
        s_cbranch_scc1 {lnf}''')
        self.poll_nonce0(10, 4)
        e(f'''
        s_lshl_b32 s33, s30, 7
        s_add_u32 s33, s33, {WS_WF}
        v_mov_b32 v4, s33
        s_mov_b64 exec, 1
        global_store_dword v4, v10, s[26:27] sc1
        s_mov_b64 exec, -1
        ''')
        a.label(lnf)
        self.stamp(1)

    def qblock_addr(self, VA):
        self.e(f'''
        s_lshl_b32 s46, s28, 10
        v_add_u32 v{VA}, s46, v18
        v_add_u32 v{VA+1}, 8192, v{VA}
        v_add_u32 v{VA+2}, 16384, v{VA}
        s_lshr_b32 s46, s28, 1
        s_mul_i32 s46, s46, 12
        v_mov_b32 v{VA+3}, s46
        ''')

    def qblock_issue(self, VA, QL):
        self.e(f'''
        global_load_dwordx3 {vr(QL+12, 3)}, v{VA+3}, s[24:25] sc1
        global_load_dwordx4 {vr(QL, 4)}, v{VA}, s[26:27] sc1
        global_load_dwordx4 {vr(QL+4, 4)}, v{VA+1}, s[26:27] sc1
        global_load_dwordx4 {vr(QL+8, 4)}, v{VA+2}, s[26:27] sc1
        ''')

    def qblock_finish(self, VA, QL, QT):
        lr, lok = self.lab('qretry'), self.lab('qok')
        self.e('s_mov_b32 s42, 0')
        self.a.label(lr)
        self.e(f'''
        s_waitcnt vmcnt(0)
        v_xor_b32 v{QT}, v{QL+3}, v{QL+12}
        v_xor_b32 v{QT+1}, v{QL+7}, v{QL+13}
        v_xor_b32 v{QT+2}, v{QL+11}, v{QL+14}
        v_or3_b32 v{QT}, v{QT}, v{QT+1}, v{QT+2}
        v_min3_u32 v{QT+1}, v{QL+12}, v{QL+13}, v{QL+14}
        v_cmp_eq_u32 vcc, 0, v{QT+1}
        v_cndmask_b32 v{QT+1}, 0, 1, vcc
        v_or_b32 v{QT}, v{QT}, v{QT+1}
        v_cmp_ne_u32 vcc, 0, v{QT}
        ''')
        self.br(f's_cbranch_vccz {lok}')
        self.e('s_add_u32 s42, s42, 1')
        self.e('s_cmp_ge_u32 s42, 0x40000')
        self.br(f's_cbranch_scc1 {lok}')
        self.qblock_issue(VA, QL)
        self.br(f's_branch {lr}')
        self.a.label(lok)
        self.e(f'''
        v_mov_b32 v{QT+9}, 0x00003f80
        v_mov_b32 v{QT+10}, 0x3f800000
        v_mov_b32 v{QT+11}, 0x3f803f80
        ''')
        for p in range(3):
            for t in range(3):
                src = QL + 4 * p + t
                c0 = '0' if p == 0 else f'v{QT+2*t}'
                c1 = '0' if p == 0 else f'v{QT+2*t+1}'
                self.e(f'v_dot2_f32_bf16 v{QT+2*t}, v{src}, v{QT+9}, {c0}')
                self.e(f'v_dot2_f32_bf16 v{QT+2*t+1}, v{src}, v{QT+10}, {c1}')
        for t in range(3):
            self.e(f'v_cvt_pk_bf16_f32 v{QL+t}, v{QT+2*t}, v{QT+2*t+1}')
        self.e(f'''
        s_and_b32 s46, s28, 1
        s_lshl_b32 s46, s46, 3
        v_lshrrev_b32 v{QT+6}, 3, v1
        v_add_u32 v{QT+6}, s46, v{QT+6}
        v_and_b32 v{QT+7}, 7, v1
        v_mul_u32_u24 v{QT+7}, 12, v{QT+7}
        v_mul_u32_u24 v{QT+8}, 400, v{QT+6}
        s_lshr_b32 s47, s28, 1
        s_mul_i32 s46, s47, 96
        s_add_u32 s46, s46, {L_QK}
        v_add3_u32 v{QT+7}, v{QT+7}, v{QT+8}, s46
        ds_write2_b32 v{QT+7}, v{QL}, v{QL+1} offset0:0 offset1:1
        ds_write_b32 v{QT+7}, v{QL+2} offset:8
        v_mov_b32 v{QT}, 0
        v_dot2c_f32_bf16 v{QT}, v{QL}, v{QT+11}
        v_dot2c_f32_bf16 v{QT}, v{QL+1}, v{QT+11}
        v_dot2c_f32_bf16 v{QT}, v{QL+2}, v{QT+11}
        v_add_f32_dpp v{QT}, v{QT}, v{QT} quad_perm:[1,0,3,2] row_mask:0xf bank_mask:0xf
        v_add_f32_dpp v{QT}, v{QT}, v{QT} quad_perm:[2,3,0,1] row_mask:0xf bank_mask:0xf
        v_add_f32_dpp v{QT}, v{QT}, v{QT} row_half_mirror row_mask:0xf bank_mask:0xf
        s_lshl_b32 s47, s47, 2
        s_add_u32 s47, s47, {L_SQ}
        v_lshl_add_u32 v{QT+6}, v{QT+6}, 4, s47
        s_mov_b32 exec_lo, 0x01010101
        s_mov_b32 exec_hi, 0x01010101
        ds_write_b32 v{QT+6}, v{QT}
        s_mov_b64 exec, -1
        ''')

    def role_qk(self):
        a, e = self.a, self.e
        VQ, VWK, VWQ, T = 8, 32, 40, 88
        e('''
        s_mul_i32 s32, s30, 86
        s_lshr_b32 s32, s32, 8
        s_mul_i32 s31, s32, 3
        s_sub_u32 s31, s30, s31
        ''')
        l7 = self.lab('qk7')
        self.br(f'''
        s_cmp_lg_u32 s28, 7
        s_cbranch_scc1 {l7}''')
        e(f'''
        s_memrealtime s[40:41]
        s_lshl_b32 s33, s30, 2
        v_mov_b32 v6, s33
        v_mov_b32 v7, {H_NON}
        s_waitcnt lgkmcnt(0)
        s_or_b32 s40, s40, 1
        v_mov_b32 v5, s40
        s_mov_b64 exec, 1
        global_store_dword v6, v5, s[24:25] sc1
        ds_write_b32 v7, v5
        s_mov_b64 exec, -1
        ''')
        a.label(l7)
        e(f'''
        v_lshrrev_b32 v5, 3, v1
        v_mul_u32_u24 v5, 384, v5
        v_and_b32 v6, 7, v1
        v_bfe_u32 v7, v1, 4, 1
        v_lshlrev_b32 v7, 1, v7
        v_xor_b32 v6, v6, v7
        s_lshl_b32 s33, s31, 7
        s_mul_i32 s34, s28, 9216
        s_add_u32 s34, s34, s33
        v_add_u32 v8, s34, v5
        v_lshl_add_u32 v7, v6, 4, v8
        v_xor_b32 v6, 4, v6
        v_lshl_add_u32 v6, v6, 4, v8
        s_mul_i32 s34, s28, 3072
        s_add_u32 s34, s34, {H_WQ}
        s_and_b32 s35, s28, 1
        s_cmp_eq_u32 s35, 1
        s_cselect_b64 vcc, -1, 0
        v_cndmask_b32 v9, v7, v6, vcc
        v_cndmask_b32 v6, v6, v7, vcc
        ''')
        for k in range(3):
            e(f's_add_u32 m0, s34, {k*1024}')
            src = 9 if k % 2 == 0 else 6
            if k: e(f'v_add_u32 v{src}, {k*3072}, v{src}')
            e(f'global_load_lds_dwordx4 v{src}, s[14:15]')
        lnq = self.lab('qk_noq')
        self.br(f'''
        s_cmp_ge_u32 s28, 6
        s_cbranch_scc1 {lnq}''')
        e(f'''
        s_lshl_b32 s33, s28, 6
        v_add_u32 v6, s33, v1
        s_movk_i32 s34, 2731
        v_mul_u32_u24 v7, s34, v6
        v_lshrrev_b32 v7, 16, v7
        v_mul_u32_u24 v8, 24, v7
        v_sub_u32 v6, v6, v8
        v_bfe_u32 v8, v7, 1, 3
        v_xor_b32 v6, v6, v8
        v_mul_u32_u24 v7, 384, v7
        v_lshl_add_u32 v6, v6, 4, v7
        s_lshl_b32 s33, s28, 10
        s_add_u32 m0, s33, {H_Q}
        global_load_lds_dwordx4 v6, s[8:9]
        s_mul_i32 s33, s32, 48
        s_lshl_b32 s34, s28, 3
        s_add_u32 s33, s33, s34
        s_mul_i32 s33, s33, 384
        s_lshl_b32 s34, s31, 7
        s_add_u32 s33, s33, s34
        v_and_b32 v6, 7, v1
        v_lshl_add_u32 v6, v6, 4, v5
        v_add_u32 v6, s33, v6
        s_lshl_b32 s33, s28, 10
        s_add_u32 m0, s33, {H_WK}
        global_load_lds_dwordx4 v6, s[16:17]
        ''')
        a.label(lnq)
        e(f'''
        v_mov_b32 v{T}, 0x3f803f80
        v_mov_b32 v{T+1}, 0x3f803f80
        v_mov_b32 v{T+2}, 0x3f803f80
        v_mov_b32 v{T+3}, 0x3f803f80
        v_mov_b32 v{T+4}, 1.0
        v_mov_b32 v{T+5}, 0
        v_mov_b32 v{T+6}, 0
        v_bfe_u32 v6, v2, 1, 3
        v_xor_b32 v6, v6, v3
        v_mul_u32_u24 v7, 384, v2
        v_lshl_add_u32 v151, v6, 4, v7
        v_xor_b32 v6, 4, v6
        v_lshl_add_u32 v152, v6, 4, v7
        v_lshlrev_b32 v4, 4, v1
        ''')
        lw7, lw8 = self.lab('qk_w7'), self.lab('qk_w8')
        self.br(f'''
        s_cmp_ge_u32 s28, 4
        s_cbranch_scc1 {lw7}''')
        e('s_waitcnt vmcnt(0)')
        self.br(f's_branch {lw8}')
        a.label(lw7)
        e('s_waitcnt vmcnt(0) lgkmcnt(0)')
        a.label(lw8)
        self.stamp(4)
        e('s_barrier')
        self.stamp(5)
        lb3 = self.lab('qk_b3')
        lwo = self.lab('qk_wo')
        self.br(f'''
        s_cmp_ge_u32 s28, 4
        s_cbranch_scc1 {lwo}''')
        for ks in range(6):
            e(f'ds_read_b128 {vr(VQ+4*ks, 4)}, v{151 if ks % 2 == 0 else 152} offset:{H_Q + (ks >> 1) * 128}')
        e('''
        v_bfe_u32 v5, v1, 2, 2
        v_lshl_add_u32 v6, v3, 3, v5
        v_lshlrev_b32 v6, 7, v6
        v_lshrrev_b32 v5, 1, v5
        v_and_b32 v7, 1, v3
        v_lshl_or_b32 v5, v7, 1, v5
        v_lshlrev_b32 v5, 1, v5
        v_bfe_u32 v7, v1, 1, 1
        s_lshl_b32 s33, s28, 1
        v_or_b32 v7, s33, v7
        v_xor_b32 v5, v5, v7
        v_lshl_add_u32 v6, v5, 4, v6
        v_and_b32 v7, 1, v1
        v_lshl_add_u32 v6, v7, 3, v6
        ''')
        for ks in range(6):
            for h in range(2):
                e(f'ds_read_b64_tr_b16 {vr(VWQ+4*ks+2*h, 2)}, v6 offset:{H_WQ + ks*4096 + h*512}')
        e('''
        v_lshlrev_b32 v7, 7, v2
        v_lshl_add_u32 v7, v3, 3, v7
        s_lshl_b32 s33, s28, 5
        v_add_u32 v7, s33, v7
        ''')
        for tau in range(3):
            e(f'ds_read_b64 {vr(VWK+2*tau, 2)}, v7 offset:{H_WK + tau*2048}')
        MEAN, SSQ, D1, CSQ = T + 8, T + 12, T + 36, T + 16
        for ks in range(6):
            e(f's_waitcnt lgkmcnt({min(15, 20 - ks)})')
            e(f'{MF} {vr(MEAN,4)}, {vr(T,4)}, {vr(VQ+4*ks,4)}, ' + ('0' if ks == 0 else vr(MEAN, 4)))
        for i in range(24):
            e(f'v_dot2c_f32_bf16 v{T+5+(i&1)}, v{VQ+i}, v{VQ+i}')
        e(f'v_add_f32 v{T+5}, v{T+5}, v{T+6}')
        e(f'{MF4} {vr(SSQ,4)}, v{T+4}, v{T+5}, 0')
        for ks in range(6):
            e(f's_waitcnt lgkmcnt({13 - 2*ks})')
            e(f'{MF} {vr(D1,4)}, {vr(VWQ+4*ks,4)}, {vr(VQ+4*ks,4)}, ' + ('0' if ks == 0 else vr(D1, 4)))
            e(f'{MF} {vr(CSQ,4)}, {vr(VWQ+4*ks,4)}, {vr(T,4)}, ' + ('0' if ks == 0 else vr(CSQ, 4)))
        e(f'''
        s_mov_b32 s36, {f32bits(1.0/192)}
        v_mul_f32 v{MEAN}, s36, v{MEAN}
        v_mul_f32 v{SSQ}, s36, v{SSQ}
        v_fma_f32 v{SSQ}, -v{MEAN}, v{MEAN}, v{SSQ}
        v_max_f32 v{SSQ}, 0, v{SSQ}
        v_add_f32 v{SSQ}, {f32bits(1e-5)}, v{SSQ}
        v_rsq_f32 v{SSQ}, v{SSQ}
        ''')
        for r in range(4):
            e(f'v_fma_f32 v{D1+r}, -v{MEAN}, v{CSQ+r}, v{D1+r}')
        for r in range(4):
            e(f'v_mul_f32 v{D1+r}, v{D1+r}, v{SSQ}')
        P = T + 40
        e(f'v_cvt_pk_bf16_f32 v{P}, v{D1}, v{D1+1}')
        e(f'v_cvt_pk_bf16_f32 v{P+1}, v{D1+2}, v{D1+3}')
        e('s_waitcnt lgkmcnt(0)')
        D2 = T + 44
        for tau in range(3):
            e(f'v_mfma_f32_16x16x16_bf16 {vr(D2+4*tau,4)}, {vr(VWK+2*tau,2)}, {vr(P,2)}, 0')
        e('''
        s_mul_i32 s33, s28, 3072
        v_add_u32 v5, s33, v4
        ''')
        for tau in range(3):
            e(f'ds_write_b128 v5, {vr(D2+4*tau,4)} offset:{H_RED + tau*1024}')
        e('s_waitcnt lgkmcnt(0)')
        a.label(lwo)
        a.label(lb3)
        e('s_barrier')
        self.stamp(6)
        lq_done = self.lab('qk_done')
        self.br(f'''
        s_cmp_ge_u32 s28, 2
        s_cbranch_scc1 {lq_done}''')
        e(f'''
        v_lshrrev_b32 v5, 3, v1
        s_lshl_b32 s33, s28, 3
        v_add_u32 v5, s33, v5
        v_lshlrev_b32 v5, 4, v5
        v_and_b32 v6, 7, v1
        v_mul_u32_u24 v6, 6, v6
        v_mov_b32 v10, {H_NON}
        ds_read_b32 v{VQ+27}, v10
        ''')
        for p in range(3):
            e(f'''
            v_add_u32 v7, {2*p}, v6
            v_lshrrev_b32 v8, 2, v7
            v_lshl_add_u32 v8, v8, 8, v5
            v_and_b32 v7, 3, v7
            v_lshl_add_u32 v{150+p}, v7, 2, v8
            ''')
        R = 40
        for p in range(3):
            for d in range(4):
                e(f'ds_read_b64 {vr(R + (p*4+d)*2, 2)}, v{150+p} offset:{H_RED + d*3072}')
        e(f'''
        s_mov_b32 s36, {f32bits(QSCALE)}
        s_mul_i32 s33, s31, 8192
        s_lshl_b32 s34, s32, 11
        s_add_u32 s33, s33, s34
        s_lshl_b32 s34, s28, 10
        s_add_u32 s33, s33, s34
        v_add_u32 v5, s33, v4
        s_waitcnt lgkmcnt(0)
        ''')
        for p in range(3):
            b = R + p * 8
            for x in range(2):
                e(f'v_add_f32 v{b+x}, v{b+x}, v{b+2+x}')
                e(f'v_add_f32 v{b+4+x}, v{b+4+x}, v{b+6+x}')
        for p in range(3):
            b = R + p * 8
            for x in range(2):
                e(f'v_add_f32 v{b+x}, v{b+x}, v{b+4+x}')
        for p in range(3):
            b = R + p * 8
            for x in range(2):
                e(f'v_mul_f32 v{b+x}, s36, v{b+x}')
        O = VQ + 24
        for p in range(3):
            b = R + p * 8
            e(f'v_cvt_pk_bf16_f32 v{O+p}, v{b}, v{b+1}')
        e(f'global_store_dwordx4 v5, {vr(O,4)}, s[26:27] offset:{WS_QK} sc1')
        self.stamp(8)
        a.label(lq_done)


    def weights_issue(self):
        e = self.e
        e(f'''
        s_sub_u32 s35, s28, 4
        s_mul_i32 s33, s35, 18432
        v_lshl_add_u32 v9, v1, 4, s33
        s_add_u32 s34, s33, {H_WO}
        ''')
        for i in range(18):
            e(f's_add_u32 m0, s34, {i*1024}')
            if i: e('v_add_u32 v9, 1024, v9')
            e('global_load_lds_dwordx4 v9, s[20:21]')
        e(f'''
        s_mul_i32 s33, s35, 9216
        s_and_b32 s34, s2, 1
        s_mul_i32 s34, s34, 36864
        s_add_u32 s34, s34, s33
        v_lshl_add_u32 v9, v1, 4, s34
        s_add_u32 s34, s33, {H_WV}
        ''')
        for i in range(9):
            e(f's_add_u32 m0, s34, {i*1024}')
            if i: e('v_add_u32 v9, 1024, v9')
            e('global_load_lds_dwordx4 v9, s[18:19]')

    def zinit(self, freg):
        e = self.e
        e(f'''
        s_mul_i32 s33, s{freg}, {ZREG}
        s_add_u32 s33, s33, {WS_Z}
        v_lshl_add_u32 v4, v0, 4, s33
        ''')
        for i in range(10):
            e('global_store_dwordx4 v4, v[200:203], s[26:27] sc1')
            e('v_add_u32 v4, 4096, v4')
        e(f'''
        s_mul_i32 s33, s{freg}, 896
        s_add_u32 s33, s33, {WS_ML - 2048}
        v_lshl_add_u32 v5, v0, 4, s33
        v_cmp_gt_u32 vcc, 128, v0
        v_cndmask_b32 v4, v5, v4, vcc
        v_cmp_gt_u32 vcc, 184, v0
        s_and_saveexec_b64 s[40:41], vcc
        ''')
        l = self.lab('zi')
        self.br(f's_cbranch_execz {l}')
        e('global_store_dwordx4 v4, v[200:203], s[26:27] sc1')
        self.a.label(l)
        e('s_mov_b64 exec, -1')
        l2 = self.lab('oi')
        self.br(f'''
        s_cmp_lg_u32 s28, 3
        s_cbranch_scc1 {l2}''')
        self.br(f'''
        s_bitcmp1_b32 s{freg}, 0
        s_cbranch_scc1 {l2}''')
        e(f'''
        s_lshr_b32 s33, s{freg}, 1
        s_mul_i32 s33, s33, 384
        v_lshl_add_u32 v5, v1, 4, s33
        s_mov_b32 exec_lo, 0xffffff
        s_mov_b32 exec_hi, 0
        global_load_dwordx4 v[204:207], v5, s[8:9]
        s_waitcnt vmcnt(0)
        global_store_dwordx4 v5, v[204:207], s[22:23] sc1
        s_mov_b64 exec, -1
        ''')
        self.a.label(l2)

    def role_final(self, isqk):
        a, e = self.a, self.e
        WO = 24
        WVO = 72
        ZL = 132
        ACC = 188
        TM = 200
        e('''
        s_lshr_b32 s46, s2, 1
        s_and_b32 s47, s2, 1
        ''')
        self.poll_nonce0(10, 4)
        lnw = self.lab('fin_now')
        self.br(f'''
        s_cmp_ge_u32 s28, 6
        s_cbranch_scc1 {lnw}''')
        e(f'''
        s_mul_i32 s33, s47, 6
        s_add_u32 s33, s33, s28
        s_lshl_b32 s34, s33, 7
        s_add_u32 s34, s34, {WS_WF}
        v_mov_b32 v4, s34
        s_mul_i32 s33, s33, 6144
        s_add_u32 s33, s33, {WS_WVO}
        v_lshl_add_u32 v5, v1, 4, s33
        v_add_u32 v6, 3072, v5
        s_mov_b32 s42, 0
        ''')
        lp, ld = self.lab('poll'), self.lab('polld')
        a.label(lp)
        e('''
        global_load_dword v11, v4, s[26:27] sc1
        s_add_u32 s42, s42, 1
        s_waitcnt vmcnt(0)
        v_cmp_ne_u32 vcc, v11, v10
        ''')
        self.br(f's_cbranch_vccz {ld}')
        e('s_sleep 4')
        e('s_cmp_lt_u32 s42, 0x40000')
        self.br(f's_cbranch_scc1 {lp}')
        a.label(ld)
        for qd in range(6):
            e(f'global_load_dwordx4 {vr(WVO+4*qd,4)}, v{5 if qd < 3 else 6}, s[26:27] offset:{(qd%3)*1024} sc1')
        e('s_waitcnt vmcnt(0)')
        a.label(lnw)
        self.stamp(2)
        e(f'''
        s_mul_i32 s33, s28, 28
        v_min_u32 v4, 27, v1
        v_add_u32 v4, s33, v4
        v_lshlrev_b32 v4, 8, v4
        s_lshl_b32 s34, s46, 4
        s_add_u32 s34, s34, {WS_ML}
        v_add_u32 v4, s34, v4
        s_mul_i32 s34, s2, 224
        s_add_u32 s34, s34, s33
        s_mul_i32 s34, s34, 192
        s_add_u32 s34, s34, {WS_Z}
        v_min_u32 v5, 47, v1
        v_lshlrev_b32 v5, 4, v5
        v_add_u32 v5, s34, v5
        v_add_u32 v6, 3840, v5
        s_mov_b32 s42, 0
        ''')
        lp, ld = self.lab('poll'), self.lab('polld')
        a.label(lp)
        e(f'''
        global_load_dwordx4 {vr(TM,4)}, v4, s[26:27] sc1
        s_add_u32 s42, s42, 1
        s_waitcnt vmcnt(0)
        v_cmp_ne_u32 vcc, v{TM+2}, v10
        ''')
        self.br(f's_cbranch_vccz {ld}')
        if self.opt.get('fsleep', 0): e(f's_sleep {self.opt.get("fsleep")}')
        e('s_cmp_lt_u32 s42, 0x40000')
        self.br(f's_cbranch_scc1 {lp}')
        a.label(ld)
        self.stamp(3)
        def zload(i):
            e(f'global_load_dwordx4 {vr(ZL+4*i,4)}, v{5 + i//5}, s[26:27] offset:{(i%5)*768} sc1')
        for i in range(7): zload(i)
        M, L, X = TM, TM + 1, TM + 2
        e(f'v_mov_b32 v{X}, v{M}')
        for sh in (1, 2, 4, 8):
            e(f'v_max_f32_dpp v{X}, v{X}, v{X} row_ror:{sh} row_mask:0xf bank_mask:0xf')
        e(f'''
        v_mov_b32 v{X+1}, v{X}
        v_permlane16_swap_b32 v{X}, v{X+1}
        v_max_f32 v{X}, v{X}, v{X+1}
        v_mov_b32 v{X+1}, v{X}
        v_permlane32_swap_b32 v{X}, v{X+1}
        v_max_f32 v{X}, v{X}, v{X+1}
        s_lshl_b32 s35, s28, 2
        v_mov_b32 v8, s35
        v_mov_b32 v9, 0
        ds_write_b32 v8, v{X} offset:{H_WM}
        s_waitcnt lgkmcnt(0)
        s_barrier
        ds_read_b128 {vr(TM+4,4)}, v9 offset:{H_WM}
        ds_read_b128 {vr(TM+8,4)}, v9 offset:{H_WM+16}
        s_waitcnt lgkmcnt(0)
        v_max3_f32 v{X}, v{TM+4}, v{TM+5}, v{TM+6}
        v_max3_f32 v{X+1}, v{TM+7}, v{TM+8}, v{TM+9}
        v_max3_f32 v{X}, v{X}, v{TM+10}, v{TM+11}
        v_max_f32 v{X}, v{X}, v{X+1}
        v_sub_f32 v{M}, v{M}, v{X}
        v_exp_f32 v{M}, v{M}
        v_cmp_gt_u32 vcc, 28, v1
        v_mul_f32 v{L}, v{L}, v{M}
        v_cndmask_b32 v{L}, 0, v{L}, vcc
        v_lshrrev_b32 v{M}, 16, v{M}
        s_lshl_b32 s34, s28, 7
        s_add_u32 s34, s34, {H_SCT}
        v_lshl_add_u32 v9, v1, 2, s34
        s_mov_b32 exec_hi, 0
        ds_write_b32 v9, v{M}
        s_mov_b32 exec_hi, -1
        v_mul_u32_u24 v9, 43, v1
        v_lshrrev_b32 v9, 9, v9
        v_min_u32 v9, 3, v9
        v_lshl_add_u32 v9, v9, 2, s34
        ''')
        for sh in (1, 2, 4, 8):
            e(f'v_add_f32_dpp v{L}, v{L}, v{L} row_ror:{sh} row_mask:0xf bank_mask:0xf')
        e(f'''
        v_mov_b32 v{X+1}, v{L}
        v_permlane16_swap_b32 v{L}, v{X+1}
        v_add_f32 v{L}, v{L}, v{X+1}
        s_waitcnt lgkmcnt(0)
        ''')
        SCL = TM + 4
        for i in range(7):
            e(f'ds_read_b32 v{SCL+i}, v9 offset:{i*16}')
        e(f'''
        s_mov_b64 exec, 1
        ds_write_b32 v8, v{L} offset:{H_WL}
        s_mov_b64 exec, -1
        ''')
        HI, UM = TM + 12, TM + 14
        lredo, lok = self.lab('redo'), self.lab('zok')
        a.label(lredo)
        for i in range(8): e(f'v_mov_b32 v{ACC+i}, 0')
        e(f'v_mov_b32 v{UM}, 0')
        e('s_waitcnt lgkmcnt(0)')
        for i in range(7):
            e(f'v_lshlrev_b32 v{HI+(i&1)}, 16, v{SCL+i}')
            e(f's_waitcnt vmcnt({6-i})')
            e(f'v_max3_u32 v{UM}, v{UM}, v{ZL+4*i}, v{ZL+4*i+1}')
            e(f'v_max3_u32 v{UM}, v{UM}, v{ZL+4*i+2}, v{ZL+4*i+3}')
            for j in range(4):
                e(f'v_dot2c_f32_bf16 v{ACC+2*j}, v{ZL+4*i+j}, v{SCL+i}')
                e(f'v_dot2c_f32_bf16 v{ACC+2*j+1}, v{ZL+4*i+j}, v{HI+(i&1)}')
        e(f'v_cmp_eq_u32 vcc, -1, v{UM}')
        self.br(f's_cbranch_vccz {lok}')
        e('s_add_u32 s42, s42, 1')
        e('s_cmp_ge_u32 s42, 0x40000')
        self.br(f's_cbranch_scc1 {lok}')
        for i in range(7): zload(i)
        self.br(f's_branch {lredo}')
        a.label(lok)
        e(f'''
        v_cvt_pk_bf16_f32 v{TM+4}, v{ACC}, v{ACC+1}
        v_cvt_pk_bf16_f32 v{TM+5}, v{ACC+2}, v{ACC+3}
        v_cvt_pk_bf16_f32 v{TM+6}, v{ACC+4}, v{ACC+5}
        v_cvt_pk_bf16_f32 v{TM+7}, v{ACC+6}, v{ACC+7}
        v_mul_u32_u24 v8, 43, v1
        v_lshrrev_b32 v8, 9, v8
        v_mul_u32_u24 v9, 12, v8
        v_sub_u32 v9, v1, v9
        s_lshl_b32 s34, s28, 2
        v_add_u32 v8, s34, v8
        v_mul_u32_u24 v8, 208, v8
        v_lshrrev_b32 v10, 2, v9
        v_lshl_add_u32 v8, v10, 6, v8
        v_and_b32 v10, 1, v9
        v_lshl_add_u32 v8, v10, 5, v8
        v_bfe_u32 v10, v9, 1, 1
        v_lshl_add_u32 v8, v10, 3, v8
        s_mov_b32 exec_hi, 0xffff
        ds_write_b64 v8, {vr(TM+4,2)} offset:{H_ZC}
        ds_write_b64 v8, {vr(TM+6,2)} offset:{H_ZC+16}
        s_mov_b32 exec_hi, -1
        s_waitcnt lgkmcnt(0)
        s_barrier
        ''')
        self.stamp(4)
        self.br('''
        s_cmp_ge_u32 s28, 6
        s_cbranch_scc1 L_end''')
        ZB = ZL
        WL = ZL + 24
        e('''
        v_mul_u32_u24 v6, 208, v2
        v_lshl_add_u32 v6, v3, 4, v6
        v_mov_b32 v7, 0
        ''')
        for cg in range(2):
            for t in range(3):
                e(f'ds_read_b128 {vr(ZB + (cg*3+t)*4, 4)}, v6 offset:{H_ZC + cg*16*208 + t*64}')
        e(f'ds_read_b128 {vr(WL,4)}, v7 offset:{H_WL}')
        e(f'ds_read_b128 {vr(WL+4,4)}, v7 offset:{H_WL+16}')
        DA = TM + 24
        n = 0
        for cg in range(2):
            for t in range(3):
                e(f's_waitcnt lgkmcnt({7 - n})')
                for ee in range(2):
                    e(f'{MF} {vr(DA+4*ee,4)}, {vr(WVO + (ee*3+t)*4, 4)}, {vr(ZB + (cg*3+t)*4, 4)}, ' + ('0' if n == 0 else vr(DA + 4 * ee, 4)))
                n += 1
        e(f'''
        s_waitcnt lgkmcnt(0)
        v_add_f32 v{WL}, v{WL}, v{WL+1}
        v_add_f32 v{WL+2}, v{WL+2}, v{WL+3}
        v_add_f32 v{WL+4}, v{WL+4}, v{WL+5}
        v_add_f32 v{WL+6}, v{WL+6}, v{WL+7}
        v_add_f32 v{WL}, v{WL}, v{WL+2}
        v_add_f32 v{WL+4}, v{WL+4}, v{WL+6}
        v_add_f32 v{WL}, v{WL}, v{WL+4}
        v_rcp_f32 v{WL}, v{WL}
        s_mul_i32 s33, s46, 384
        s_lshl_b32 s34, s28, 6
        s_add_u32 s33, s33, s34
        v_lshl_add_u32 v4, v3, 3, s33
        ''')
        for sh in (1, 2, 4, 8):
            for x in range(8):
                e(f'v_add_f32_dpp v{DA+x}, v{DA+x}, v{DA+x} row_ror:{sh} row_mask:0xf bank_mask:0xf')
        for x in range(8):
            e(f'v_mul_f32 v{DA+x}, v{DA+x}, v{WL}')
        C = TM + 2
        for i in range(4):
            e(f'v_cvt_pk_bf16_f32 v{C+i}, v{DA+2*i}, v{DA+2*i+1}')
        e(f'''
        s_mov_b32 exec_lo, 0x00010001
        s_mov_b32 exec_hi, 0x00010001
        global_atomic_pk_add_bf16 v4, v{C}, s[22:23]
        global_atomic_pk_add_bf16 v4, v{C+1}, s[22:23] offset:4
        global_atomic_pk_add_bf16 v4, v{C+2}, s[22:23] offset:32
        global_atomic_pk_add_bf16 v4, v{C+3}, s[22:23] offset:36
        ''')
        self.stamp(5)
        self.br('s_branch L_end')

    def role_main(self):
        a, e = self.a, self.e
        lh = self.lab('helper')
        self.br(f'''
        s_cmp_eq_u32 s28, 7
        s_cbranch_scc1 {lh}''')
        NT = ' nt'
        F1, T0, T1, QK = 24, 48, 72, 96
        ONES = 20
        S1, S0, S0b = 120, 124, 128
        SS0, SS1 = 132, 136
        AC = 140
        RS, MR = 148, 156
        L1, L0, L0b = 164, 168, 172
        TM = 176
        C5, SQ, MX0 = 188, 189, 190
        DV = 191
        M1 = 197
        M0E = 244
        QA = 252
        QL, QT = 200, 216
        XQ = [120 + 4 * i for i in range(7)] + [200 + 4 * i for i in range(11)]
        e(f'''
        s_lshr_b32 s31, s30, 1
        s_and_b32 s32, s30, 1
        s_mul_i32 s32, s32, 56
        s_lshl_b32 s33, s28, 3
        s_add_u32 s32, s32, s33
        s_mul_i32 s33, s31, 112
        s_add_u32 s33, s33, s32
        s_mul_i32 s33, s33, 384
        s_add_u32 s34, s12, s33
        s_addc_u32 s35, s13, 0
        s_mul_i32 s33, s31, 448
        s_lshl_b32 s32, s32, 1
        s_add_u32 s33, s33, s32
        s_mul_i32 s33, s33, 384
        s_add_u32 s36, s10, s33
        s_addc_u32 s37, s11, 0
        s_add_u32 s38, s36, 86016
        s_addc_u32 s39, s37, 0
        s_mul_i32 s43, s28, {XREG}
        s_add_u32 s43, s43, {L_X}
        s_movk_i32 s44, 2731
        ''')
        for jj in range(3):
            u, p = TM + 4 * jj, TM + 4 * jj + 1
            e(f'''
            v_add_u32 v{u}, {64*jj}, v1
            v_mul_u32_u24 v{p}, s44, v{u}
            v_lshrrev_b32 v{p}, 16, v{p}
            v_mul_u32_u24 v{u+2}, 24, v{p}
            v_sub_u32 v{u}, v{u}, v{u+2}
            v_bfe_u32 v{u+2}, v{p}, 1, 1
            v_bfe_u32 v{u+3}, v{p}, 2, 1
            v_lshl_add_u32 v{u+2}, v{u+2}, 2, v{u+3}
            v_xor_b32 v{u+2}, v{u+2}, v{u}
            v_mul_u32_u24 v{u+3}, 384, v{p}
            v_lshl_add_u32 v{4+jj}, v{u+2}, 4, v{u+3}
            s_add_u32 m0, s43, {jj*1024}
            global_load_lds_dwordx4 v{4+jj}, s[34:35]{NT}
            ''')
        for jj in range(3):
            u, p = TM + 4 * jj, TM + 4 * jj + 1
            e(f'''
            v_bfe_u32 v{u+2}, v{p}, 1, 2
            v_lshlrev_b32 v{u+2}, 1, v{u+2}
            v_xor_b32 v{u+2}, v{u+2}, v{u}
            v_lshl_add_u32 v{DV+jj}, v{u+2}, 4, v{u+3}
            v_xor_b32 v{DV+3+jj}, 16, v{DV+jj}
            ''')
        def fine_group(gidx):
            t, hf = gidx >> 1, gidx & 1
            sp = (36, 38)[t]
            for jj in range(3):
                e(f's_add_u32 m0, s43, {3072 + t*6144 + jj*1024}')
                if hf == 0:
                    e(f'global_load_lds_dwordx4 v{DV+jj}, s[{sp}:{sp+1}]{NT}')
                else:
                    e(f'global_load_lds_dwordx4 v{DV+3+jj}, s[{sp}:{sp+1}] offset:3072{NT}')
        fine_group(0)
        self.stamp(1)
        e(f'''
        v_and_b32 v{TM}, 1, v3
        v_lshlrev_b32 v{TM}, 1, v{TM}
        v_lshrrev_b32 v{TM+1}, 1, v3
        v_or_b32 v{TM}, v{TM}, v{TM+1}
        v_bfe_u32 v{TM+1}, v2, 1, 2
        v_lshlrev_b32 v{TM+1}, 1, v{TM+1}
        v_lshrrev_b32 v{TM+2}, 3, v2
        v_or_b32 v{TM+1}, v{TM+1}, v{TM+2}
        v_xor_b32 v{TM+1}, v{TM+1}, v{TM}
        v_mul_u32_u24 v{TM+3}, 384, v2
        v_add_u32 v{TM+3}, s43, v{TM+3}
        v_lshl_add_u32 v13, v{TM+1}, 4, v{TM+3}
        v_xor_b32 v{TM+1}, 4, v{TM+1}
        v_lshl_add_u32 v14, v{TM+1}, 4, v{TM+3}
        v_bfe_u32 v{TM+1}, v2, 2, 1
        v_lshlrev_b32 v{TM+1}, 2, v{TM+1}
        v_lshrrev_b32 v{TM+2}, 3, v2
        v_or_b32 v{TM+1}, v{TM+1}, v{TM+2}
        v_xor_b32 v{TM+1}, v{TM+1}, v{TM}
        v_lshrrev_b32 v{TM+2}, 1, v2
        v_mul_u32_u24 v{TM+2}, 384, v{TM+2}
        v_add_u32 v{TM+2}, s43, v{TM+2}
        v_lshl_add_u32 v16, v{TM+1}, 4, v{TM+2}
        v_xor_b32 v{TM+1}, 4, v{TM+1}
        v_lshl_add_u32 v15, v{TM+1}, 4, v{TM+2}
        v_mov_b32 v17, 1.0
        v_lshlrev_b32 v18, 4, v1
        v_lshlrev_b32 v19, 5, v2
        v_mov_b32 v20, 0x3f803f80
        v_mov_b32 v21, 0x3f803f80
        v_mov_b32 v22, 0x3f803f80
        v_mov_b32 v23, 0x3f803f80
        ''')
        QRA = 199
        e(f'''
        v_mul_u32_u24 v{QRA}, 400, v2
        v_lshl_add_u32 v{QRA}, v{TM}, 4, v{QRA}
        ''')
        for i in range(8): e(f'v_mov_b32 v{AC+i}, 0')
        A0, A1, A2, A3 = 4, 5, 6, 7
        C0, C1, C2, C3, C4 = 8, 9, 10, 11, 12
        e(f'''
        v_bfe_u32 v{TM}, v1, 2, 4
        v_bfe_u32 v{TM+1}, v{TM}, 1, 2
        v_lshlrev_b32 v{TM+1}, 1, v{TM+1}
        v_lshrrev_b32 v{TM+2}, 3, v{TM}
        v_or_b32 v{TM+1}, v{TM+1}, v{TM+2}
        v_bfe_u32 v{TM+2}, v1, 1, 1
        s_and_b32 s44, s28, 1
        s_lshl_b32 s44, s44, 2
        v_or_b32 v{TM+2}, s44, v{TM+2}
        v_xor_b32 v{TM+1}, v{TM+1}, v{TM+2}
        v_mul_u32_u24 v{TM+3}, 384, v{TM}
        v_and_b32 v{TM+4}, 1, v1
        v_lshl_add_u32 v{TM+3}, v{TM+4}, 3, v{TM+3}
        s_lshr_b32 s45, s28, 1
        s_lshl_b32 s45, s45, 7
        s_add_u32 s45, s45, {L_X}
        v_add_u32 v{TM+3}, s45, v{TM+3}
        v_lshl_add_u32 v{A0}, v{TM+1}, 4, v{TM+3}
        v_xor_b32 v{TM+1}, 2, v{TM+1}
        v_lshl_add_u32 v{A1}, v{TM+1}, 4, v{TM+3}
        v_add_u32 v{A2}, {4*XREG}, v{A0}
        v_add_u32 v{A3}, {4*XREG}, v{A1}
        v_and_b32 v{TM}, 1, v3
        v_lshlrev_b32 v{TM}, 2, v{TM}
        v_lshrrev_b32 v{TM+1}, 1, v3
        v_or_b32 v{TM}, v{TM}, v{TM+1}
        v_xor_b32 v{TM}, v{TM}, v{TM+2}
        v_bfe_u32 v{TM+1}, v1, 2, 1
        v_lshl_add_u32 v{TM+1}, v3, 1, v{TM+1}
        v_mul_u32_u24 v{TM+1}, 384, v{TM+1}
        v_lshl_add_u32 v{TM+1}, v{TM+4}, 3, v{TM+1}
        v_add_u32 v{TM+1}, s45, v{TM+1}
        v_bfe_u32 v{TM+3}, v1, 3, 1
        v_mul_u32_u24 v{TM+3}, {XREG}, v{TM+3}
        v_add_u32 v{TM+3}, v{TM+3}, v{TM+1}
        v_lshl_add_u32 v{C0}, v{TM}, 4, v{TM+3}
        v_xor_b32 v{TM}, 2, v{TM}
        v_lshl_add_u32 v{C1}, v{TM}, 4, v{TM+3}
        v_add_u32 v{C2}, {4*XREG}, v{C0}
        v_add_u32 v{C3}, {4*XREG}, v{C1}
        v_lshl_add_u32 v{C5}, v{TM}, 4, v{TM+1}
        v_xor_b32 v{TM}, 2, v{TM}
        v_lshl_add_u32 v{C4}, v{TM}, 4, v{TM+1}
        v_add_u32 v{C4}, {6*XREG}, v{C4}
        v_add_u32 v{C5}, {6*XREG}, v{C5}
        ''')
        self.qblock_addr(QA)

        def aread(dst, ve, vo, off):
            for ks in range(6):
                e(f'ds_read_b128 {vr(dst+4*ks,4)}, v{ve if ks % 2 == 0 else vo} offset:{off + (ks >> 1)*128}')
        e(f's_mov_b32 s44, {f32bits(1.0/192)}')
        e(f's_mov_b32 s45, {f32bits(1e-5)}')
        def finalize(t, SD, SSD):
            for r in range(4): e(f'v_mul_f32 v{SD+r}, s44, v{SD+r}')
            for r in range(4): e(f'v_mul_f32 v{TM+r}, v{SD+r}, v{SD+r}')
            for r in range(4): e(f'v_fma_f32 v{SSD+r}, v{SSD+r}, s44, -v{TM+r}')
            for r in range(4): e(f'v_max_f32 v{SSD+r}, 0, v{SSD+r}')
            for r in range(4): e(f'v_add_f32 v{SSD+r}, s45, v{SSD+r}')
            for r in range(4): e(f'v_rsq_f32 v{RS+4*t+r}, v{SSD+r}')
            for r in range(4): e(f'v_sub_f32 v{M0E+4*t+r}, v{SD+r}, v{S1+r}')
            for r in range(4): e(f'v_mul_f32 v{MR+4*t+r}, v{SD+r}, v{RS+4*t+r}')
        def xissue(k):
            if k < 7:
                for ee in range(2):
                    base = (A0, A1)[ee] if k < 4 else (A2, A3)[ee]
                    uoff = (k if k < 4 else k - 4) * XREG
                    for tt in range(2):
                        e(f'ds_read_b64_tr_b16 {vr(XQ[k*2+ee] + tt*2, 2)}, v{base} offset:{uoff + 3072 + tt*6144}')
            else:
                aa = k - 7
                for ee in range(2):
                    for hh in range(2):
                        if aa == 0: base, off = (C0, C1)[ee], hh * 2 * XREG
                        elif hh == 0: base, off = (C2, C3)[ee], 0
                        else: base, off = (C4, C5)[ee], 0
                        e(f'ds_read_b64_tr_b16 {vr(XQ[k*2+ee] + hh*2, 2)}, v{base} offset:{off}')
        ac = AC + 2
        def stats_tail(SSD):
            e(f'''
            v_add_f32 v{ac}, v{ac}, v{ac+1}
            v_add_f32 v{ac+2}, v{ac+2}, v{ac+3}
            v_add_f32 v{ac}, v{ac}, v{AC}
            v_fma_f32 v{ac}, 2.0, v{ac+2}, v{ac}
            {MF4} {vr(SSD,4)}, v{ac}, v17, 0
            ''')
        def dots(TT):
            for i in range(24):
                e(f'v_dot2c_f32_bf16 v{ac+(i&1)}, v{TT+i}, v{TT+i}')
                e(f'v_dot2c_f32_bf16 v{ac+2+(i&1)}, v{TT+i}, v{F1+i}')
        SM1 = TM + 8
        e('s_waitcnt vmcnt(3)')
        fine_group(1)
        aread(F1, 16, 15, 0)
        for ks in range(6):
            e(f's_waitcnt lgkmcnt({5-ks})')
            e(f'{MF} {vr(S1,4)}, {vr(F1+4*ks,4)}, {vr(ONES,4)}, ' + ('0' if ks == 0 else vr(S1, 4)))
        for r in range(F1, F1 + 24):
            e(f'v_dot2c_f32_bf16 v{AC+(r&1)}, v{r}, v{r}')
        e(f'v_add_f32 v{AC}, v{AC}, v{AC+1}')
        for r in range(4): e(f'v_mov_b32 v{L1+r}, v{S1+r}')
        for r in range(4): e(f'v_mul_f32 v{S1+r}, s44, v{S1+r}')
        e(f'v_mov_b32 v{M1}, v{S1}')
        e(f'v_mov_b32 v{M1+1}, v{S1+2}')
        e('s_waitcnt vmcnt(3)')
        fine_group(2)
        e('s_waitcnt vmcnt(3)')
        fine_group(3)
        aread(T0, 13, 14, 3072)
        for ks in range(6):
            e(f's_waitcnt lgkmcnt({5-ks})')
            e(f'{MF} {vr(S0,4)}, {vr(T0+4*ks,4)}, {vr(ONES,4)}, ' + (vr(L1, 4) if ks == 0 else vr(S0, 4)))
        dots(T0)
        stats_tail(SS0)
        for i in range(4): e(f'v_mov_b32 v{ac+i}, 0')
        finalize(0, S0, SS0)
        self.stamp(2)
        e('s_waitcnt vmcnt(3)')
        self.qblock_issue(QA, QL)
        e('s_waitcnt vmcnt(4)')
        self.stamp(7)
        aread(T1, 13, 14, 3072 + 6144)
        for ks in range(6):
            e(f's_waitcnt lgkmcnt({5-ks})')
            e(f'{MF} {vr(S0b,4)}, {vr(T1+4*ks,4)}, {vr(ONES,4)}, ' + (vr(L1, 4) if ks == 0 else vr(S0b, 4)))
        dots(T1)
        stats_tail(SS1)
        finalize(1, S0b, SS1)
        self.stamp(8)
        self.qblock_finish(QA, QL, QT)
        e('s_waitcnt lgkmcnt(0)')
        e('s_barrier')
        self.stamp(3)
        for ks in range(6):
            e(f'ds_read_b128 {vr(QK+4*ks,4)}, v{QRA} offset:{L_QK + ks*64}')
        e(f'v_lshlrev_b32 v{TM+1}, 4, v2')
        e(f'ds_read_b128 {vr(TM+4,4)}, v{TM+1} offset:{L_SQ}')
        for ks in range(6):
            e(f's_waitcnt lgkmcnt({6-ks})')
            e(f'{MF} {vr(L1,4)}, {vr(F1+4*ks,4)}, {vr(QK+4*ks,4)}, ' + ('0' if ks == 0 else vr(L1, 4)))
        e('s_waitcnt lgkmcnt(0)')
        lsk = self.lab('skipx')
        self.br(f'''
        s_cmp_ge_u32 s28, 6
        s_cbranch_scc1 {lsk}''')
        for k in range(9): xissue(k)
        a.label(lsk)
        for ks in range(6):
            e(f'{MF} {vr(L0,4)}, {vr(T0+4*ks,4)}, {vr(QK+4*ks,4)}, ' + (vr(L1, 4) if ks == 0 else vr(L0, 4)))
            e(f'{MF} {vr(L0b,4)}, {vr(T1+4*ks,4)}, {vr(QK+4*ks,4)}, ' + (vr(L1, 4) if ks == 0 else vr(L0b, 4)))
            if ks == 0:
                e(f'''
                v_add_f32 v{TM+4}, v{TM+4}, v{TM+5}
                v_add_f32 v{TM+6}, v{TM+6}, v{TM+7}
                v_add_f32 v{SQ}, v{TM+4}, v{TM+6}
                ''')
                for x in range(8): e(f'v_mul_f32 v{MR+x}, v{MR+x}, v{SQ}')
        for t, LD in enumerate((L0, L0b)):
            for r in range(4):
                e(f'v_fma_f32 v{LD+r}, v{LD+r}, v{RS+4*t+r}, -v{MR+4*t+r}')
        e(f'''
        v_max3_f32 v{TM}, v{L0}, v{L0+1}, v{L0+2}
        v_max3_f32 v{TM+1}, v{L0+3}, v{L0b}, v{L0b+1}
        v_max3_f32 v{TM}, v{TM}, v{L0b+2}, v{L0b+3}
        v_max_f32 v{TM}, v{TM}, v{TM+1}
        v_mov_b32 v{TM+1}, v{TM}
        v_permlane16_swap_b32 v{TM}, v{TM+1}
        v_max_f32 v{TM}, v{TM}, v{TM+1}
        v_mov_b32 v{TM+1}, v{TM}
        v_permlane32_swap_b32 v{TM}, v{TM+1}
        v_max_f32 v{TM}, v{TM}, v{TM+1}
        s_lshl_b32 s46, s28, 2
        v_add_u32 v{TM+2}, s46, v19
        ds_write_b32 v{TM+2}, v{TM} offset:{L_MX}
        s_waitcnt lgkmcnt(0)
        s_barrier
        ds_read_b128 {vr(TM+4,4)}, v19 offset:{L_MX}
        ds_read_b128 {vr(TM+8,4)}, v19 offset:{L_MX+16}
        s_waitcnt lgkmcnt(0)
        v_max3_f32 v{TM}, v{TM+4}, v{TM+5}, v{TM+6}
        v_max3_f32 v{TM+1}, v{TM+7}, v{TM+8}, v{TM+9}
        v_max3_f32 v{TM}, v{TM}, v{TM+10}, v{TM+11}
        v_max_f32 v{TM}, v{TM}, v{TM+1}
        v_ceil_f32 v{TM}, v{TM}
        ''')
        self.stamp(4)
        P = [L0, L0 + 1, L0 + 2, L0 + 3, L0b, L0b + 1, L0b + 2, L0b + 3]
        for x in P: e(f'v_sub_f32 v{x}, v{x}, v{TM}')
        for x in P: e(f'v_exp_f32 v{x}, v{x}')
        W = TM + 4
        e(f'v_add_f32 v{TM}, v{P[0]}, v{P[1]}')
        e(f'v_add_f32 v{TM+1}, v{P[2]}, v{P[3]}')
        for x in range(4, 8, 2):
            e(f'v_add_f32 v{TM}, v{TM}, v{P[x]}')
            e(f'v_add_f32 v{TM+1}, v{TM+1}, v{P[x+1]}')
        for x in range(8): e(f'v_mul_f32 v{P[x]}, v{P[x]}, v{RS+x}')
        e(f'v_add_f32 v{TM}, v{TM}, v{TM+1}')
        for i in range(4): e(f'v_cvt_pk_bf16_f32 v{W+i}, v{P[2*i]}, v{P[2*i+1]}')
        e(f'{MF4} {vr(QK,4)}, v17, v{TM}, 0')
        e(f'''
        s_lshl_b32 s46, s28, 10
        v_add_u32 v{TM+3}, s46, v18
        ds_write_b128 v{TM+3}, {vr(W,4)} offset:{L_WF}
        v_add_f32 v{TM+8}, v{P[0]}, v{P[1]}
        v_add_f32 v{TM+9}, v{P[4]}, v{P[5]}
        v_add_f32 v{TM+10}, v{P[2]}, v{P[3]}
        v_add_f32 v{TM+11}, v{P[6]}, v{P[7]}
        v_add_f32 v{TM+8}, v{TM+8}, v{TM+9}
        v_add_f32 v{TM+10}, v{TM+10}, v{TM+11}
        v_cvt_pk_bf16_f32 v{TM+8}, v{TM+8}, v{TM+10}
        ''')
        for i in range(4):
            e(f'v_lshlrev_b32 v{P[2*i]}, 16, v{W+i}')
            e(f'v_and_b32 v{P[2*i+1]}, 0xffff0000, v{W+i}')
        e(f'''
        s_lshr_b32 s46, s28, 2
        s_lshl_b32 s46, s46, 10
        s_and_b32 s47, s28, 3
        s_lshl_b32 s47, s47, 2
        s_add_u32 s46, s46, s47
        v_add_u32 v{TM+3}, s46, v18
        ds_write_b32 v{TM+3}, v{TM+8} offset:{L_WC}
        v_lshlrev_b32 v{TM+9}, 16, v{TM+8}
        v_and_b32 v{TM+10}, 0xffff0000, v{TM+8}
        v_mul_f32 v{TM+1}, v{TM+9}, v{M1}
        v_mul_f32 v{TM+2}, v{TM+10}, v{M1+1}
        ''')
        for x in range(0, 8, 2):
            e(f'v_fmac_f32 v{TM+1}, v{P[x]}, v{M0E+x}')
            e(f'v_fmac_f32 v{TM+2}, v{P[x+1]}, v{M0E+x+1}')
        e(f'v_add_f32 v{TM+1}, v{TM+1}, v{TM+2}')
        e(f'{MF4} {vr(QK+4,4)}, v17, v{TM+1}, 0')
        e(f'''
        s_lshl_b32 s46, s28, 2
        v_add_u32 v{TM+3}, s46, v19
        ds_write_b32 v{TM+3}, v{QK} offset:{L_LS}
        ds_write_b32 v{TM+3}, v{QK+4} offset:{L_CO}
        s_waitcnt lgkmcnt(0)
        s_barrier
        ''')
        self.stamp(5)
        self.br('''
        s_cmp_ge_u32 s28, 6
        s_cbranch_scc1 L_end''')
        WBL = [24 + 4 * i for i in range(6)] + [72, 76, 80]
        ACC, CW, O = 84, 104, 112
        for k in range(9):
            e(f'ds_read_b128 {vr(WBL[k],4)}, v18 offset:{(L_WF + k*1024) if k < 7 else (L_WC + (k-7)*1024)}')
        e(f'ds_read_b128 {vr(CW,4)}, v19 offset:{L_CO}')
        e(f'ds_read_b128 {vr(CW+4,4)}, v19 offset:{L_CO+16}')
        e(f'''
        v_mul_u32_u24 v{TM}, {2*ZREG}, v2
        v_and_b32 v{TM+1}, 1, v3
        v_lshlrev_b32 v{TM+1}, 5, v{TM+1}
        v_lshrrev_b32 v{TM+2}, 1, v3
        v_lshl_add_u32 v{TM+1}, v{TM+2}, 4, v{TM+1}
        v_add_u32 v{TM}, v{TM}, v{TM+1}
        s_mul_i32 s46, s30, 192
        s_add_u32 s46, s46, {WS_Z}
        s_cmp_ge_u32 s28, 3
        s_cselect_b32 s47, {ZREG - 192}, 0
        s_add_u32 s46, s46, s47
        s_lshl_b32 s47, s28, 6
        s_add_u32 s46, s46, s47
        v_add_u32 v{TM}, s46, v{TM}
        ''')
        for k in range(9):
            e(f's_waitcnt lgkmcnt({10-k})')
            for ee in range(2):
                e(f'{MF} {vr(ACC+4*ee,4)}, {vr(XQ[k*2+ee],4)}, {vr(WBL[k],4)}, ' + ('0' if k == 0 else vr(ACC + 4 * ee, 4)))
        e(f'''
        s_waitcnt lgkmcnt(0)
        v_add_f32 v{CW}, v{CW}, v{CW+1}
        v_add_f32 v{CW+2}, v{CW+2}, v{CW+3}
        v_add_f32 v{CW+4}, v{CW+4}, v{CW+5}
        v_add_f32 v{CW+6}, v{CW+6}, v{CW+7}
        v_add_f32 v{CW}, v{CW}, v{CW+2}
        v_add_f32 v{CW+4}, v{CW+4}, v{CW+6}
        v_add_f32 v{CW}, v{CW}, v{CW+4}
        ''')
        for x in range(8): e(f'v_sub_f32 v{ACC+x}, v{ACC+x}, v{CW}')
        e(f'''
        v_cvt_pk_bf16_f32 v{O}, v{ACC}, v{ACC+1}
        v_cvt_pk_bf16_f32 v{O+1}, v{ACC+2}, v{ACC+3}
        v_cvt_pk_bf16_f32 v{O+2}, v{ACC+4}, v{ACC+5}
        v_cvt_pk_bf16_f32 v{O+3}, v{ACC+6}, v{ACC+7}
        v_permlane16_swap_b32 v{O}, v{O+2}
        v_permlane16_swap_b32 v{O+1}, v{O+3}
        global_store_dwordx4 v{TM}, {vr(O,4)}, s[26:27] sc1
        s_barrier
        ''')
        self.stamp(6)
        self.br('s_branch L_end')

        a.label(lh)
        e(f'''
        v_lshlrev_b32 v18, 4, v1
        v_lshlrev_b32 v19, 5, v2
        v_mov_b32 v4, 0
        v_mov_b32 v5, 0xff800000
        ds_write_b32 v18, v4 offset:{L_WC + 1024 + 12}
        ds_write_b32 v19, v5 offset:{L_MX + 28}
        ds_write_b32 v19, v4 offset:{L_LS + 28}
        ds_write_b32 v19, v4 offset:{L_CO + 28}
        ''')
        e(f'''
        v_mov_b32 v56, -1
        v_mov_b32 v57, -1
        v_mov_b32 v58, -1
        v_mov_b32 v59, -1
        v_min_u32 v12, 47, v1
        v_mul_u32_u24 v13, 43, v12
        v_lshrrev_b32 v13, 9, v13
        v_mul_u32_u24 v14, 12, v13
        v_sub_u32 v14, v12, v14
        v_mul_u32_u24 v13, {ZREG}, v13
        v_lshl_add_u32 v13, v14, 4, v13
        s_mul_i32 s44, s30, 192
        s_add_u32 s44, s44, {WS_Z}
        v_add_u32 v13, s44, v13
        ''')
        for i in range(8):
            e('global_store_dwordx4 v13, v[56:59], s[26:27] sc1')
            if i < 7: e(f'v_add_u32 v13, {4*ZREG}, v13')
        loi = self.lab('oi')
        self.br(f'''
        s_cmp_ge_u32 s30, 16
        s_cbranch_scc1 {loi}''')
        e('''
        s_mul_i32 s44, s30, 384
        v_lshl_add_u32 v13, v1, 4, s44
        s_mov_b32 exec_lo, 0xffffff
        s_mov_b32 exec_hi, 0
        global_load_dwordx4 v[60:63], v13, s[8:9]
        s_waitcnt vmcnt(0)
        global_store_dwordx4 v13, v[60:63], s[22:23] sc1
        s_mov_b64 exec, -1
        ''')
        a.label(loi)
        self.qblock_addr(8)
        e(f's_sleep {self.opt.get("isleep", 100)}')
        e('v_mov_b32 v12, 0')
        lp0, ld0 = self.lab('n0'), self.lab('n0d')
        e('s_mov_b32 s42, 0')
        a.label(lp0)
        e('global_load_dword v52, v12, s[24:25] sc1')
        self.qblock_issue(8, 24)
        e('''
        s_add_u32 s42, s42, 1
        s_waitcnt vmcnt(4)
        v_cmp_eq_u32 vcc, 0, v52
        ''')
        self.br(f's_cbranch_vccz {ld0}')
        e('s_cmp_lt_u32 s42, 0x40000')
        self.br(f's_cbranch_scc1 {lp0}')
        a.label(ld0)
        self.stamp(2)
        self.qblock_finish(8, 24, 40)
        e('s_waitcnt lgkmcnt(0)')
        self.stamp(4)
        e('s_barrier')
        self.stamp(3)
        e(f'''
        s_barrier
        s_barrier
        ds_read_b128 v[24:27], v19 offset:{L_MX}
        ds_read_b128 v[28:31], v19 offset:{L_MX+16}
        ds_read_b128 v[32:35], v19 offset:{L_LS}
        ds_read_b128 v[36:39], v19 offset:{L_LS+16}
        s_lshl_b32 s44, s30, 8
        s_add_u32 s44, s44, {WS_ML}
        v_lshl_add_u32 v8, v2, 4, s44
        v_mov_b32 v6, v52
        v_mov_b32 v7, v52
        s_waitcnt lgkmcnt(0)
        v_max3_f32 v4, v24, v25, v26
        v_max3_f32 v5, v27, v28, v29
        v_max3_f32 v4, v4, v30, v31
        v_max_f32 v4, v4, v5
        v_ceil_f32 v4, v4
        v_add_f32 v32, v32, v33
        v_add_f32 v34, v34, v35
        v_add_f32 v36, v36, v37
        v_add_f32 v38, v38, v39
        v_add_f32 v32, v32, v34
        v_add_f32 v36, v36, v38
        v_add_f32 v5, v32, v36
        s_barrier
        s_mov_b32 exec_lo, 0xffff
        s_mov_b32 exec_hi, 0
        global_store_dwordx4 v8, v[4:7], s[26:27] sc1
        ''')
        self.stamp(6)
        self.br('s_branch L_end')


HEADER = open('standalone__detection_seg_dino__vision.s.ref').read().split('; Override')[0]

def kd(name, vgpr=256, sgpr=102):
    return '''.amdhsa_kernel %s
  .amdhsa_next_free_vgpr %d
  .amdhsa_next_free_sgpr %d
  .amdhsa_accum_offset %d
  .amdhsa_group_segment_fixed_size 0
  .amdhsa_kernarg_size 80
  .amdhsa_user_sgpr_count 2
  .amdhsa_user_sgpr_kernarg_segment_ptr 1
  .amdhsa_system_sgpr_workgroup_id_x 1
.end_amdhsa_kernel
''' % (name, vgpr, sgpr, (vgpr + 3) // 4 * 4)

def build(stamps=False, opt=None):
    out = HEADER
    out += '; @launch grid=(256,1,1) block=(512,1,1) lds=%d\n' % max(LDS_TOTAL, L_X + 7 * XREG)
    out += '.amdgcn_target "amdgcn-amd-amdhsa--gfx950"\n.text\n'
    G = Gen(stamps, opt)
    a = G.a
    n = KNAME
    a.raw('.globl %s\n.p2align 8\n.type %s,@function\n%s:' % (n, n, n))
    G.br('''
    s_cmp_ge_u32 s2, 256
    s_cbranch_scc1 L_exit''')
    G.stamp_init()
    G.prologue()
    G.stamp(0)
    G.br('''
    s_cmp_ge_u32 s2, 32
    s_cbranch_scc1 L_role_main''')
    G.e('''
    s_and_b32 s31, s2, 7
    s_lshr_b32 s32, s2, 3
    s_lshl_b32 s30, s31, 2
    s_add_u32 s30, s30, s32
    ''')
    G.br('''
    s_cmp_ge_u32 s31, 6
    s_cbranch_scc1 L_role_final''')
    G.br('''
    s_cmp_ge_u32 s31, 3
    s_cbranch_scc1 L_role_wvo''')
    G.role_qk()
    G.br('s_branch L_role_final')
    a.label('L_role_wvo')
    G.e('s_sub_u32 s30, s30, 12')
    G.role_wvo()
    a.label('L_role_final')
    G.role_final(False)
    a.label('L_role_main')
    G.e('s_sub_u32 s30, s2, 32')
    G.role_main()
    a.label('L_end')
    G.stamp_flush()
    a.label('L_exit')
    G.e('s_endpgm')
    out += a.text()
    out += '.section .rodata,"a"\n.p2align 6\n' + kd(n)
    return out

if __name__ == '__main__':
    ap = argparse.ArgumentParser()
    ap.add_argument('--stamps', action='store_true')
    ap.add_argument('--opt', default='')
    ap.add_argument('-o', default='standalone__detection_seg_dino__vision.s')
    args = ap.parse_args()
    OPT = {}
    for kv in args.opt.split(','):
        if kv:
            k, v = kv.split('='); OPT[k] = int(v)
    s = build(args.stamps, OPT)
    open(args.o, 'w').write(s)
    print('wrote', args.o, len(s), 'bytes')
```

```python
import sys, argparse, struct
from asmdsl import Asm

KNAME = 'standalone__detection_seg_dino__vision_kernel'

WS_QK = 0
WS_ML = 32768
WS_Z = 131072
ZREG = 224 * 192
WS_WVO = 0x200000
WS_WF = 0x220000

XREG = 15392
L_QK = 0
L_WF = 6400
L_WC = L_WF + 7168
L_SQ = L_WC + 2048
L_MX = L_SQ + 256
L_LS = L_MX + 512
L_CO = L_LS + 512
L_X = 17408
H_RED = 0
H_ZC = 0
H_SCT = 6656
H_WM = 7680
H_WL = 7712
H_NON = 12288
H_Q = 12544
H_WK = 18688
H_WQ = 24832
H_WV = 12544
H_WO = 49408
LDS_TOTAL = 61696

QSCALE = (192.0 ** -0.5) * 1.4426950408889634

def f32bits(x):
    return '0x%08x' % struct.unpack('<I', struct.pack('<f', x))[0]

def vr(a, n):
    return 'v[%d:%d]' % (a, a + n - 1)

MF = 'v_mfma_f32_16x16x32_bf16'
MF4 = 'v_mfma_f32_16x16x4_f32'

class Gen:
    def __init__(self, stamps=False, opt=None):
        self.a = Asm()
        self.stamps = stamps
        self.opt = opt or {}
        self.uid = 0

    def lab(self, base):
        self.uid += 1
        return 'L_%s_%d' % (base, self.uid)

    def e(self, text):
        self.a.emit(text)

    def br(self, text):
        for l in text.strip().split('\n'):
            self.a.branch(l.strip())

    def prologue(self):
        self.e('''
        s_load_dwordx16 s[8:23], s[0:1], 0
        s_load_dwordx4 s[24:27], s[0:1], 64
        v_and_b32 v1, 63, v0
        v_lshrrev_b32 v4, 6, v0
        v_and_b32 v2, 15, v1
        v_readfirstlane_b32 s28, v4
        v_lshrrev_b32 v3, 4, v1
        s_waitcnt lgkmcnt(0)
        ''')

    def stamp(self, idx):
        if not self.stamps: return
        self.e('s_memrealtime s[%d:%d]' % (60 + 2 * idx, 61 + 2 * idx))
        self.e('s_waitcnt lgkmcnt(0)')

    def stamp_init(self):
        if not self.stamps: return
        for i in range(24):
            self.e('s_mov_b32 s%d, 0' % (60 + i))

    def stamp_flush(self):
        if not self.stamps: return
        self.e('''
        s_lshl_b32 s92, s2, 3
        s_add_u32 s92, s92, s28
        s_lshl_b32 s92, s92, 7
        s_add_u32 s92, s92, %d
        s_mov_b64 exec, 1
        v_mov_b32 v4, s92
        ''' % 0x1000000)
        for i in range(12):
            self.e('v_mov_b32 v6, s%d' % (60 + 2 * i))
            self.e('v_mov_b32 v7, s%d' % (61 + 2 * i))
            self.e('global_store_dwordx2 v4, v[6:7], s[26:27] offset:%d' % (i * 8))
            self.e('s_nop 1')

    def setexec(self, mask):
        lo, hi = mask & 0xffffffff, mask >> 32
        if mask == (1 << 64) - 1:
            self.e('s_mov_b64 exec, -1')
        else:
            self.e('s_mov_b32 exec_lo, 0x%x' % lo)
            self.e('s_mov_b32 exec_hi, 0x%x' % hi)

    def poll_dbg(self, byte_off, ndw, vt, sleep):
        lp, ld = self.lab('poll'), self.lab('polld')
        self.e(f'''
        v_lshlrev_b32 v{vt}, 2, v1
        v_mov_b32 v{vt+1}, 0x01010101
        s_mov_b32 s42, 0
        ''')
        self.setexec((1 << ndw) - 1)
        self.a.label(lp)
        self.e(f'''
        global_load_dword v{vt+2}, v{vt}, s[24:25] offset:{byte_off} sc1
        s_add_u32 s42, s42, 1
        s_waitcnt vmcnt(0)
        v_cmp_ne_u32 vcc, v{vt+2}, v{vt+1}
        ''')
        self.br(f's_cbranch_vccz {ld}')
        self.e(f's_sleep {sleep}')
        self.e('s_cmp_lt_u32 s42, 0x40000')
        self.br(f's_cbranch_scc1 {lp}')
        self.a.label(ld)
        self.e('s_mov_b64 exec, -1')

    def poll_nonce0(self, vdst, vt):
        lp, ld = self.lab('poll'), self.lab('polld')
        self.e(f'''
        v_mov_b32 v{vt}, 0
        s_mov_b32 s42, 0
        ''')
        self.a.label(lp)
        self.e(f'''
        global_load_dword v{vdst}, v{vt}, s[24:25] sc1
        s_add_u32 s42, s42, 1
        s_waitcnt vmcnt(0)
        v_cmp_eq_u32 vcc, 0, v{vdst}
        ''')
        self.br(f's_cbranch_vccz {ld}')
        self.e('s_sleep 2')
        self.e('s_cmp_lt_u32 s42, 0x40000')
        self.br(f's_cbranch_scc1 {lp}')
        self.a.label(ld)

    def role_wvo(self):
        a, e = self.a, self.e
        WO, AV, DD = 24, 72, 96
        e(f'''
        s_cmp_ge_u32 s30, 6
        s_cselect_b32 s31, 1, 0
        s_mul_i32 s32, s31, 6
        s_sub_u32 s32, s30, s32
        ''')
        lw, lw2 = self.lab('wvo_a'), self.lab('wvo_b')
        self.br(f'''
        s_cmp_ge_u32 s28, 6
        s_cbranch_scc1 {lw}''')
        e(f'''
        s_mul_i32 s33, s28, 6144
        s_mul_i32 s34, s31, 36864
        s_add_u32 s34, s34, s33
        v_lshl_add_u32 v9, v1, 4, s34
        s_add_u32 s34, s33, {H_WV}
        ''')
        for i in range(6):
            e(f's_add_u32 m0, s34, {i*1024}')
            if i: e('v_add_u32 v9, 1024, v9')
            e('global_load_lds_dwordx4 v9, s[18:19]')
        self.br(f's_branch {lw2}')
        a.label(lw)
        e(f'''
        s_sub_u32 s33, s28, 6
        v_lshrrev_b32 v9, 2, v1
        v_mul_u32_u24 v9, 384, v9
        v_and_b32 v8, 3, v1
        v_lshl_add_u32 v9, v8, 4, v9
        s_mul_i32 s34, s33, 36864
        s_lshl_b32 s35, s32, 6
        s_add_u32 s34, s34, s35
        v_add_u32 v9, s34, v9
        s_mul_i32 s34, s33, 6144
        s_add_u32 s34, s34, {H_WO}
        ''')
        for i in range(6):
            e(f's_add_u32 m0, s34, {i*1024}')
            if i: e('v_add_u32 v9, 6144, v9')
            e('global_load_lds_dwordx4 v9, s[20:21]')
        a.label(lw2)
        e('s_waitcnt vmcnt(0)')
        e('s_barrier')
        ldone = self.lab('wvo_d')
        self.br(f'''
        s_cmp_ge_u32 s28, 6
        s_cbranch_scc1 {ldone}''')
        e(f'''
        v_bfe_u32 v6, v1, 2, 2
        v_lshl_add_u32 v6, v3, 3, v6
        v_lshlrev_b32 v6, 6, v6
        v_and_b32 v7, 3, v1
        v_lshl_add_u32 v6, v7, 3, v6
        v_mul_u32_u24 v7, 384, v2
        v_lshl_add_u32 v7, v3, 4, v7
        s_mul_i32 s33, s28, 6144
        s_add_u32 s33, s33, {H_WV}
        v_add_u32 v7, s33, v7
        ''')
        for ks in range(6):
            e(f'ds_read_b128 {vr(AV+4*ks,4)}, v7 offset:{ks*64}')
        for d in range(2):
            for ks in range(6):
                for h in range(2):
                    e(f'ds_read_b64_tr_b16 {vr(WO + (d*6+ks)*4 + 2*h, 2)}, v6 offset:{H_WO + ks*2048 + h*256 + d*32}')
        e('s_waitcnt lgkmcnt(0)')
        for ks in range(6):
            for ee in range(2):
                D = DD + 4 * ee
                e(f'{MF} {vr(D,4)}, {vr(AV+4*ks,4)}, {vr(WO + (ee*6+ks)*4, 4)}, ' + ('0' if ks == 0 else vr(D, 4)))
        e(f'''
        s_mul_i32 s33, s30, 6144
        s_lshr_b32 s34, s28, 1
        s_lshl_b32 s34, s34, 10
        s_add_u32 s33, s33, s34
        s_and_b32 s34, s28, 1
        s_lshl_b32 s34, s34, 3
        s_add_u32 s33, s33, s34
        s_add_u32 s33, s33, {WS_WVO}
        v_lshl_add_u32 v5, v1, 4, s33
        v_cvt_pk_bf16_f32 v{DD+8}, v{DD}, v{DD+1}
        v_cvt_pk_bf16_f32 v{DD+9}, v{DD+2}, v{DD+3}
        v_cvt_pk_bf16_f32 v{DD+10}, v{DD+4}, v{DD+5}
        v_cvt_pk_bf16_f32 v{DD+11}, v{DD+6}, v{DD+7}
        global_store_dwordx2 v5, {vr(DD+8,2)}, s[26:27] sc1
        global_store_dwordx2 v5, {vr(DD+10,2)}, s[26:27] offset:3072 sc1
        s_waitcnt vmcnt(0)
        ''')
        a.label(ldone)
        e('s_barrier')
        lnf = self.lab('wvo_nf')
        self.br(f'''
        s_cmp_lg_u32 s28, 0
        s_cbranch_scc1 {lnf}''')
        self.poll_nonce0(10, 4)
        e(f'''
        s_lshl_b32 s33, s30, 7
        s_add_u32 s33, s33, {WS_WF}
        v_mov_b32 v4, s33
        s_mov_b64 exec, 1
        global_store_dword v4, v10, s[26:27] sc1
        s_mov_b64 exec, -1
        ''')
        a.label(lnf)
        self.stamp(1)

    def qblock_addr(self, VA):
        self.e(f'''
        s_lshl_b32 s46, s28, 10
        v_add_u32 v{VA}, s46, v18
        v_add_u32 v{VA+1}, 8192, v{VA}
        v_add_u32 v{VA+2}, 16384, v{VA}
        s_lshr_b32 s46, s28, 1
        s_mul_i32 s46, s46, 12
        v_mov_b32 v{VA+3}, s46
        ''')

    def qblock_issue(self, VA, QL):
        self.e(f'''
        global_load_dwordx3 {vr(QL+12, 3)}, v{VA+3}, s[24:25] sc1
        global_load_dwordx4 {vr(QL, 4)}, v{VA}, s[26:27] sc1
        global_load_dwordx4 {vr(QL+4, 4)}, v{VA+1}, s[26:27] sc1
        global_load_dwordx4 {vr(QL+8, 4)}, v{VA+2}, s[26:27] sc1
        ''')

    def qblock_finish(self, VA, QL, QT):
        lr, lok = self.lab('qretry'), self.lab('qok')
        self.e('s_mov_b32 s42, 0')
        self.a.label(lr)
        self.e(f'''
        s_waitcnt vmcnt(0)
        v_xor_b32 v{QT}, v{QL+3}, v{QL+12}
        v_xor_b32 v{QT+1}, v{QL+7}, v{QL+13}
        v_xor_b32 v{QT+2}, v{QL+11}, v{QL+14}
        v_or3_b32 v{QT}, v{QT}, v{QT+1}, v{QT+2}
        v_min3_u32 v{QT+1}, v{QL+12}, v{QL+13}, v{QL+14}
        v_cmp_eq_u32 vcc, 0, v{QT+1}
        v_cndmask_b32 v{QT+1}, 0, 1, vcc
        v_or_b32 v{QT}, v{QT}, v{QT+1}
        v_cmp_ne_u32 vcc, 0, v{QT}
        ''')
        self.br(f's_cbranch_vccz {lok}')
        self.e('s_add_u32 s42, s42, 1')
        self.e('s_cmp_ge_u32 s42, 0x40000')
        self.br(f's_cbranch_scc1 {lok}')
        self.qblock_issue(VA, QL)
        self.br(f's_branch {lr}')
        self.a.label(lok)
        self.e(f'''
        v_mov_b32 v{QT+9}, 0x00003f80
        v_mov_b32 v{QT+10}, 0x3f800000
        v_mov_b32 v{QT+11}, 0x3f803f80
        ''')
        for p in range(3):
            for t in range(3):
                src = QL + 4 * p + t
                c0 = '0' if p == 0 else f'v{QT+2*t}'
                c1 = '0' if p == 0 else f'v{QT+2*t+1}'
                self.e(f'v_dot2_f32_bf16 v{QT+2*t}, v{src}, v{QT+9}, {c0}')
                self.e(f'v_dot2_f32_bf16 v{QT+2*t+1}, v{src}, v{QT+10}, {c1}')
        for t in range(3):
            self.e(f'v_cvt_pk_bf16_f32 v{QL+t}, v{QT+2*t}, v{QT+2*t+1}')
        self.e(f'''
        s_and_b32 s46, s28, 1
        s_lshl_b32 s46, s46, 3
        v_lshrrev_b32 v{QT+6}, 3, v1
        v_add_u32 v{QT+6}, s46, v{QT+6}
        v_and_b32 v{QT+7}, 7, v1
        v_mul_u32_u24 v{QT+7}, 12, v{QT+7}
        v_mul_u32_u24 v{QT+8}, 400, v{QT+6}
        s_lshr_b32 s47, s28, 1
        s_mul_i32 s46, s47, 96
        s_add_u32 s46, s46, {L_QK}
        v_add3_u32 v{QT+7}, v{QT+7}, v{QT+8}, s46
        ds_write2_b32 v{QT+7}, v{QL}, v{QL+1} offset0:0 offset1:1
        ds_write_b32 v{QT+7}, v{QL+2} offset:8
        v_mov_b32 v{QT}, 0
        v_dot2c_f32_bf16 v{QT}, v{QL}, v{QT+11}
        v_dot2c_f32_bf16 v{QT}, v{QL+1}, v{QT+11}
        v_dot2c_f32_bf16 v{QT}, v{QL+2}, v{QT+11}
        v_add_f32_dpp v{QT}, v{QT}, v{QT} quad_perm:[1,0,3,2] row_mask:0xf bank_mask:0xf
        v_add_f32_dpp v{QT}, v{QT}, v{QT} quad_perm:[2,3,0,1] row_mask:0xf bank_mask:0xf
        v_add_f32_dpp v{QT}, v{QT}, v{QT} row_half_mirror row_mask:0xf bank_mask:0xf
        s_lshl_b32 s47, s47, 2
        s_add_u32 s47, s47, {L_SQ}
        v_lshl_add_u32 v{QT+6}, v{QT+6}, 4, s47
        s_mov_b32 exec_lo, 0x01010101
        s_mov_b32 exec_hi, 0x01010101
        ds_write_b32 v{QT+6}, v{QT}
        s_mov_b64 exec, -1
        ''')

    def role_qk(self):
        a, e = self.a, self.e
        VQ, VWK, VWQ, T = 8, 32, 40, 88
        e('''
        s_mul_i32 s32, s30, 86
        s_lshr_b32 s32, s32, 8
        s_mul_i32 s31, s32, 3
        s_sub_u32 s31, s30, s31
        ''')
        l7 = self.lab('qk7')
        self.br(f'''
        s_cmp_lg_u32 s28, 7
        s_cbranch_scc1 {l7}''')
        e(f'''
        s_memrealtime s[40:41]
        s_lshl_b32 s33, s30, 2
        v_mov_b32 v6, s33
        v_mov_b32 v7, {H_NON}
        s_waitcnt lgkmcnt(0)
        s_or_b32 s40, s40, 1
        v_mov_b32 v5, s40
        s_mov_b64 exec, 1
        global_store_dword v6, v5, s[24:25] sc1
        ds_write_b32 v7, v5
        s_mov_b64 exec, -1
        ''')
        a.label(l7)
        e(f'''
        v_lshrrev_b32 v5, 3, v1
        v_mul_u32_u24 v5, 384, v5
        v_and_b32 v6, 7, v1
        v_bfe_u32 v7, v1, 4, 1
        v_lshlrev_b32 v7, 1, v7
        v_xor_b32 v6, v6, v7
        s_lshl_b32 s33, s31, 7
        s_mul_i32 s34, s28, 9216
        s_add_u32 s34, s34, s33
        v_add_u32 v8, s34, v5
        v_lshl_add_u32 v7, v6, 4, v8
        v_xor_b32 v6, 4, v6
        v_lshl_add_u32 v6, v6, 4, v8
        s_mul_i32 s34, s28, 3072
        s_add_u32 s34, s34, {H_WQ}
        s_and_b32 s35, s28, 1
        s_cmp_eq_u32 s35, 1
        s_cselect_b64 vcc, -1, 0
        v_cndmask_b32 v9, v7, v6, vcc
        v_cndmask_b32 v6, v6, v7, vcc
        ''')
        for k in range(3):
            e(f's_add_u32 m0, s34, {k*1024}')
            src = 9 if k % 2 == 0 else 6
            if k: e(f'v_add_u32 v{src}, {k*3072}, v{src}')
            e(f'global_load_lds_dwordx4 v{src}, s[14:15]')
        lnq = self.lab('qk_noq')
        self.br(f'''
        s_cmp_ge_u32 s28, 6
        s_cbranch_scc1 {lnq}''')
        e(f'''
        s_lshl_b32 s33, s28, 6
        v_add_u32 v6, s33, v1
        s_movk_i32 s34, 2731
        v_mul_u32_u24 v7, s34, v6
        v_lshrrev_b32 v7, 16, v7
        v_mul_u32_u24 v8, 24, v7
        v_sub_u32 v6, v6, v8
        v_bfe_u32 v8, v7, 1, 3
        v_xor_b32 v6, v6, v8
        v_mul_u32_u24 v7, 384, v7
        v_lshl_add_u32 v6, v6, 4, v7
        s_lshl_b32 s33, s28, 10
        s_add_u32 m0, s33, {H_Q}
        global_load_lds_dwordx4 v6, s[8:9]
        s_mul_i32 s33, s32, 48
        s_lshl_b32 s34, s28, 3
        s_add_u32 s33, s33, s34
        s_mul_i32 s33, s33, 384
        s_lshl_b32 s34, s31, 7
        s_add_u32 s33, s33, s34
        v_and_b32 v6, 7, v1
        v_lshl_add_u32 v6, v6, 4, v5
        v_add_u32 v6, s33, v6
        s_lshl_b32 s33, s28, 10
        s_add_u32 m0, s33, {H_WK}
        global_load_lds_dwordx4 v6, s[16:17]
        ''')
        a.label(lnq)
        e(f'''
        v_mov_b32 v{T}, 0x3f803f80
        v_mov_b32 v{T+1}, 0x3f803f80
        v_mov_b32 v{T+2}, 0x3f803f80
        v_mov_b32 v{T+3}, 0x3f803f80
        v_mov_b32 v{T+4}, 1.0
        v_mov_b32 v{T+5}, 0
        v_mov_b32 v{T+6}, 0
        v_bfe_u32 v6, v2, 1, 3
        v_xor_b32 v6, v6, v3
        v_mul_u32_u24 v7, 384, v2
        v_lshl_add_u32 v151, v6, 4, v7
        v_xor_b32 v6, 4, v6
        v_lshl_add_u32 v152, v6, 4, v7
        v_lshlrev_b32 v4, 4, v1
        ''')
        lw7, lw8 = self.lab('qk_w7'), self.lab('qk_w8')
        self.br(f'''
        s_cmp_ge_u32 s28, 4
        s_cbranch_scc1 {lw7}''')
        e('s_waitcnt vmcnt(0)')
        self.br(f's_branch {lw8}')
        a.label(lw7)
        e('s_waitcnt vmcnt(0) lgkmcnt(0)')
        a.label(lw8)
        self.stamp(4)
        e('s_barrier')
        self.stamp(5)
        lb3 = self.lab('qk_b3')
        lwo = self.lab('qk_wo')
        self.br(f'''
        s_cmp_ge_u32 s28, 4
        s_cbranch_scc1 {lwo}''')
        for ks in range(6):
            e(f'ds_read_b128 {vr(VQ+4*ks, 4)}, v{151 if ks % 2 == 0 else 152} offset:{H_Q + (ks >> 1) * 128}')
        e('''
        v_bfe_u32 v5, v1, 2, 2
        v_lshl_add_u32 v6, v3, 3, v5
        v_lshlrev_b32 v6, 7, v6
        v_lshrrev_b32 v5, 1, v5
        v_and_b32 v7, 1, v3
        v_lshl_or_b32 v5, v7, 1, v5
        v_lshlrev_b32 v5, 1, v5
        v_bfe_u32 v7, v1, 1, 1
        s_lshl_b32 s33, s28, 1
        v_or_b32 v7, s33, v7
        v_xor_b32 v5, v5, v7
        v_lshl_add_u32 v6, v5, 4, v6
        v_and_b32 v7, 1, v1
        v_lshl_add_u32 v6, v7, 3, v6
        ''')
        for ks in range(6):
            for h in range(2):
                e(f'ds_read_b64_tr_b16 {vr(VWQ+4*ks+2*h, 2)}, v6 offset:{H_WQ + ks*4096 + h*512}')
        e('''
        v_lshlrev_b32 v7, 7, v2
        v_lshl_add_u32 v7, v3, 3, v7
        s_lshl_b32 s33, s28, 5
        v_add_u32 v7, s33, v7
        ''')
        for tau in range(3):
            e(f'ds_read_b64 {vr(VWK+2*tau, 2)}, v7 offset:{H_WK + tau*2048}')
        MEAN, SSQ, D1, CSQ = T + 8, T + 12, T + 36, T + 16
        for ks in range(6):
            e(f's_waitcnt lgkmcnt({min(15, 20 - ks)})')
            e(f'{MF} {vr(MEAN,4)}, {vr(T,4)}, {vr(VQ+4*ks,4)}, ' + ('0' if ks == 0 else vr(MEAN, 4)))
        for i in range(24):
            e(f'v_dot2c_f32_bf16 v{T+5+(i&1)}, v{VQ+i}, v{VQ+i}')
        e(f'v_add_f32 v{T+5}, v{T+5}, v{T+6}')
        e(f'{MF4} {vr(SSQ,4)}, v{T+4}, v{T+5}, 0')
        for ks in range(6):
            e(f's_waitcnt lgkmcnt({13 - 2*ks})')
            e(f'{MF} {vr(D1,4)}, {vr(VWQ+4*ks,4)}, {vr(VQ+4*ks,4)}, ' + ('0' if ks == 0 else vr(D1, 4)))
            e(f'{MF} {vr(CSQ,4)}, {vr(VWQ+4*ks,4)}, {vr(T,4)}, ' + ('0' if ks == 0 else vr(CSQ, 4)))
        e(f'''
        s_mov_b32 s36, {f32bits(1.0/192)}
        v_mul_f32 v{MEAN}, s36, v{MEAN}
        v_mul_f32 v{SSQ}, s36, v{SSQ}
        v_fma_f32 v{SSQ}, -v{MEAN}, v{MEAN}, v{SSQ}
        v_max_f32 v{SSQ}, 0, v{SSQ}
        v_add_f32 v{SSQ}, {f32bits(1e-5)}, v{SSQ}
        v_rsq_f32 v{SSQ}, v{SSQ}
        ''')
        for r in range(4):
            e(f'v_fma_f32 v{D1+r}, -v{MEAN}, v{CSQ+r}, v{D1+r}')
        for r in range(4):
            e(f'v_mul_f32 v{D1+r}, v{D1+r}, v{SSQ}')
        P = T + 40
        e(f'v_cvt_pk_bf16_f32 v{P}, v{D1}, v{D1+1}')
        e(f'v_cvt_pk_bf16_f32 v{P+1}, v{D1+2}, v{D1+3}')
        e('s_waitcnt lgkmcnt(0)')
        D2 = T + 44
        for tau in range(3):
            e(f'v_mfma_f32_16x16x16_bf16 {vr(D2+4*tau,4)}, {vr(VWK+2*tau,2)}, {vr(P,2)}, 0')
        e('''
        s_mul_i32 s33, s28, 3072
        v_add_u32 v5, s33, v4
        ''')
        for tau in range(3):
            e(f'ds_write_b128 v5, {vr(D2+4*tau,4)} offset:{H_RED + tau*1024}')
        e('s_waitcnt lgkmcnt(0)')
        a.label(lwo)
        a.label(lb3)
        e('s_barrier')
        self.stamp(6)
        lq_done = self.lab('qk_done')
        self.br(f'''
        s_cmp_ge_u32 s28, 2
        s_cbranch_scc1 {lq_done}''')
        e(f'''
        v_lshrrev_b32 v5, 3, v1
        s_lshl_b32 s33, s28, 3
        v_add_u32 v5, s33, v5
        v_lshlrev_b32 v5, 4, v5
        v_and_b32 v6, 7, v1
        v_mul_u32_u24 v6, 6, v6
        v_mov_b32 v10, {H_NON}
        ds_read_b32 v{VQ+27}, v10
        ''')
        for p in range(3):
            e(f'''
            v_add_u32 v7, {2*p}, v6
            v_lshrrev_b32 v8, 2, v7
            v_lshl_add_u32 v8, v8, 8, v5
            v_and_b32 v7, 3, v7
            v_lshl_add_u32 v{150+p}, v7, 2, v8
            ''')
        R = 40
        for p in range(3):
            for d in range(4):
                e(f'ds_read_b64 {vr(R + (p*4+d)*2, 2)}, v{150+p} offset:{H_RED + d*3072}')
        e(f'''
        s_mov_b32 s36, {f32bits(QSCALE)}
        s_mul_i32 s33, s31, 8192
        s_lshl_b32 s34, s32, 11
        s_add_u32 s33, s33, s34
        s_lshl_b32 s34, s28, 10
        s_add_u32 s33, s33, s34
        v_add_u32 v5, s33, v4
        s_waitcnt lgkmcnt(0)
        ''')
        for p in range(3):
            b = R + p * 8
            for x in range(2):
                e(f'v_add_f32 v{b+x}, v{b+x}, v{b+2+x}')
                e(f'v_add_f32 v{b+4+x}, v{b+4+x}, v{b+6+x}')
        for p in range(3):
            b = R + p * 8
            for x in range(2):
                e(f'v_add_f32 v{b+x}, v{b+x}, v{b+4+x}')
        for p in range(3):
            b = R + p * 8
            for x in range(2):
                e(f'v_mul_f32 v{b+x}, s36, v{b+x}')
        O = VQ + 24
        for p in range(3):
            b = R + p * 8
            e(f'v_cvt_pk_bf16_f32 v{O+p}, v{b}, v{b+1}')
        e(f'global_store_dwordx4 v5, {vr(O,4)}, s[26:27] offset:{WS_QK} sc1')
        self.stamp(8)
        a.label(lq_done)


    def weights_issue(self):
        e = self.e
        e(f'''
        s_sub_u32 s35, s28, 4
        s_mul_i32 s33, s35, 18432
        v_lshl_add_u32 v9, v1, 4, s33
        s_add_u32 s34, s33, {H_WO}
        ''')
        for i in range(18):
            e(f's_add_u32 m0, s34, {i*1024}')
            if i: e('v_add_u32 v9, 1024, v9')
            e('global_load_lds_dwordx4 v9, s[20:21]')
        e(f'''
        s_mul_i32 s33, s35, 9216
        s_and_b32 s34, s2, 1
        s_mul_i32 s34, s34, 36864
        s_add_u32 s34, s34, s33
        v_lshl_add_u32 v9, v1, 4, s34
        s_add_u32 s34, s33, {H_WV}
        ''')
        for i in range(9):
            e(f's_add_u32 m0, s34, {i*1024}')
            if i: e('v_add_u32 v9, 1024, v9')
            e('global_load_lds_dwordx4 v9, s[18:19]')

    def zinit(self, freg):
        e = self.e
        e(f'''
        s_mul_i32 s33, s{freg}, {ZREG}
        s_add_u32 s33, s33, {WS_Z}
        v_lshl_add_u32 v4, v0, 4, s33
        ''')
        for i in range(10):
            e('global_store_dwordx4 v4, v[200:203], s[26:27] sc1')
            e('v_add_u32 v4, 4096, v4')
        e(f'''
        s_mul_i32 s33, s{freg}, 896
        s_add_u32 s33, s33, {WS_ML - 2048}
        v_lshl_add_u32 v5, v0, 4, s33
        v_cmp_gt_u32 vcc, 128, v0
        v_cndmask_b32 v4, v5, v4, vcc
        v_cmp_gt_u32 vcc, 184, v0
        s_and_saveexec_b64 s[40:41], vcc
        ''')
        l = self.lab('zi')
        self.br(f's_cbranch_execz {l}')
        e('global_store_dwordx4 v4, v[200:203], s[26:27] sc1')
        self.a.label(l)
        e('s_mov_b64 exec, -1')
        l2 = self.lab('oi')
        self.br(f'''
        s_cmp_lg_u32 s28, 3
        s_cbranch_scc1 {l2}''')
        self.br(f'''
        s_bitcmp1_b32 s{freg}, 0
        s_cbranch_scc1 {l2}''')
        e(f'''
        s_lshr_b32 s33, s{freg}, 1
        s_mul_i32 s33, s33, 384
        v_lshl_add_u32 v5, v1, 4, s33
        s_mov_b32 exec_lo, 0xffffff
        s_mov_b32 exec_hi, 0
        global_load_dwordx4 v[204:207], v5, s[8:9]
        s_waitcnt vmcnt(0)
        global_store_dwordx4 v5, v[204:207], s[22:23] sc1
        s_mov_b64 exec, -1
        ''')
        self.a.label(l2)

    def role_final(self, isqk):
        a, e = self.a, self.e
        WO = 24
        WVO = 72
        ZL = 132
        ACC = 188
        TM = 200
        e('''
        s_lshr_b32 s46, s2, 1
        s_and_b32 s47, s2, 1
        ''')
        self.poll_nonce0(10, 4)
        lnw = self.lab('fin_now')
        self.br(f'''
        s_cmp_ge_u32 s28, 6
        s_cbranch_scc1 {lnw}''')
        e(f'''
        s_mul_i32 s33, s47, 6
        s_add_u32 s33, s33, s28
        s_lshl_b32 s34, s33, 7
        s_add_u32 s34, s34, {WS_WF}
        v_mov_b32 v4, s34
        s_mul_i32 s33, s33, 6144
        s_add_u32 s33, s33, {WS_WVO}
        v_lshl_add_u32 v5, v1, 4, s33
        v_add_u32 v6, 3072, v5
        s_mov_b32 s42, 0
        ''')
        lp, ld = self.lab('poll'), self.lab('polld')
        a.label(lp)
        e('''
        global_load_dword v11, v4, s[26:27] sc1
        s_add_u32 s42, s42, 1
        s_waitcnt vmcnt(0)
        v_cmp_ne_u32 vcc, v11, v10
        ''')
        self.br(f's_cbranch_vccz {ld}')
        e('s_sleep 4')
        e('s_cmp_lt_u32 s42, 0x40000')
        self.br(f's_cbranch_scc1 {lp}')
        a.label(ld)
        for qd in range(6):
            e(f'global_load_dwordx4 {vr(WVO+4*qd,4)}, v{5 if qd < 3 else 6}, s[26:27] offset:{(qd%3)*1024} sc1')
        e('s_waitcnt vmcnt(0)')
        a.label(lnw)
        self.stamp(2)
        e(f'''
        s_mul_i32 s33, s28, 28
        v_min_u32 v4, 27, v1
        v_add_u32 v4, s33, v4
        v_lshlrev_b32 v4, 8, v4
        s_lshl_b32 s34, s46, 4
        s_add_u32 s34, s34, {WS_ML}
        v_add_u32 v4, s34, v4
        s_mul_i32 s34, s2, 224
        s_add_u32 s34, s34, s33
        s_mul_i32 s34, s34, 192
        s_add_u32 s34, s34, {WS_Z}
        v_min_u32 v5, 47, v1
        v_lshlrev_b32 v5, 4, v5
        v_add_u32 v5, s34, v5
        v_add_u32 v6, 3840, v5
        s_mov_b32 s42, 0
        ''')
        lp, ld = self.lab('poll'), self.lab('polld')
        a.label(lp)
        e(f'''
        global_load_dwordx4 {vr(TM,4)}, v4, s[26:27] sc1
        s_add_u32 s42, s42, 1
        s_waitcnt vmcnt(0)
        v_cmp_ne_u32 vcc, v{TM+2}, v10
        ''')
        self.br(f's_cbranch_vccz {ld}')
        if self.opt.get('fsleep', 0): e(f's_sleep {self.opt.get("fsleep")}')
        e('s_cmp_lt_u32 s42, 0x40000')
        self.br(f's_cbranch_scc1 {lp}')
        a.label(ld)
        self.stamp(3)
        def zload(i):
            e(f'global_load_dwordx4 {vr(ZL+4*i,4)}, v{5 + i//5}, s[26:27] offset:{(i%5)*768} sc1')
        for i in range(7): zload(i)
        M, L, X = TM, TM + 1, TM + 2
        e(f'v_mov_b32 v{X}, v{M}')
        for sh in (1, 2, 4, 8):
            e(f'v_max_f32_dpp v{X}, v{X}, v{X} row_ror:{sh} row_mask:0xf bank_mask:0xf')
        e(f'''
        v_mov_b32 v{X+1}, v{X}
        v_permlane16_swap_b32 v{X}, v{X+1}
        v_max_f32 v{X}, v{X}, v{X+1}
        v_mov_b32 v{X+1}, v{X}
        v_permlane32_swap_b32 v{X}, v{X+1}
        v_max_f32 v{X}, v{X}, v{X+1}
        s_lshl_b32 s35, s28, 2
        v_mov_b32 v8, s35
        v_mov_b32 v9, 0
        ds_write_b32 v8, v{X} offset:{H_WM}
        s_waitcnt lgkmcnt(0)
        s_barrier
        ds_read_b128 {vr(TM+4,4)}, v9 offset:{H_WM}
        ds_read_b128 {vr(TM+8,4)}, v9 offset:{H_WM+16}
        s_waitcnt lgkmcnt(0)
        v_max3_f32 v{X}, v{TM+4}, v{TM+5}, v{TM+6}
        v_max3_f32 v{X+1}, v{TM+7}, v{TM+8}, v{TM+9}
        v_max3_f32 v{X}, v{X}, v{TM+10}, v{TM+11}
        v_max_f32 v{X}, v{X}, v{X+1}
        v_sub_f32 v{M}, v{M}, v{X}
        v_exp_f32 v{M}, v{M}
        v_cmp_gt_u32 vcc, 28, v1
        v_mul_f32 v{L}, v{L}, v{M}
        v_cndmask_b32 v{L}, 0, v{L}, vcc
        v_lshrrev_b32 v{M}, 16, v{M}
        s_lshl_b32 s34, s28, 7
        s_add_u32 s34, s34, {H_SCT}
        v_lshl_add_u32 v9, v1, 2, s34
        s_mov_b32 exec_hi, 0
        ds_write_b32 v9, v{M}
        s_mov_b32 exec_hi, -1
        v_mul_u32_u24 v9, 43, v1
        v_lshrrev_b32 v9, 9, v9
        v_min_u32 v9, 3, v9
        v_lshl_add_u32 v9, v9, 2, s34
        ''')
        for sh in (1, 2, 4, 8):
            e(f'v_add_f32_dpp v{L}, v{L}, v{L} row_ror:{sh} row_mask:0xf bank_mask:0xf')
        e(f'''
        v_mov_b32 v{X+1}, v{L}
        v_permlane16_swap_b32 v{L}, v{X+1}
        v_add_f32 v{L}, v{L}, v{X+1}
        s_waitcnt lgkmcnt(0)
        ''')
        SCL = TM + 4
        for i in range(7):
            e(f'ds_read_b32 v{SCL+i}, v9 offset:{i*16}')
        e(f'''
        s_mov_b64 exec, 1
        ds_write_b32 v8, v{L} offset:{H_WL}
        s_mov_b64 exec, -1
        ''')
        HI, UM = TM + 12, TM + 14
        lredo, lok = self.lab('redo'), self.lab('zok')
        a.label(lredo)
        for i in range(8): e(f'v_mov_b32 v{ACC+i}, 0')
        e(f'v_mov_b32 v{UM}, 0')
        e('s_waitcnt lgkmcnt(0)')
        for i in range(7):
            e(f'v_lshlrev_b32 v{HI+(i&1)}, 16, v{SCL+i}')
            e(f's_waitcnt vmcnt({6-i})')
            e(f'v_max3_u32 v{UM}, v{UM}, v{ZL+4*i}, v{ZL+4*i+1}')
            e(f'v_max3_u32 v{UM}, v{UM}, v{ZL+4*i+2}, v{ZL+4*i+3}')
            for j in range(4):
                e(f'v_dot2c_f32_bf16 v{ACC+2*j}, v{ZL+4*i+j}, v{SCL+i}')
                e(f'v_dot2c_f32_bf16 v{ACC+2*j+1}, v{ZL+4*i+j}, v{HI+(i&1)}')
        e(f'v_cmp_eq_u32 vcc, -1, v{UM}')
        self.br(f's_cbranch_vccz {lok}')
        e('s_add_u32 s42, s42, 1')
        e('s_cmp_ge_u32 s42, 0x40000')
        self.br(f's_cbranch_scc1 {lok}')
        for i in range(7): zload(i)
        self.br(f's_branch {lredo}')
        a.label(lok)
        e(f'''
        v_cvt_pk_bf16_f32 v{TM+4}, v{ACC}, v{ACC+1}
        v_cvt_pk_bf16_f32 v{TM+5}, v{ACC+2}, v{ACC+3}
        v_cvt_pk_bf16_f32 v{TM+6}, v{ACC+4}, v{ACC+5}
        v_cvt_pk_bf16_f32 v{TM+7}, v{ACC+6}, v{ACC+7}
        v_mul_u32_u24 v8, 43, v1
        v_lshrrev_b32 v8, 9, v8
        v_mul_u32_u24 v9, 12, v8
        v_sub_u32 v9, v1, v9
        s_lshl_b32 s34, s28, 2
        v_add_u32 v8, s34, v8
        v_mul_u32_u24 v8, 208, v8
        v_lshrrev_b32 v10, 2, v9
        v_lshl_add_u32 v8, v10, 6, v8
        v_and_b32 v10, 1, v9
        v_lshl_add_u32 v8, v10, 5, v8
        v_bfe_u32 v10, v9, 1, 1
        v_lshl_add_u32 v8, v10, 3, v8
        s_mov_b32 exec_hi, 0xffff
        ds_write_b64 v8, {vr(TM+4,2)} offset:{H_ZC}
        ds_write_b64 v8, {vr(TM+6,2)} offset:{H_ZC+16}
        s_mov_b32 exec_hi, -1
        s_waitcnt lgkmcnt(0)
        s_barrier
        ''')
        self.stamp(4)
        self.br('''
        s_cmp_ge_u32 s28, 6
        s_cbranch_scc1 L_end''')
        ZB = ZL
        WL = ZL + 24
        e('''
        v_mul_u32_u24 v6, 208, v2
        v_lshl_add_u32 v6, v3, 4, v6
        v_mov_b32 v7, 0
        ''')
        for cg in range(2):
            for t in range(3):
                e(f'ds_read_b128 {vr(ZB + (cg*3+t)*4, 4)}, v6 offset:{H_ZC + cg*16*208 + t*64}')
        e(f'ds_read_b128 {vr(WL,4)}, v7 offset:{H_WL}')
        e(f'ds_read_b128 {vr(WL+4,4)}, v7 offset:{H_WL+16}')
        DA = TM + 24
        n = 0
        for cg in range(2):
            for t in range(3):
                e(f's_waitcnt lgkmcnt({7 - n})')
                for ee in range(2):
                    e(f'{MF} {vr(DA+4*ee,4)}, {vr(WVO + (ee*3+t)*4, 4)}, {vr(ZB + (cg*3+t)*4, 4)}, ' + ('0' if n == 0 else vr(DA + 4 * ee, 4)))
                n += 1
        e(f'''
        s_waitcnt lgkmcnt(0)
        v_add_f32 v{WL}, v{WL}, v{WL+1}
        v_add_f32 v{WL+2}, v{WL+2}, v{WL+3}
        v_add_f32 v{WL+4}, v{WL+4}, v{WL+5}
        v_add_f32 v{WL+6}, v{WL+6}, v{WL+7}
        v_add_f32 v{WL}, v{WL}, v{WL+2}
        v_add_f32 v{WL+4}, v{WL+4}, v{WL+6}
        v_add_f32 v{WL}, v{WL}, v{WL+4}
        v_rcp_f32 v{WL}, v{WL}
        s_mul_i32 s33, s46, 384
        s_lshl_b32 s34, s28, 6
        s_add_u32 s33, s33, s34
        v_lshl_add_u32 v4, v3, 3, s33
        ''')
        for sh in (1, 2, 4, 8):
            for x in range(8):
                e(f'v_add_f32_dpp v{DA+x}, v{DA+x}, v{DA+x} row_ror:{sh} row_mask:0xf bank_mask:0xf')
        for x in range(8):
            e(f'v_mul_f32 v{DA+x}, v{DA+x}, v{WL}')
        C = TM + 2
        for i in range(4):
            e(f'v_cvt_pk_bf16_f32 v{C+i}, v{DA+2*i}, v{DA+2*i+1}')
        e(f'''
        s_mov_b32 exec_lo, 0x00010001
        s_mov_b32 exec_hi, 0x00010001
        global_atomic_pk_add_bf16 v4, v{C}, s[22:23]
        global_atomic_pk_add_bf16 v4, v{C+1}, s[22:23] offset:4
        global_atomic_pk_add_bf16 v4, v{C+2}, s[22:23] offset:32
        global_atomic_pk_add_bf16 v4, v{C+3}, s[22:23] offset:36
        ''')
        self.stamp(5)
        self.br('s_branch L_end')

    def role_main(self):
        a, e = self.a, self.e
        lh = self.lab('helper')
        self.br(f'''
        s_cmp_eq_u32 s28, 7
        s_cbranch_scc1 {lh}''')
        NT = ' nt'
        F1, T0, T1, QK = 24, 48, 72, 96
        ONES = 20
        S1, S0, S0b = 120, 124, 128
        SS0, SS1 = 132, 136
        AC = 140
        RS, MR = 148, 156
        L1, L0, L0b = 164, 168, 172
        TM = 176
        C5, SQ, MX0 = 188, 189, 190
        DV = 191
        M1 = 197
        M0E = 244
        QA = 252
        QL, QT = 200, 216
        XQ = [120 + 4 * i for i in range(7)] + [200 + 4 * i for i in range(11)]
        e(f'''
        s_lshr_b32 s31, s30, 1
        s_and_b32 s32, s30, 1
        s_mul_i32 s32, s32, 56
        s_lshl_b32 s33, s28, 3
        s_add_u32 s32, s32, s33
        s_mul_i32 s33, s31, 112
        s_add_u32 s33, s33, s32
        s_mul_i32 s33, s33, 384
        s_add_u32 s34, s12, s33
        s_addc_u32 s35, s13, 0
        s_mul_i32 s33, s31, 448
        s_lshl_b32 s32, s32, 1
        s_add_u32 s33, s33, s32
        s_mul_i32 s33, s33, 384
        s_add_u32 s36, s10, s33
        s_addc_u32 s37, s11, 0
        s_add_u32 s38, s36, 86016
        s_addc_u32 s39, s37, 0
        s_mul_i32 s43, s28, {XREG}
        s_add_u32 s43, s43, {L_X}
        s_movk_i32 s44, 2731
        ''')
        for jj in range(3):
            u, p = TM + 4 * jj, TM + 4 * jj + 1
            e(f'''
            v_add_u32 v{u}, {64*jj}, v1
            v_mul_u32_u24 v{p}, s44, v{u}
            v_lshrrev_b32 v{p}, 16, v{p}
            v_mul_u32_u24 v{u+2}, 24, v{p}
            v_sub_u32 v{u}, v{u}, v{u+2}
            v_bfe_u32 v{u+2}, v{p}, 1, 1
            v_bfe_u32 v{u+3}, v{p}, 2, 1
            v_lshl_add_u32 v{u+2}, v{u+2}, 2, v{u+3}
            v_xor_b32 v{u+2}, v{u+2}, v{u}
            v_mul_u32_u24 v{u+3}, 384, v{p}
            v_lshl_add_u32 v{4+jj}, v{u+2}, 4, v{u+3}
            s_add_u32 m0, s43, {jj*1024}
            global_load_lds_dwordx4 v{4+jj}, s[34:35]{NT}
            ''')
        for jj in range(3):
            u, p = TM + 4 * jj, TM + 4 * jj + 1
            e(f'''
            v_bfe_u32 v{u+2}, v{p}, 1, 2
            v_lshlrev_b32 v{u+2}, 1, v{u+2}
            v_xor_b32 v{u+2}, v{u+2}, v{u}
            v_lshl_add_u32 v{DV+jj}, v{u+2}, 4, v{u+3}
            v_xor_b32 v{DV+3+jj}, 16, v{DV+jj}
            ''')
        def fine_group(gidx):
            t, hf = gidx >> 1, gidx & 1
            sp = (36, 38)[t]
            for jj in range(3):
                e(f's_add_u32 m0, s43, {3072 + t*6144 + jj*1024}')
                if hf == 0:
                    e(f'global_load_lds_dwordx4 v{DV+jj}, s[{sp}:{sp+1}]{NT}')
                else:
                    e(f'global_load_lds_dwordx4 v{DV+3+jj}, s[{sp}:{sp+1}] offset:3072{NT}')
        fine_group(0)
        self.stamp(1)
        e(f'''
        v_and_b32 v{TM}, 1, v3
        v_lshlrev_b32 v{TM}, 1, v{TM}
        v_lshrrev_b32 v{TM+1}, 1, v3
        v_or_b32 v{TM}, v{TM}, v{TM+1}
        v_bfe_u32 v{TM+1}, v2, 1, 2
        v_lshlrev_b32 v{TM+1}, 1, v{TM+1}
        v_lshrrev_b32 v{TM+2}, 3, v2
        v_or_b32 v{TM+1}, v{TM+1}, v{TM+2}
        v_xor_b32 v{TM+1}, v{TM+1}, v{TM}
        v_mul_u32_u24 v{TM+3}, 384, v2
        v_add_u32 v{TM+3}, s43, v{TM+3}
        v_lshl_add_u32 v13, v{TM+1}, 4, v{TM+3}
        v_xor_b32 v{TM+1}, 4, v{TM+1}
        v_lshl_add_u32 v14, v{TM+1}, 4, v{TM+3}
        v_bfe_u32 v{TM+1}, v2, 2, 1
        v_lshlrev_b32 v{TM+1}, 2, v{TM+1}
        v_lshrrev_b32 v{TM+2}, 3, v2
        v_or_b32 v{TM+1}, v{TM+1}, v{TM+2}
        v_xor_b32 v{TM+1}, v{TM+1}, v{TM}
        v_lshrrev_b32 v{TM+2}, 1, v2
        v_mul_u32_u24 v{TM+2}, 384, v{TM+2}
        v_add_u32 v{TM+2}, s43, v{TM+2}
        v_lshl_add_u32 v16, v{TM+1}, 4, v{TM+2}
        v_xor_b32 v{TM+1}, 4, v{TM+1}
        v_lshl_add_u32 v15, v{TM+1}, 4, v{TM+2}
        v_mov_b32 v17, 1.0
        v_lshlrev_b32 v18, 4, v1
        v_lshlrev_b32 v19, 5, v2
        v_mov_b32 v20, 0x3f803f80
        v_mov_b32 v21, 0x3f803f80
        v_mov_b32 v22, 0x3f803f80
        v_mov_b32 v23, 0x3f803f80
        ''')
        QRA = 199
        e(f'''
        v_mul_u32_u24 v{QRA}, 400, v2
        v_lshl_add_u32 v{QRA}, v{TM}, 4, v{QRA}
        ''')
        for i in range(8): e(f'v_mov_b32 v{AC+i}, 0')
        A0, A1, A2, A3 = 4, 5, 6, 7
        C0, C1, C2, C3, C4 = 8, 9, 10, 11, 12
        e(f'''
        v_bfe_u32 v{TM}, v1, 2, 4
        v_bfe_u32 v{TM+1}, v{TM}, 1, 2
        v_lshlrev_b32 v{TM+1}, 1, v{TM+1}
        v_lshrrev_b32 v{TM+2}, 3, v{TM}
        v_or_b32 v{TM+1}, v{TM+1}, v{TM+2}
        v_bfe_u32 v{TM+2}, v1, 1, 1
        s_and_b32 s44, s28, 1
        s_lshl_b32 s44, s44, 2
        v_or_b32 v{TM+2}, s44, v{TM+2}
        v_xor_b32 v{TM+1}, v{TM+1}, v{TM+2}
        v_mul_u32_u24 v{TM+3}, 384, v{TM}
        v_and_b32 v{TM+4}, 1, v1
        v_lshl_add_u32 v{TM+3}, v{TM+4}, 3, v{TM+3}
        s_lshr_b32 s45, s28, 1
        s_lshl_b32 s45, s45, 7
        s_add_u32 s45, s45, {L_X}
        v_add_u32 v{TM+3}, s45, v{TM+3}
        v_lshl_add_u32 v{A0}, v{TM+1}, 4, v{TM+3}
        v_xor_b32 v{TM+1}, 2, v{TM+1}
        v_lshl_add_u32 v{A1}, v{TM+1}, 4, v{TM+3}
        v_add_u32 v{A2}, {4*XREG}, v{A0}
        v_add_u32 v{A3}, {4*XREG}, v{A1}
        v_and_b32 v{TM}, 1, v3
        v_lshlrev_b32 v{TM}, 2, v{TM}
        v_lshrrev_b32 v{TM+1}, 1, v3
        v_or_b32 v{TM}, v{TM}, v{TM+1}
        v_xor_b32 v{TM}, v{TM}, v{TM+2}
        v_bfe_u32 v{TM+1}, v1, 2, 1
        v_lshl_add_u32 v{TM+1}, v3, 1, v{TM+1}
        v_mul_u32_u24 v{TM+1}, 384, v{TM+1}
        v_lshl_add_u32 v{TM+1}, v{TM+4}, 3, v{TM+1}
        v_add_u32 v{TM+1}, s45, v{TM+1}
        v_bfe_u32 v{TM+3}, v1, 3, 1
        v_mul_u32_u24 v{TM+3}, {XREG}, v{TM+3}
        v_add_u32 v{TM+3}, v{TM+3}, v{TM+1}
        v_lshl_add_u32 v{C0}, v{TM}, 4, v{TM+3}
        v_xor_b32 v{TM}, 2, v{TM}
        v_lshl_add_u32 v{C1}, v{TM}, 4, v{TM+3}
        v_add_u32 v{C2}, {4*XREG}, v{C0}
        v_add_u32 v{C3}, {4*XREG}, v{C1}
        v_lshl_add_u32 v{C5}, v{TM}, 4, v{TM+1}
        v_xor_b32 v{TM}, 2, v{TM}
        v_lshl_add_u32 v{C4}, v{TM}, 4, v{TM+1}
        v_add_u32 v{C4}, {6*XREG}, v{C4}
        v_add_u32 v{C5}, {6*XREG}, v{C5}
        ''')
        self.qblock_addr(QA)

        def aread(dst, ve, vo, off):
            for ks in range(6):
                e(f'ds_read_b128 {vr(dst+4*ks,4)}, v{ve if ks % 2 == 0 else vo} offset:{off + (ks >> 1)*128}')
        e(f's_mov_b32 s44, {f32bits(1.0/192)}')
        e(f's_mov_b32 s45, {f32bits(1e-5)}')
        def finalize(t, SD, SSD):
            for r in range(4): e(f'v_mul_f32 v{SD+r}, s44, v{SD+r}')
            for r in range(4): e(f'v_mul_f32 v{TM+r}, v{SD+r}, v{SD+r}')
            for r in range(4): e(f'v_fma_f32 v{SSD+r}, v{SSD+r}, s44, -v{TM+r}')
            for r in range(4): e(f'v_max_f32 v{SSD+r}, 0, v{SSD+r}')
            for r in range(4): e(f'v_add_f32 v{SSD+r}, s45, v{SSD+r}')
            for r in range(4): e(f'v_rsq_f32 v{RS+4*t+r}, v{SSD+r}')
            for r in range(4): e(f'v_sub_f32 v{M0E+4*t+r}, v{SD+r}, v{S1+r}')
            for r in range(4): e(f'v_mul_f32 v{MR+4*t+r}, v{SD+r}, v{RS+4*t+r}')
        def xissue(k):
            if k < 7:
                for ee in range(2):
                    base = (A0, A1)[ee] if k < 4 else (A2, A3)[ee]
                    uoff = (k if k < 4 else k - 4) * XREG
                    for tt in range(2):
                        e(f'ds_read_b64_tr_b16 {vr(XQ[k*2+ee] + tt*2, 2)}, v{base} offset:{uoff + 3072 + tt*6144}')
            else:
                aa = k - 7
                for ee in range(2):
                    for hh in range(2):
                        if aa == 0: base, off = (C0, C1)[ee], hh * 2 * XREG
                        elif hh == 0: base, off = (C2, C3)[ee], 0
                        else: base, off = (C4, C5)[ee], 0
                        e(f'ds_read_b64_tr_b16 {vr(XQ[k*2+ee] + hh*2, 2)}, v{base} offset:{off}')
        ac = AC + 2
        def stats_tail(SSD):
            e(f'''
            v_add_f32 v{ac}, v{ac}, v{ac+1}
            v_add_f32 v{ac+2}, v{ac+2}, v{ac+3}
            v_add_f32 v{ac}, v{ac}, v{AC}
            v_fma_f32 v{ac}, 2.0, v{ac+2}, v{ac}
            {MF4} {vr(SSD,4)}, v{ac}, v17, 0
            ''')
        def dots(TT):
            for i in range(24):
                e(f'v_dot2c_f32_bf16 v{ac+(i&1)}, v{TT+i}, v{TT+i}')
                e(f'v_dot2c_f32_bf16 v{ac+2+(i&1)}, v{TT+i}, v{F1+i}')
        SM1 = TM + 8
        e('s_waitcnt vmcnt(3)')
        fine_group(1)
        aread(F1, 16, 15, 0)
        for ks in range(6):
            e(f's_waitcnt lgkmcnt({5-ks})')
            e(f'{MF} {vr(S1,4)}, {vr(F1+4*ks,4)}, {vr(ONES,4)}, ' + ('0' if ks == 0 else vr(S1, 4)))
        for r in range(F1, F1 + 24):
            e(f'v_dot2c_f32_bf16 v{AC+(r&1)}, v{r}, v{r}')
        e(f'v_add_f32 v{AC}, v{AC}, v{AC+1}')
        for r in range(4): e(f'v_mov_b32 v{L1+r}, v{S1+r}')
        for r in range(4): e(f'v_mul_f32 v{S1+r}, s44, v{S1+r}')
        e(f'v_mov_b32 v{M1}, v{S1}')
        e(f'v_mov_b32 v{M1+1}, v{S1+2}')
        e('s_waitcnt vmcnt(3)')
        fine_group(2)
        e('s_waitcnt vmcnt(3)')
        fine_group(3)
        aread(T0, 13, 14, 3072)
        for ks in range(6):
            e(f's_waitcnt lgkmcnt({5-ks})')
            e(f'{MF} {vr(S0,4)}, {vr(T0+4*ks,4)}, {vr(ONES,4)}, ' + (vr(L1, 4) if ks == 0 else vr(S0, 4)))
        dots(T0)
        stats_tail(SS0)
        for i in range(4): e(f'v_mov_b32 v{ac+i}, 0')
        finalize(0, S0, SS0)
        self.stamp(2)
        e('s_waitcnt vmcnt(3)')
        self.qblock_issue(QA, QL)
        e('s_waitcnt vmcnt(4)')
        self.stamp(7)
        aread(T1, 13, 14, 3072 + 6144)
        for ks in range(6):
            e(f's_waitcnt lgkmcnt({5-ks})')
            e(f'{MF} {vr(S0b,4)}, {vr(T1+4*ks,4)}, {vr(ONES,4)}, ' + (vr(L1, 4) if ks == 0 else vr(S0b, 4)))
        dots(T1)
        stats_tail(SS1)
        finalize(1, S0b, SS1)
        self.stamp(8)
        self.qblock_finish(QA, QL, QT)
        e('s_waitcnt lgkmcnt(0)')
        e('s_barrier')
        self.stamp(3)
        for ks in range(6):
            e(f'ds_read_b128 {vr(QK+4*ks,4)}, v{QRA} offset:{L_QK + ks*64}')
        e(f'v_lshlrev_b32 v{TM+1}, 4, v2')
        e(f'ds_read_b128 {vr(TM+4,4)}, v{TM+1} offset:{L_SQ}')
        for ks in range(6):
            e(f's_waitcnt lgkmcnt({6-ks})')
            e(f'{MF} {vr(L1,4)}, {vr(F1+4*ks,4)}, {vr(QK+4*ks,4)}, ' + ('0' if ks == 0 else vr(L1, 4)))
        e('s_waitcnt lgkmcnt(0)')
        lsk = self.lab('skipx')
        self.br(f'''
        s_cmp_ge_u32 s28, 6
        s_cbranch_scc1 {lsk}''')
        for k in range(9): xissue(k)
        a.label(lsk)
        for ks in range(6):
            e(f'{MF} {vr(L0,4)}, {vr(T0+4*ks,4)}, {vr(QK+4*ks,4)}, ' + (vr(L1, 4) if ks == 0 else vr(L0, 4)))
            e(f'{MF} {vr(L0b,4)}, {vr(T1+4*ks,4)}, {vr(QK+4*ks,4)}, ' + (vr(L1, 4) if ks == 0 else vr(L0b, 4)))
            if ks == 0:
                e(f'''
                v_add_f32 v{TM+4}, v{TM+4}, v{TM+5}
                v_add_f32 v{TM+6}, v{TM+6}, v{TM+7}
                v_add_f32 v{SQ}, v{TM+4}, v{TM+6}
                ''')
                for x in range(8): e(f'v_mul_f32 v{MR+x}, v{MR+x}, v{SQ}')
        for t, LD in enumerate((L0, L0b)):
            for r in range(4):
                e(f'v_fma_f32 v{LD+r}, v{LD+r}, v{RS+4*t+r}, -v{MR+4*t+r}')
        e(f'''
        v_max3_f32 v{TM}, v{L0}, v{L0+1}, v{L0+2}
        v_max3_f32 v{TM+1}, v{L0+3}, v{L0b}, v{L0b+1}
        v_max3_f32 v{TM}, v{TM}, v{L0b+2}, v{L0b+3}
        v_max_f32 v{TM}, v{TM}, v{TM+1}
        v_mov_b32 v{TM+1}, v{TM}
        v_permlane16_swap_b32 v{TM}, v{TM+1}
        v_max_f32 v{TM}, v{TM}, v{TM+1}
        v_mov_b32 v{TM+1}, v{TM}
        v_permlane32_swap_b32 v{TM}, v{TM+1}
        v_max_f32 v{TM}, v{TM}, v{TM+1}
        s_lshl_b32 s46, s28, 2
        v_add_u32 v{TM+2}, s46, v19
        ds_write_b32 v{TM+2}, v{TM} offset:{L_MX}
        s_waitcnt lgkmcnt(0)
        s_barrier
        ds_read_b128 {vr(TM+4,4)}, v19 offset:{L_MX}
        ds_read_b128 {vr(TM+8,4)}, v19 offset:{L_MX+16}
        s_waitcnt lgkmcnt(0)
        v_max3_f32 v{TM}, v{TM+4}, v{TM+5}, v{TM+6}
        v_max3_f32 v{TM+1}, v{TM+7}, v{TM+8}, v{TM+9}
        v_max3_f32 v{TM}, v{TM}, v{TM+10}, v{TM+11}
        v_max_f32 v{TM}, v{TM}, v{TM+1}
        v_ceil_f32 v{TM}, v{TM}
        ''')
        self.stamp(4)
        P = [L0, L0 + 1, L0 + 2, L0 + 3, L0b, L0b + 1, L0b + 2, L0b + 3]
        for x in P: e(f'v_sub_f32 v{x}, v{x}, v{TM}')
        for x in P: e(f'v_exp_f32 v{x}, v{x}')
        W = TM + 4
        e(f'v_add_f32 v{TM}, v{P[0]}, v{P[1]}')
        e(f'v_add_f32 v{TM+1}, v{P[2]}, v{P[3]}')
        for x in range(4, 8, 2):
            e(f'v_add_f32 v{TM}, v{TM}, v{P[x]}')
            e(f'v_add_f32 v{TM+1}, v{TM+1}, v{P[x+1]}')
        for x in range(8): e(f'v_mul_f32 v{P[x]}, v{P[x]}, v{RS+x}')
        e(f'v_add_f32 v{TM}, v{TM}, v{TM+1}')
        for i in range(4): e(f'v_cvt_pk_bf16_f32 v{W+i}, v{P[2*i]}, v{P[2*i+1]}')
        e(f'{MF4} {vr(QK,4)}, v17, v{TM}, 0')
        e(f'''
        s_lshl_b32 s46, s28, 10
        v_add_u32 v{TM+3}, s46, v18
        ds_write_b128 v{TM+3}, {vr(W,4)} offset:{L_WF}
        v_add_f32 v{TM+8}, v{P[0]}, v{P[1]}
        v_add_f32 v{TM+9}, v{P[4]}, v{P[5]}
        v_add_f32 v{TM+10}, v{P[2]}, v{P[3]}
        v_add_f32 v{TM+11}, v{P[6]}, v{P[7]}
        v_add_f32 v{TM+8}, v{TM+8}, v{TM+9}
        v_add_f32 v{TM+10}, v{TM+10}, v{TM+11}
        v_cvt_pk_bf16_f32 v{TM+8}, v{TM+8}, v{TM+10}
        ''')
        for i in range(4):
            e(f'v_lshlrev_b32 v{P[2*i]}, 16, v{W+i}')
            e(f'v_and_b32 v{P[2*i+1]}, 0xffff0000, v{W+i}')
        e(f'''
        s_lshr_b32 s46, s28, 2
        s_lshl_b32 s46, s46, 10
        s_and_b32 s47, s28, 3
        s_lshl_b32 s47, s47, 2
        s_add_u32 s46, s46, s47
        v_add_u32 v{TM+3}, s46, v18
        ds_write_b32 v{TM+3}, v{TM+8} offset:{L_WC}
        v_lshlrev_b32 v{TM+9}, 16, v{TM+8}
        v_and_b32 v{TM+10}, 0xffff0000, v{TM+8}
        v_mul_f32 v{TM+1}, v{TM+9}, v{M1}
        v_mul_f32 v{TM+2}, v{TM+10}, v{M1+1}
        ''')
        for x in range(0, 8, 2):
            e(f'v_fmac_f32 v{TM+1}, v{P[x]}, v{M0E+x}')
            e(f'v_fmac_f32 v{TM+2}, v{P[x+1]}, v{M0E+x+1}')
        e(f'v_add_f32 v{TM+1}, v{TM+1}, v{TM+2}')
        e(f'{MF4} {vr(QK+4,4)}, v17, v{TM+1}, 0')
        e(f'''
        s_lshl_b32 s46, s28, 2
        v_add_u32 v{TM+3}, s46, v19
        ds_write_b32 v{TM+3}, v{QK} offset:{L_LS}
        ds_write_b32 v{TM+3}, v{QK+4} offset:{L_CO}
        s_waitcnt lgkmcnt(0)
        s_barrier
        ''')
        self.stamp(5)
        self.br('''
        s_cmp_ge_u32 s28, 6
        s_cbranch_scc1 L_end''')
        WBL = [24 + 4 * i for i in range(6)] + [72, 76, 80]
        ACC, CW, O = 84, 104, 112
        for k in range(9):
            e(f'ds_read_b128 {vr(WBL[k],4)}, v18 offset:{(L_WF + k*1024) if k < 7 else (L_WC + (k-7)*1024)}')
        e(f'ds_read_b128 {vr(CW,4)}, v19 offset:{L_CO}')
        e(f'ds_read_b128 {vr(CW+4,4)}, v19 offset:{L_CO+16}')
        e(f'''
        v_mul_u32_u24 v{TM}, {2*ZREG}, v2
        v_and_b32 v{TM+1}, 1, v3
        v_lshlrev_b32 v{TM+1}, 5, v{TM+1}
        v_lshrrev_b32 v{TM+2}, 1, v3
        v_lshl_add_u32 v{TM+1}, v{TM+2}, 4, v{TM+1}
        v_add_u32 v{TM}, v{TM}, v{TM+1}
        s_mul_i32 s46, s30, 192
        s_add_u32 s46, s46, {WS_Z}
        s_cmp_ge_u32 s28, 3
        s_cselect_b32 s47, {ZREG - 192}, 0
        s_add_u32 s46, s46, s47
        s_lshl_b32 s47, s28, 6
        s_add_u32 s46, s46, s47
        v_add_u32 v{TM}, s46, v{TM}
        ''')
        for k in range(9):
            e(f's_waitcnt lgkmcnt({10-k})')
            for ee in range(2):
                e(f'{MF} {vr(ACC+4*ee,4)}, {vr(XQ[k*2+ee],4)}, {vr(WBL[k],4)}, ' + ('0' if k == 0 else vr(ACC + 4 * ee, 4)))
        e(f'''
        s_waitcnt lgkmcnt(0)
        v_add_f32 v{CW}, v{CW}, v{CW+1}
        v_add_f32 v{CW+2}, v{CW+2}, v{CW+3}
        v_add_f32 v{CW+4}, v{CW+4}, v{CW+5}
        v_add_f32 v{CW+6}, v{CW+6}, v{CW+7}
        v_add_f32 v{CW}, v{CW}, v{CW+2}
        v_add_f32 v{CW+4}, v{CW+4}, v{CW+6}
        v_add_f32 v{CW}, v{CW}, v{CW+4}
        ''')
        for x in range(8): e(f'v_sub_f32 v{ACC+x}, v{ACC+x}, v{CW}')
        e(f'''
        v_cvt_pk_bf16_f32 v{O}, v{ACC}, v{ACC+1}
        v_cvt_pk_bf16_f32 v{O+1}, v{ACC+2}, v{ACC+3}
        v_cvt_pk_bf16_f32 v{O+2}, v{ACC+4}, v{ACC+5}
        v_cvt_pk_bf16_f32 v{O+3}, v{ACC+6}, v{ACC+7}
        v_permlane16_swap_b32 v{O}, v{O+2}
        v_permlane16_swap_b32 v{O+1}, v{O+3}
        global_store_dwordx4 v{TM}, {vr(O,4)}, s[26:27] sc1
        s_barrier
        ''')
        self.stamp(6)
        self.br('s_branch L_end')

        a.label(lh)
        e(f'''
        v_lshlrev_b32 v18, 4, v1
        v_lshlrev_b32 v19, 5, v2
        v_mov_b32 v4, 0
        v_mov_b32 v5, 0xff800000
        ds_write_b32 v18, v4 offset:{L_WC + 1024 + 12}
        ds_write_b32 v19, v5 offset:{L_MX + 28}
        ds_write_b32 v19, v4 offset:{L_LS + 28}
        ds_write_b32 v19, v4 offset:{L_CO + 28}
        ''')
        if self.opt.get('cpf', 0):
            lcp = self.lab('cpf')
            self.br(f'''
            s_cmp_ge_u32 s30, {self.opt.get('cpf')}
            s_cbranch_scc1 {lcp}''')
            a.raw('    s_getpc_b64 s[50:51]')
            a.raw('L_pc_here:')
            a.raw('    s_sub_u32 s50, s50, (L_pc_here - %s)' % KNAME)
            a.raw('    s_subb_u32 s51, s51, 0')
            e('v_lshlrev_b32 v12, 4, v1')
            ncode = self.opt.get('cpfkb', 12)
            for i in range(ncode):
                e(f'global_load_dwordx4 v[64:67], v12, s[50:51]')
                e('v_add_u32 v12, 1024, v12')
            a.label(lcp)
        e(f'''
        v_mov_b32 v56, -1
        v_mov_b32 v57, -1
        v_mov_b32 v58, -1
        v_mov_b32 v59, -1
        v_min_u32 v12, 47, v1
        v_mul_u32_u24 v13, 43, v12
        v_lshrrev_b32 v13, 9, v13
        v_mul_u32_u24 v14, 12, v13
        v_sub_u32 v14, v12, v14
        v_mul_u32_u24 v13, {ZREG}, v13
        v_lshl_add_u32 v13, v14, 4, v13
        s_mul_i32 s44, s30, 192
        s_add_u32 s44, s44, {WS_Z}
        v_add_u32 v13, s44, v13
        ''')
        for i in range(8):
            e('global_store_dwordx4 v13, v[56:59], s[26:27] sc1')
            if i < 7: e(f'v_add_u32 v13, {4*ZREG}, v13')
        loi = self.lab('oi')
        self.br(f'''
        s_cmp_ge_u32 s30, 16
        s_cbranch_scc1 {loi}''')
        e('''
        s_mul_i32 s44, s30, 384
        v_lshl_add_u32 v13, v1, 4, s44
        s_mov_b32 exec_lo, 0xffffff
        s_mov_b32 exec_hi, 0
        global_load_dwordx4 v[60:63], v13, s[8:9]
        s_waitcnt vmcnt(0)
        global_store_dwordx4 v13, v[60:63], s[22:23] sc1
        s_mov_b64 exec, -1
        ''')
        a.label(loi)
        self.qblock_addr(8)
        e(f's_sleep {self.opt.get("isleep", 100)}')
        e('v_mov_b32 v12, 0')
        lp0, ld0 = self.lab('n0'), self.lab('n0d')
        e('s_mov_b32 s42, 0')
        a.label(lp0)
        e('global_load_dword v52, v12, s[24:25] sc1')
        self.qblock_issue(8, 24)
        e('''
        s_add_u32 s42, s42, 1
        s_waitcnt vmcnt(4)
        v_cmp_eq_u32 vcc, 0, v52
        ''')
        self.br(f's_cbranch_vccz {ld0}')
        e('s_cmp_lt_u32 s42, 0x40000')
        self.br(f's_cbranch_scc1 {lp0}')
        a.label(ld0)
        self.stamp(2)
        self.qblock_finish(8, 24, 40)
        e('s_waitcnt lgkmcnt(0)')
        self.stamp(4)
        e('s_barrier')
        self.stamp(3)
        e(f'''
        s_barrier
        s_barrier
        ds_read_b128 v[24:27], v19 offset:{L_MX}
        ds_read_b128 v[28:31], v19 offset:{L_MX+16}
        ds_read_b128 v[32:35], v19 offset:{L_LS}
        ds_read_b128 v[36:39], v19 offset:{L_LS+16}
        s_lshl_b32 s44, s30, 8
        s_add_u32 s44, s44, {WS_ML}
        v_lshl_add_u32 v8, v2, 4, s44
        v_mov_b32 v6, v52
        v_mov_b32 v7, v52
        s_waitcnt lgkmcnt(0)
        v_max3_f32 v4, v24, v25, v26
        v_max3_f32 v5, v27, v28, v29
        v_max3_f32 v4, v4, v30, v31
        v_max_f32 v4, v4, v5
        v_ceil_f32 v4, v4
        v_add_f32 v32, v32, v33
        v_add_f32 v34, v34, v35
        v_add_f32 v36, v36, v37
        v_add_f32 v38, v38, v39
        v_add_f32 v32, v32, v34
        v_add_f32 v36, v36, v38
        v_add_f32 v5, v32, v36
        s_barrier
        s_mov_b32 exec_lo, 0xffff
        s_mov_b32 exec_hi, 0
        global_store_dwordx4 v8, v[4:7], s[26:27] sc1
        ''')
        self.stamp(6)
        self.br('s_branch L_end')


HEADER = open('standalone__detection_seg_dino__vision.s.ref').read().split('; Override')[0]

def kd(name, vgpr=256, sgpr=102):
    return '''.amdhsa_kernel %s
  .amdhsa_next_free_vgpr %d
  .amdhsa_next_free_sgpr %d
  .amdhsa_accum_offset %d
  .amdhsa_group_segment_fixed_size 0
  .amdhsa_kernarg_size 80
  .amdhsa_user_sgpr_count 2
  .amdhsa_user_sgpr_kernarg_segment_ptr 1
  .amdhsa_system_sgpr_workgroup_id_x 1
.end_amdhsa_kernel
''' % (name, vgpr, sgpr, (vgpr + 3) // 4 * 4)

def build(stamps=False, opt=None):
    out = HEADER
    out += '; @launch grid=(256,1,1) block=(512,1,1) lds=%d\n' % max(LDS_TOTAL, L_X + 7 * XREG)
    out += '.amdgcn_target "amdgcn-amd-amdhsa--gfx950"\n.text\n'
    G = Gen(stamps, opt)
    a = G.a
    n = KNAME
    a.raw('.globl %s\n.p2align 8\n.type %s,@function\n%s:' % (n, n, n))
    G.br('''
    s_cmp_ge_u32 s2, 256
    s_cbranch_scc1 L_exit''')
    G.stamp_init()
    G.prologue()
    G.stamp(0)
    G.br('''
    s_cmp_ge_u32 s2, 32
    s_cbranch_scc1 L_role_main''')
    G.e('''
    s_and_b32 s31, s2, 7
    s_lshr_b32 s32, s2, 3
    s_lshl_b32 s30, s31, 2
    s_add_u32 s30, s30, s32
    ''')
    G.br('''
    s_cmp_ge_u32 s31, 6
    s_cbranch_scc1 L_role_final''')
    G.br('''
    s_cmp_ge_u32 s31, 3
    s_cbranch_scc1 L_role_wvo''')
    G.role_qk()
    G.br('s_branch L_role_final')
    a.label('L_role_wvo')
    G.e('s_sub_u32 s30, s30, 12')
    G.role_wvo()
    a.label('L_role_final')
    G.role_final(False)
    a.label('L_role_main')
    G.e('s_sub_u32 s30, s2, 32')
    G.role_main()
    a.label('L_end')
    G.stamp_flush()
    a.label('L_exit')
    G.e('s_endpgm')
    out += a.text()
    out += '.section .rodata,"a"\n.p2align 6\n' + kd(n)
    return out

if __name__ == '__main__':
    ap = argparse.ArgumentParser()
    ap.add_argument('--stamps', action='store_true')
    ap.add_argument('--opt', default='')
    ap.add_argument('-o', default='standalone__detection_seg_dino__vision.s')
    args = ap.parse_args()
    OPT = {}
    for kv in args.opt.split(','):
        if kv:
            k, v = kv.split('='); OPT[k] = int(v)
    s = build(args.stamps, OPT)
    open(args.o, 'w').write(s)
    print('wrote', args.o, len(s), 'bytes')
```

```python
import sys, argparse, struct
from asmdsl import Asm

KNAME = 'standalone__detection_seg_dino__vision_kernel'

WS_QK = 0
WS_ML = 32768
WS_Z = 131072
ZREG = 224 * 192
WS_WVO = 0x200000
WS_WF = 0x220000

XREG = 15392
L_QK = 0
L_WF = 6400
L_WC = L_WF + 7168
L_SQ = L_WC + 2048
L_MX = L_SQ + 256
L_LS = L_MX + 512
L_CO = L_LS + 512
L_NON = 17408
L_X = 17664
F_ZC = L_X
F_SCT = L_X + 6656
F_WM = L_X + 7680
F_WL = L_X + 7712
H_RED = 0
H_ZC = 0
H_SCT = 6656
H_WM = 7680
H_WL = 7712
H_NON = 12288
H_Q = 12544
H_WK = 18688
H_WQ = 24832
H_WV = 12544
H_WO = 49408
LDS_TOTAL = 61696

QSCALE = (192.0 ** -0.5) * 1.4426950408889634

def f32bits(x):
    return '0x%08x' % struct.unpack('<I', struct.pack('<f', x))[0]

def vr(a, n):
    return 'v[%d:%d]' % (a, a + n - 1)

MF = 'v_mfma_f32_16x16x32_bf16'
MF4 = 'v_mfma_f32_16x16x4_f32'

class Gen:
    def __init__(self, stamps=False, opt=None):
        self.a = Asm()
        self.stamps = stamps
        self.opt = opt or {}
        self.uid = 0

    def lab(self, base):
        self.uid += 1
        return 'L_%s_%d' % (base, self.uid)

    def e(self, text):
        self.a.emit(text)

    def br(self, text):
        for l in text.strip().split('\n'):
            self.a.branch(l.strip())

    def prologue(self):
        self.e('''
        s_load_dwordx16 s[8:23], s[0:1], 0
        s_load_dwordx4 s[24:27], s[0:1], 64
        v_and_b32 v1, 63, v0
        v_lshrrev_b32 v4, 6, v0
        v_and_b32 v2, 15, v1
        v_readfirstlane_b32 s28, v4
        v_lshrrev_b32 v3, 4, v1
        s_mov_b32 s58, 0
        s_mov_b64 s[56:57], -1
        s_waitcnt lgkmcnt(0)
        ''')

    def stamp(self, idx):
        if not self.stamps: return
        self.e('s_memrealtime s[%d:%d]' % (60 + 2 * idx, 61 + 2 * idx))
        self.e('s_waitcnt lgkmcnt(0)')

    def stamp_init(self):
        if not self.stamps: return
        for i in range(24):
            self.e('s_mov_b32 s%d, 0' % (60 + i))

    def stamp_flush(self):
        if not self.stamps: return
        self.e('''
        s_lshl_b32 s92, s2, 3
        s_add_u32 s92, s92, s28
        s_lshl_b32 s92, s92, 7
        s_add_u32 s92, s92, %d
        s_mov_b64 exec, 1
        v_mov_b32 v4, s92
        ''' % 0x1000000)
        for i in range(12):
            self.e('v_mov_b32 v6, s%d' % (60 + 2 * i))
            self.e('v_mov_b32 v7, s%d' % (61 + 2 * i))
            self.e('global_store_dwordx2 v4, v[6:7], s[26:27] offset:%d' % (i * 8))
            self.e('s_nop 1')

    def setexec(self, mask):
        lo, hi = mask & 0xffffffff, mask >> 32
        if mask == (1 << 64) - 1:
            self.e('s_mov_b64 exec, -1')
        else:
            self.e('s_mov_b32 exec_lo, 0x%x' % lo)
            self.e('s_mov_b32 exec_hi, 0x%x' % hi)

    def bar(self):
        l = self.lab('bar')
        self.a.branch('s_cmp_lg_u32 s58, 0')
        self.a.branch(f's_cbranch_scc1 {l}')
        self.a.raw('    s_barrier')
        self.a.raw(l + ':')

    def nodry(self, text):
        l = self.lab('nd')
        self.a.branch('s_cmp_lg_u32 s58, 0')
        self.a.branch(f's_cbranch_scc1 {l}')
        self.e(text)
        self.a.label(l)

    def dry_call(self, target, ret, mode=1):
        self.e(f'''
        s_mov_b32 s59, s28
        s_mov_b32 s28, 0
        s_mov_b32 s58, {mode}
        s_mov_b64 s[56:57], 0
        s_mov_b64 exec, 0
        ''')
        self.br(f's_branch {target}')
        self.a.label(ret)
        self.e('''
        s_mov_b32 s28, s59
        s_mov_b32 s58, 0
        s_mov_b64 s[56:57], -1
        s_mov_b64 exec, -1
        ''')

    def poll_dbg(self, byte_off, ndw, vt, sleep):
        lp, ld = self.lab('poll'), self.lab('polld')
        self.e(f'''
        v_lshlrev_b32 v{vt}, 2, v1
        v_mov_b32 v{vt+1}, 0x01010101
        s_mov_b32 s42, 0
        ''')
        self.setexec((1 << ndw) - 1)
        self.a.label(lp)
        self.e(f'''
        global_load_dword v{vt+2}, v{vt}, s[24:25] offset:{byte_off} sc1
        s_add_u32 s42, s42, 1
        s_waitcnt vmcnt(0)
        v_cmp_ne_u32 vcc, v{vt+2}, v{vt+1}
        ''')
        self.br(f's_cbranch_vccz {ld}')
        self.e(f's_sleep {sleep}')
        self.e('s_cmp_lt_u32 s42, 0x40000')
        self.br(f's_cbranch_scc1 {lp}')
        self.a.label(ld)
        self.e('s_mov_b64 exec, -1')

    def poll_nonce0(self, vdst, vt):
        lp, ld = self.lab('poll'), self.lab('polld')
        self.e(f'''
        v_mov_b32 v{vt}, 0
        s_mov_b32 s42, 0
        ''')
        self.a.label(lp)
        self.e(f'''
        global_load_dword v{vdst}, v{vt}, s[24:25] sc1
        s_add_u32 s42, s42, 1
        s_waitcnt vmcnt(0)
        v_cmp_eq_u32 vcc, 0, v{vdst}
        ''')
        self.br(f's_cbranch_vccz {ld}')
        self.e('s_sleep 2')
        self.e('s_cmp_lt_u32 s42, 0x40000')
        self.br(f's_cbranch_scc1 {lp}')
        self.a.label(ld)

    def role_wvo(self):
        a, e = self.a, self.e
        WO, AV, DD = 24, 72, 96
        e(f'''
        s_cmp_ge_u32 s30, 6
        s_cselect_b32 s31, 1, 0
        s_mul_i32 s32, s31, 6
        s_sub_u32 s32, s30, s32
        ''')
        lw, lw2 = self.lab('wvo_a'), self.lab('wvo_b')
        self.br(f'''
        s_cmp_ge_u32 s28, 6
        s_cbranch_scc1 {lw}''')
        e(f'''
        s_mul_i32 s33, s28, 6144
        s_mul_i32 s34, s31, 36864
        s_add_u32 s34, s34, s33
        v_lshl_add_u32 v9, v1, 4, s34
        s_add_u32 s34, s33, {H_WV}
        ''')
        for i in range(6):
            e(f's_add_u32 m0, s34, {i*1024}')
            if i: e('v_add_u32 v9, 1024, v9')
            e('global_load_lds_dwordx4 v9, s[18:19]')
        self.br(f's_branch {lw2}')
        a.label(lw)
        e(f'''
        s_sub_u32 s33, s28, 6
        v_lshrrev_b32 v9, 2, v1
        v_mul_u32_u24 v9, 384, v9
        v_and_b32 v8, 3, v1
        v_lshl_add_u32 v9, v8, 4, v9
        s_mul_i32 s34, s33, 36864
        s_lshl_b32 s35, s32, 6
        s_add_u32 s34, s34, s35
        v_add_u32 v9, s34, v9
        s_mul_i32 s34, s33, 6144
        s_add_u32 s34, s34, {H_WO}
        ''')
        for i in range(6):
            e(f's_add_u32 m0, s34, {i*1024}')
            if i: e('v_add_u32 v9, 6144, v9')
            e('global_load_lds_dwordx4 v9, s[20:21]')
        a.label(lw2)
        e('s_waitcnt vmcnt(0)')
        e('s_barrier')
        ldone = self.lab('wvo_d')
        self.br(f'''
        s_cmp_ge_u32 s28, 6
        s_cbranch_scc1 {ldone}''')
        e(f'''
        v_bfe_u32 v6, v1, 2, 2
        v_lshl_add_u32 v6, v3, 3, v6
        v_lshlrev_b32 v6, 6, v6
        v_and_b32 v7, 3, v1
        v_lshl_add_u32 v6, v7, 3, v6
        v_mul_u32_u24 v7, 384, v2
        v_lshl_add_u32 v7, v3, 4, v7
        s_mul_i32 s33, s28, 6144
        s_add_u32 s33, s33, {H_WV}
        v_add_u32 v7, s33, v7
        ''')
        for ks in range(6):
            e(f'ds_read_b128 {vr(AV+4*ks,4)}, v7 offset:{ks*64}')
        for d in range(2):
            for ks in range(6):
                for h in range(2):
                    e(f'ds_read_b64_tr_b16 {vr(WO + (d*6+ks)*4 + 2*h, 2)}, v6 offset:{H_WO + ks*2048 + h*256 + d*32}')
        e('s_waitcnt lgkmcnt(0)')
        for ks in range(6):
            for ee in range(2):
                D = DD + 4 * ee
                e(f'{MF} {vr(D,4)}, {vr(AV+4*ks,4)}, {vr(WO + (ee*6+ks)*4, 4)}, ' + ('0' if ks == 0 else vr(D, 4)))
        e(f'''
        s_mul_i32 s33, s30, 6144
        s_lshr_b32 s34, s28, 1
        s_lshl_b32 s34, s34, 10
        s_add_u32 s33, s33, s34
        s_and_b32 s34, s28, 1
        s_lshl_b32 s34, s34, 3
        s_add_u32 s33, s33, s34
        s_add_u32 s33, s33, {WS_WVO}
        v_lshl_add_u32 v5, v1, 4, s33
        v_cvt_pk_bf16_f32 v{DD+8}, v{DD}, v{DD+1}
        v_cvt_pk_bf16_f32 v{DD+9}, v{DD+2}, v{DD+3}
        v_cvt_pk_bf16_f32 v{DD+10}, v{DD+4}, v{DD+5}
        v_cvt_pk_bf16_f32 v{DD+11}, v{DD+6}, v{DD+7}
        global_store_dwordx2 v5, {vr(DD+8,2)}, s[26:27] sc1
        global_store_dwordx2 v5, {vr(DD+10,2)}, s[26:27] offset:3072 sc1
        s_waitcnt vmcnt(0)
        ''')
        a.label(ldone)
        e('s_barrier')
        lnf = self.lab('wvo_nf')
        self.br(f'''
        s_cmp_lg_u32 s28, 0
        s_cbranch_scc1 {lnf}''')
        self.poll_nonce0(10, 4)
        e(f'''
        s_lshl_b32 s33, s30, 7
        s_add_u32 s33, s33, {WS_WF}
        v_mov_b32 v4, s33
        s_mov_b64 exec, 1
        global_store_dword v4, v10, s[26:27] sc1
        s_mov_b64 exec, -1
        ''')
        a.label(lnf)
        self.stamp(1)

    def qblock_addr(self, VA, B='s28'):
        self.e(f'''
        s_lshl_b32 s46, {B}, 10
        v_add_u32 v{VA}, s46, v18
        v_add_u32 v{VA+1}, 8192, v{VA}
        v_add_u32 v{VA+2}, 16384, v{VA}
        s_lshr_b32 s46, {B}, 1
        s_mul_i32 s46, s46, 12
        v_mov_b32 v{VA+3}, s46
        ''')

    def qblock_issue(self, VA, QL):
        self.e(f'''
        global_load_dwordx3 {vr(QL+12, 3)}, v{VA+3}, s[24:25] sc1
        global_load_dwordx4 {vr(QL, 4)}, v{VA}, s[26:27] sc1
        global_load_dwordx4 {vr(QL+4, 4)}, v{VA+1}, s[26:27] sc1
        global_load_dwordx4 {vr(QL+8, 4)}, v{VA+2}, s[26:27] sc1
        ''')

    def qblock_finish(self, VA, QL, QT, B='s28'):
        lr, lok = self.lab('qretry'), self.lab('qok')
        self.e('s_mov_b32 s42, 0')
        self.a.label(lr)
        self.e(f'''
        s_waitcnt vmcnt(0)
        v_xor_b32 v{QT}, v{QL+3}, v{QL+12}
        v_xor_b32 v{QT+1}, v{QL+7}, v{QL+13}
        v_xor_b32 v{QT+2}, v{QL+11}, v{QL+14}
        v_or3_b32 v{QT}, v{QT}, v{QT+1}, v{QT+2}
        v_min3_u32 v{QT+1}, v{QL+12}, v{QL+13}, v{QL+14}
        v_cmp_eq_u32 vcc, 0, v{QT+1}
        v_cndmask_b32 v{QT+1}, 0, 1, vcc
        v_or_b32 v{QT}, v{QT}, v{QT+1}
        v_cmp_ne_u32 vcc, 0, v{QT}
        ''')
        self.br(f's_cbranch_vccz {lok}')
        self.e('s_add_u32 s42, s42, 1')
        self.e('s_cmp_ge_u32 s42, 0x40000')
        self.br(f's_cbranch_scc1 {lok}')
        self.qblock_issue(VA, QL)
        self.br(f's_branch {lr}')
        self.a.label(lok)
        self.e(f'''
        v_mov_b32 v{QT+9}, 0x00003f80
        v_mov_b32 v{QT+10}, 0x3f800000
        v_mov_b32 v{QT+11}, 0x3f803f80
        ''')
        for p in range(3):
            for t in range(3):
                src = QL + 4 * p + t
                c0 = '0' if p == 0 else f'v{QT+2*t}'
                c1 = '0' if p == 0 else f'v{QT+2*t+1}'
                self.e(f'v_dot2_f32_bf16 v{QT+2*t}, v{src}, v{QT+9}, {c0}')
                self.e(f'v_dot2_f32_bf16 v{QT+2*t+1}, v{src}, v{QT+10}, {c1}')
        for t in range(3):
            self.e(f'v_cvt_pk_bf16_f32 v{QL+t}, v{QT+2*t}, v{QT+2*t+1}')
        self.e(f'''
        s_and_b32 s46, {B}, 1
        s_lshl_b32 s46, s46, 3
        v_lshrrev_b32 v{QT+6}, 3, v1
        v_add_u32 v{QT+6}, s46, v{QT+6}
        v_and_b32 v{QT+7}, 7, v1
        v_mul_u32_u24 v{QT+7}, 12, v{QT+7}
        v_mul_u32_u24 v{QT+8}, 400, v{QT+6}
        s_lshr_b32 s47, {B}, 1
        s_mul_i32 s46, s47, 96
        s_add_u32 s46, s46, {L_QK}
        v_add3_u32 v{QT+7}, v{QT+7}, v{QT+8}, s46
        ds_write2_b32 v{QT+7}, v{QL}, v{QL+1} offset0:0 offset1:1
        ds_write_b32 v{QT+7}, v{QL+2} offset:8
        v_mov_b32 v{QT}, 0
        v_dot2c_f32_bf16 v{QT}, v{QL}, v{QT+11}
        v_dot2c_f32_bf16 v{QT}, v{QL+1}, v{QT+11}
        v_dot2c_f32_bf16 v{QT}, v{QL+2}, v{QT+11}
        v_add_f32_dpp v{QT}, v{QT}, v{QT} quad_perm:[1,0,3,2] row_mask:0xf bank_mask:0xf
        v_add_f32_dpp v{QT}, v{QT}, v{QT} quad_perm:[2,3,0,1] row_mask:0xf bank_mask:0xf
        v_add_f32_dpp v{QT}, v{QT}, v{QT} row_half_mirror row_mask:0xf bank_mask:0xf
        s_lshl_b32 s47, s47, 2
        s_add_u32 s47, s47, {L_SQ}
        v_lshl_add_u32 v{QT+6}, v{QT+6}, 4, s47
        s_mov_b32 exec_lo, 0x01010101
        s_mov_b32 exec_hi, 0x01010101
        ds_write_b32 v{QT+6}, v{QT}
        s_mov_b64 exec, -1
        ''')

    def role_qk(self):
        a, e = self.a, self.e
        VQ, VWK, VWQ, T = 8, 32, 40, 88
        lwarm = self.lab('qk_warm')
        lw8 = self.lab('qk_w8')
        self.br(f'''
        s_cmp_ge_u32 s28, 4
        s_cbranch_scc1 {lwarm}''')
        e(f'''
        s_mul_i32 s32, s30, 86
        s_lshr_b32 s32, s32, 8
        s_mul_i32 s31, s32, 3
        s_sub_u32 s31, s30, s31
        v_lshrrev_b32 v5, 3, v1
        v_mul_u32_u24 v5, 384, v5
        v_and_b32 v6, 7, v1
        v_bfe_u32 v7, v1, 4, 1
        v_lshlrev_b32 v7, 1, v7
        v_xor_b32 v6, v6, v7
        s_lshl_b32 s33, s31, 7
        s_mul_i32 s34, s28, 18432
        s_add_u32 s34, s34, s33
        v_add_u32 v8, s34, v5
        v_lshl_add_u32 v9, v6, 4, v8
        v_xor_b32 v6, 4, v6
        v_lshl_add_u32 v10, v6, 4, v8
        v_add_u32 v10, 3072, v10
        s_mul_i32 s34, s28, 6144
        s_add_u32 m0, s34, {H_WQ}
        ''')
        for k in range(6):
            src = 9 if k % 2 == 0 else 10
            e(f'global_load_lds_dwordx4 v{src}, s[14:15]')
            if k < 4: e(f'v_add_u32 v{src}, 6144, v{src}')
            if k < 5: e('s_add_u32 m0, m0, 1024')
        lnq = self.lab('qk_noq')
        self.br(f'''
        s_cmp_ge_u32 s28, 3
        s_cbranch_scc1 {lnq}''')
        e('''
        s_lshl_b32 s33, s28, 7
        s_movk_i32 s34, 2731
        ''')
        for t in range(2):
            e(f'''
            v_add_u32 v6, s33, v1
            v_add_u32 v6, {64*t}, v6
            v_mul_u32_u24 v7, s34, v6
            v_lshrrev_b32 v7, 16, v7
            v_mul_u32_u24 v8, 24, v7
            v_sub_u32 v6, v6, v8
            v_bfe_u32 v8, v7, 1, 3
            v_xor_b32 v6, v6, v8
            v_mul_u32_u24 v7, 384, v7
            v_lshl_add_u32 v6, v6, 4, v7
            s_lshl_b32 s35, s28, 11
            s_add_u32 m0, s35, {H_Q + t*1024}
            global_load_lds_dwordx4 v6, s[8:9]
            ''')
        e(f'''
        s_mul_i32 s33, s32, 48
        s_lshl_b32 s34, s28, 4
        s_add_u32 s33, s33, s34
        s_mul_i32 s33, s33, 384
        s_lshl_b32 s34, s31, 7
        s_add_u32 s33, s33, s34
        v_and_b32 v6, 7, v1
        v_lshl_add_u32 v6, v6, 4, v5
        v_add_u32 v6, s33, v6
        s_add_u32 m0, s35, {H_WK}
        v_add_u32 v7, 3072, v6
        global_load_lds_dwordx4 v6, s[16:17]
        s_add_u32 m0, s35, {H_WK + 1024}
        s_nop 0
        global_load_lds_dwordx4 v7, s[16:17]
        ''')
        a.label(lnq)
        e(f'''
        v_mov_b32 v{T}, 0x3f803f80
        v_mov_b32 v{T+1}, 0x3f803f80
        v_mov_b32 v{T+2}, 0x3f803f80
        v_mov_b32 v{T+3}, 0x3f803f80
        v_mov_b32 v{T+4}, 1.0
        v_mov_b32 v{T+5}, 0
        v_mov_b32 v{T+6}, 0
        v_bfe_u32 v6, v2, 1, 3
        v_xor_b32 v6, v6, v3
        v_mul_u32_u24 v7, 384, v2
        v_lshl_add_u32 v151, v6, 4, v7
        v_xor_b32 v6, 4, v6
        v_lshl_add_u32 v152, v6, 4, v7
        v_lshlrev_b32 v4, 4, v1
        ''')
        self.stamp(7)
        e('s_waitcnt vmcnt(0)')
        self.br(f's_branch {lw8}')
        a.label(lwarm)
        l7 = self.lab('qk7')
        self.br(f'''
        s_cmp_lg_u32 s28, 7
        s_cbranch_scc1 {l7}''')
        e(f'''
        s_memrealtime s[40:41]
        s_lshl_b32 s33, s30, 2
        v_mov_b32 v6, s33
        v_mov_b32 v7, {H_NON}
        s_waitcnt lgkmcnt(0)
        s_or_b32 s40, s40, 1
        v_mov_b32 v5, s40
        s_mov_b64 exec, 1
        global_store_dword v6, v5, s[24:25] sc1
        ds_write_b32 v7, v5
        s_mov_b64 exec, -1
        ''')
        a.label(l7)
        if self.opt.get('qdry', 1):
            lx = [self.lab('qd') for _ in range(4)]
            ljoin = self.lab('qd')
            segs = (('L_qk_segA', 'L_qk_retA1', 1), ('L_qk_segA2', 'L_qk_retA', 2), ('L_qk_segB', 'L_qk_retB1', 1), ('L_qk_segB2', 'L_qk_retB', 2))
            for i, (tg, rt, md) in enumerate(segs):
                if i < 3:
                    self.br(f'''
                    s_cmp_lg_u32 s28, {4 + i}
                    s_cbranch_scc1 {lx[i]}''')
                self.dry_call(tg, rt, md)
                if i < 3:
                    self.br(f's_branch {ljoin}')
                    a.label(lx[i])
            a.label(ljoin)
        e('s_waitcnt lgkmcnt(0)')
        a.label(lw8)
        self.stamp(9)
        e('s_barrier')
        self.stamp(10)
        lb3 = self.lab('qk_b3')
        lwo = self.lab('qk_wo')
        self.br(f'''
        s_cmp_ge_u32 s28, 4
        s_cbranch_scc1 {lwo}''')
        a.label('L_qk_segA')
        for ks in range(6):
            e(f'ds_read_b128 {vr(VQ+4*ks, 4)}, v{151 if ks % 2 == 0 else 152} offset:{H_Q + (ks >> 1) * 128}')
        e('''
        v_bfe_u32 v5, v1, 2, 2
        v_lshl_add_u32 v6, v3, 3, v5
        v_lshlrev_b32 v6, 7, v6
        v_lshrrev_b32 v5, 1, v5
        v_and_b32 v7, 1, v3
        v_lshl_or_b32 v5, v7, 1, v5
        v_lshlrev_b32 v5, 1, v5
        v_bfe_u32 v7, v1, 1, 1
        s_lshl_b32 s33, s28, 1
        v_or_b32 v7, s33, v7
        v_xor_b32 v5, v5, v7
        v_lshl_add_u32 v6, v5, 4, v6
        v_and_b32 v7, 1, v1
        v_lshl_add_u32 v6, v7, 3, v6
        ''')
        for ks in range(6):
            for h in range(2):
                e(f'ds_read_b64_tr_b16 {vr(VWQ+4*ks+2*h, 2)}, v6 offset:{H_WQ + ks*4096 + h*512}')
        e('''
        v_lshlrev_b32 v7, 7, v2
        v_lshl_add_u32 v7, v3, 3, v7
        s_lshl_b32 s33, s28, 5
        v_add_u32 v7, s33, v7
        ''')
        for tau in range(3):
            e(f'ds_read_b64 {vr(VWK+2*tau, 2)}, v7 offset:{H_WK + tau*2048}')
        MEAN, SSQ, D1, CSQ = T + 8, T + 12, T + 36, T + 16
        for ks in range(6):
            e(f's_waitcnt lgkmcnt({min(15, 20 - ks)})')
            e(f'{MF} {vr(MEAN,4)}, {vr(T,4)}, {vr(VQ+4*ks,4)}, ' + ('0' if ks == 0 else vr(MEAN, 4)))
        for i in range(24):
            e(f'v_dot2c_f32_bf16 v{T+5+(i&1)}, v{VQ+i}, v{VQ+i}')
        e(f'v_add_f32 v{T+5}, v{T+5}, v{T+6}')
        e(f'{MF4} {vr(SSQ,4)}, v{T+4}, v{T+5}, 0')
        if self.opt.get('qdry', 1):
            self.br('''
            s_cmp_eq_u32 s58, 1
            s_cbranch_scc1 L_qk_retA1''')
            a.label('L_qk_segA2')
        for ks in range(6):
            e(f's_waitcnt lgkmcnt({13 - 2*ks})')
            e(f'{MF} {vr(D1,4)}, {vr(VWQ+4*ks,4)}, {vr(VQ+4*ks,4)}, ' + ('0' if ks == 0 else vr(D1, 4)))
            e(f'{MF} {vr(CSQ,4)}, {vr(VWQ+4*ks,4)}, {vr(T,4)}, ' + ('0' if ks == 0 else vr(CSQ, 4)))
        e(f'''
        s_mov_b32 s36, {f32bits(1.0/192)}
        v_mul_f32 v{MEAN}, s36, v{MEAN}
        v_mul_f32 v{SSQ}, s36, v{SSQ}
        v_fma_f32 v{SSQ}, -v{MEAN}, v{MEAN}, v{SSQ}
        v_max_f32 v{SSQ}, 0, v{SSQ}
        v_add_f32 v{SSQ}, {f32bits(1e-5)}, v{SSQ}
        v_rsq_f32 v{SSQ}, v{SSQ}
        ''')
        for r in range(4):
            e(f'v_fma_f32 v{D1+r}, -v{MEAN}, v{CSQ+r}, v{D1+r}')
        for r in range(4):
            e(f'v_mul_f32 v{D1+r}, v{D1+r}, v{SSQ}')
        P = T + 40
        e(f'v_cvt_pk_bf16_f32 v{P}, v{D1}, v{D1+1}')
        e(f'v_cvt_pk_bf16_f32 v{P+1}, v{D1+2}, v{D1+3}')
        e('s_waitcnt lgkmcnt(0)')
        D2 = T + 44
        for tau in range(3):
            e(f'v_mfma_f32_16x16x16_bf16 {vr(D2+4*tau,4)}, {vr(VWK+2*tau,2)}, {vr(P,2)}, 0')
        e('''
        s_mul_i32 s33, s28, 3072
        v_add_u32 v5, s33, v4
        ''')
        for tau in range(3):
            e(f'ds_write_b128 v5, {vr(D2+4*tau,4)} offset:{H_RED + tau*1024}')
        e('s_waitcnt lgkmcnt(0)')
        if self.opt.get('qdry', 1): self.br('''
        s_cmp_lg_u32 s58, 0
        s_cbranch_scc1 L_qk_retA''')
        a.label(lwo)
        a.label(lb3)
        e('s_barrier')
        self.stamp(11)
        lq_done = self.lab('qk_done')
        self.br(f'''
        s_cmp_ge_u32 s28, 2
        s_cbranch_scc1 {lq_done}''')
        a.label('L_qk_segB')
        e(f'''
        v_lshrrev_b32 v5, 3, v1
        s_lshl_b32 s33, s28, 3
        v_add_u32 v5, s33, v5
        v_lshlrev_b32 v5, 4, v5
        v_and_b32 v6, 7, v1
        v_mul_u32_u24 v6, 6, v6
        v_mov_b32 v10, {H_NON}
        ds_read_b32 v{VQ+27}, v10
        ''')
        for p in range(3):
            e(f'''
            v_add_u32 v7, {2*p}, v6
            v_lshrrev_b32 v8, 2, v7
            v_lshl_add_u32 v8, v8, 8, v5
            v_and_b32 v7, 3, v7
            v_lshl_add_u32 v{150+p}, v7, 2, v8
            ''')
        R = 40
        for p in range(3):
            for d in range(4):
                e(f'ds_read_b64 {vr(R + (p*4+d)*2, 2)}, v{150+p} offset:{H_RED + d*3072}')
        if self.opt.get('qdry', 1):
            self.br('''
            s_cmp_eq_u32 s58, 1
            s_cbranch_scc1 L_qk_retB1''')
            a.label('L_qk_segB2')
        e(f'''
        s_mov_b32 s36, {f32bits(QSCALE)}
        s_mul_i32 s33, s31, 8192
        s_lshl_b32 s34, s32, 11
        s_add_u32 s33, s33, s34
        s_lshl_b32 s34, s28, 10
        s_add_u32 s33, s33, s34
        v_add_u32 v5, s33, v4
        s_waitcnt lgkmcnt(0)
        ''')
        for p in range(3):
            b = R + p * 8
            for x in range(2):
                e(f'v_add_f32 v{b+x}, v{b+x}, v{b+2+x}')
                e(f'v_add_f32 v{b+4+x}, v{b+4+x}, v{b+6+x}')
        for p in range(3):
            b = R + p * 8
            for x in range(2):
                e(f'v_add_f32 v{b+x}, v{b+x}, v{b+4+x}')
        for p in range(3):
            b = R + p * 8
            for x in range(2):
                e(f'v_mul_f32 v{b+x}, s36, v{b+x}')
        O = VQ + 24
        for p in range(3):
            b = R + p * 8
            e(f'v_cvt_pk_bf16_f32 v{O+p}, v{b}, v{b+1}')
        self.nodry(f'global_store_dwordx4 v5, {vr(O,4)}, s[26:27] offset:{WS_QK} sc1')
        if self.opt.get('qdry', 1): self.br('''
        s_cmp_lg_u32 s58, 0
        s_cbranch_scc1 L_qk_retB''')
        self.stamp(8)
        a.label(lq_done)


    def weights_issue(self):
        e = self.e
        e(f'''
        s_sub_u32 s35, s28, 4
        s_mul_i32 s33, s35, 18432
        v_lshl_add_u32 v9, v1, 4, s33
        s_add_u32 s34, s33, {H_WO}
        ''')
        for i in range(18):
            e(f's_add_u32 m0, s34, {i*1024}')
            if i: e('v_add_u32 v9, 1024, v9')
            e('global_load_lds_dwordx4 v9, s[20:21]')
        e(f'''
        s_mul_i32 s33, s35, 9216
        s_and_b32 s34, s2, 1
        s_mul_i32 s34, s34, 36864
        s_add_u32 s34, s34, s33
        v_lshl_add_u32 v9, v1, 4, s34
        s_add_u32 s34, s33, {H_WV}
        ''')
        for i in range(9):
            e(f's_add_u32 m0, s34, {i*1024}')
            if i: e('v_add_u32 v9, 1024, v9')
            e('global_load_lds_dwordx4 v9, s[18:19]')

    def zinit(self, freg):
        e = self.e
        e(f'''
        s_mul_i32 s33, s{freg}, {ZREG}
        s_add_u32 s33, s33, {WS_Z}
        v_lshl_add_u32 v4, v0, 4, s33
        ''')
        for i in range(10):
            e('global_store_dwordx4 v4, v[200:203], s[26:27] sc1')
            e('v_add_u32 v4, 4096, v4')
        e(f'''
        s_mul_i32 s33, s{freg}, 896
        s_add_u32 s33, s33, {WS_ML - 2048}
        v_lshl_add_u32 v5, v0, 4, s33
        v_cmp_gt_u32 vcc, 128, v0
        v_cndmask_b32 v4, v5, v4, vcc
        v_cmp_gt_u32 vcc, 184, v0
        s_and_saveexec_b64 s[40:41], vcc
        ''')
        l = self.lab('zi')
        self.br(f's_cbranch_execz {l}')
        e('global_store_dwordx4 v4, v[200:203], s[26:27] sc1')
        self.a.label(l)
        e('s_mov_b64 exec, -1')
        l2 = self.lab('oi')
        self.br(f'''
        s_cmp_lg_u32 s28, 3
        s_cbranch_scc1 {l2}''')
        self.br(f'''
        s_bitcmp1_b32 s{freg}, 0
        s_cbranch_scc1 {l2}''')
        e(f'''
        s_lshr_b32 s33, s{freg}, 1
        s_mul_i32 s33, s33, 384
        v_lshl_add_u32 v5, v1, 4, s33
        s_mov_b32 exec_lo, 0xffffff
        s_mov_b32 exec_hi, 0
        global_load_dwordx4 v[204:207], v5, s[8:9]
        s_waitcnt vmcnt(0)
        global_store_dwordx4 v5, v[204:207], s[22:23] sc1
        s_mov_b64 exec, -1
        ''')
        self.a.label(l2)

    def role_final(self, isqk):
        a, e = self.a, self.e
        WO = 24
        WVO = 148
        ZL = 24
        ACC = 188
        TM = 200
        a.label('L_fin_tail')
        e(f'''
        s_lshr_b32 s46, s53, 1
        v_mov_b32 v4, {L_NON}
        ds_read_b32 v10, v4
        s_waitcnt lgkmcnt(0)
        ''')
        e(f'''
        s_mul_i32 s33, s28, 28
        v_min_u32 v4, 27, v1
        v_add_u32 v4, s33, v4
        v_lshlrev_b32 v4, 8, v4
        s_lshl_b32 s34, s46, 4
        s_add_u32 s34, s34, {WS_ML}
        v_add_u32 v4, s34, v4
        s_mul_i32 s34, s53, 224
        s_add_u32 s34, s34, s33
        s_mul_i32 s34, s34, 192
        s_add_u32 s34, s34, {WS_Z}
        v_min_u32 v5, 47, v1
        v_lshlrev_b32 v5, 4, v5
        v_add_u32 v5, s34, v5
        v_add_u32 v6, 3840, v5
        s_mov_b32 s42, 0
        ''')
        def zl(i):
            return f'global_load_dwordx4 {vr(ZL+4*i,4)}, v{5 + i//5}, s[26:27] offset:{(i%5)*768} sc1'
        def zload(i):
            e(zl(i))
        UM = TM + 14
        if self.opt.get('zpoll', 0):
            lp, ld = self.lab('poll'), self.lab('polld')
            a.label(lp)
            e(f'''
            global_load_dwordx4 {vr(TM,4)}, v4, s[26:27] sc1
            s_add_u32 s42, s42, 1
            s_waitcnt vmcnt(0)
            v_cmp_eq_u32 vcc, v{TM+2}, v10
            ''')
            self.br(f's_cbranch_vccnz {ld}')
            e('s_cmp_lt_u32 s42, 0x40000')
            self.br(f's_cbranch_scc1 {lp}')
            a.label(ld)
            self.stamp(1)
            lp, ld = self.lab('poll'), self.lab('polld')
            a.label(lp)
            e(f'global_load_dwordx4 {vr(TM,4)}, v4, s[26:27] sc1')
            for i in range(7): zload(i)
            e(f'''
            s_add_u32 s42, s42, 1
            v_mov_b32 v{UM}, 0
            s_waitcnt vmcnt(7)
            v_cmp_ne_u32 vcc, v{TM+2}, v10
            v_cndmask_b32 v{UM}, 0, -1, vcc
            ''')
            for i in range(7):
                e(f's_waitcnt vmcnt({6-i})')
                e(f'v_max3_u32 v{UM}, v{UM}, v{ZL+4*i}, v{ZL+4*i+1}')
                e(f'v_max3_u32 v{UM}, v{UM}, v{ZL+4*i+2}, v{ZL+4*i+3}')
            e(f'v_cmp_eq_u32 vcc, -1, v{UM}')
            self.br(f's_cbranch_vccz {ld}')
            e('s_cmp_lt_u32 s42, 0x40000')
            self.br(f's_cbranch_scc1 {lp}')
            a.label(ld)
            self.stamp(3)
        else:
            lp, ld = self.lab('poll'), self.lab('polld')
            a.label(lp)
            self.nodry(f'global_load_dwordx4 {vr(TM,4)}, v4, s[26:27] sc1')
            e(f'''
            s_add_u32 s42, s42, 1
            s_waitcnt vmcnt(0)
            v_cmp_ne_u32 vcc, v{TM+2}, v10
            ''')
            self.br(f's_cbranch_vccz {ld}')
            e('s_cmp_lt_u32 s42, 0x40000')
            self.br(f's_cbranch_scc1 {lp}')
            a.label(ld)
            self.stamp(3)
            self.nodry('\n'.join(zl(i) for i in range(7)))
        M, L, X = TM, TM + 1, TM + 2
        e(f'v_mov_b32 v{X}, v{M}')
        for sh in (1, 2, 4, 8):
            e(f'v_max_f32_dpp v{X}, v{X}, v{X} row_ror:{sh} row_mask:0xf bank_mask:0xf')
        e(f'''
        v_mov_b32 v{X+1}, v{X}
        v_permlane16_swap_b32 v{X}, v{X+1}
        v_max_f32 v{X}, v{X}, v{X+1}
        v_mov_b32 v{X+1}, v{X}
        v_permlane32_swap_b32 v{X}, v{X+1}
        v_max_f32 v{X}, v{X}, v{X+1}
        s_lshl_b32 s35, s28, 2
        v_mov_b32 v8, s35
        ds_write_b32 v8, v{X} offset:{F_WM}
        v_sub_f32 v{M}, v{M}, v{X}
        v_exp_f32 v{M}, v{M}
        v_cmp_gt_u32 vcc, 28, v1
        v_mul_f32 v{L}, v{L}, v{M}
        v_cndmask_b32 v{L}, 0, v{L}, vcc
        v_lshrrev_b32 v{M}, 16, v{M}
        s_lshl_b32 s34, s28, 7
        s_add_u32 s34, s34, {F_SCT}
        v_lshl_add_u32 v9, v1, 2, s34
        s_mov_b32 exec_hi, 0
        ds_write_b32 v9, v{M}
        s_mov_b32 exec_hi, s57
        v_mul_u32_u24 v9, 43, v1
        v_lshrrev_b32 v9, 9, v9
        v_min_u32 v9, 3, v9
        v_lshl_add_u32 v9, v9, 2, s34
        ''')
        for sh in (1, 2, 4, 8):
            e(f'v_add_f32_dpp v{L}, v{L}, v{L} row_ror:{sh} row_mask:0xf bank_mask:0xf')
        e(f'''
        v_mov_b32 v{X+1}, v{L}
        v_permlane16_swap_b32 v{L}, v{X+1}
        v_add_f32 v{L}, v{L}, v{X+1}
        s_waitcnt lgkmcnt(0)
        ''')
        SCL = TM + 4
        for i in range(7):
            e(f'ds_read_b32 v{SCL+i}, v9 offset:{i*16}')
        e(f'''
        s_and_b32 exec_lo, s56, 1
        s_mov_b32 exec_hi, 0
        ds_write_b32 v8, v{L} offset:{F_WL}
        s_mov_b64 exec, s[56:57]
        ''')
        HI = TM + 12
        lredo, lok = self.lab('redo'), self.lab('zok')
        a.label(lredo)
        for i in range(8): e(f'v_mov_b32 v{ACC+i}, 0')
        zp = self.opt.get('zpoll', 0)
        if not zp: e(f'v_mov_b32 v{UM}, 0')
        e('s_waitcnt lgkmcnt(0)')
        for i in range(7):
            e(f'v_lshlrev_b32 v{HI+(i&1)}, 16, v{SCL+i}')
            if not zp:
                e(f's_waitcnt vmcnt({6-i})')
                e(f'v_max3_u32 v{UM}, v{UM}, v{ZL+4*i}, v{ZL+4*i+1}')
                e(f'v_max3_u32 v{UM}, v{UM}, v{ZL+4*i+2}, v{ZL+4*i+3}')
            for j in range(4):
                e(f'v_dot2c_f32_bf16 v{ACC+2*j}, v{ZL+4*i+j}, v{SCL+i}')
                e(f'v_dot2c_f32_bf16 v{ACC+2*j+1}, v{ZL+4*i+j}, v{HI+(i&1)}')
        if not zp:
            e(f'v_cmp_eq_u32 vcc, -1, v{UM}')
            self.br(f's_cbranch_vccz {lok}')
            e('s_add_u32 s42, s42, 1')
            e('s_cmp_ge_u32 s42, 0x40000')
            self.br(f's_cbranch_scc1 {lok}')
            self.nodry('\n'.join(zl(i) for i in range(7)))
            self.br(f's_branch {lredo}')
        a.label(lok)
        e(f'''
        v_cvt_pk_bf16_f32 v{TM+4}, v{ACC}, v{ACC+1}
        v_cvt_pk_bf16_f32 v{TM+5}, v{ACC+2}, v{ACC+3}
        v_cvt_pk_bf16_f32 v{TM+6}, v{ACC+4}, v{ACC+5}
        v_cvt_pk_bf16_f32 v{TM+7}, v{ACC+6}, v{ACC+7}
        v_mul_u32_u24 v8, 43, v1
        v_lshrrev_b32 v8, 9, v8
        v_mul_u32_u24 v9, 12, v8
        v_sub_u32 v9, v1, v9
        s_lshl_b32 s34, s28, 2
        v_add_u32 v8, s34, v8
        v_mul_u32_u24 v8, 208, v8
        v_lshrrev_b32 v10, 2, v9
        v_lshl_add_u32 v8, v10, 6, v8
        v_and_b32 v10, 1, v9
        v_lshl_add_u32 v8, v10, 5, v8
        v_bfe_u32 v10, v9, 1, 1
        v_lshl_add_u32 v8, v10, 3, v8
        s_and_b32 exec_hi, s57, 0xffff
        ds_write_b64 v8, {vr(TM+4,2)} offset:{F_ZC}
        ds_write_b64 v8, {vr(TM+6,2)} offset:{F_ZC+16}
        s_mov_b32 exec_hi, s57
        s_waitcnt lgkmcnt(0)
        ''')
        self.bar()
        self.stamp(4)
        self.br('''
        s_cmp_ge_u32 s28, 6
        s_cbranch_scc1 L_end''')
        ZB = ZL
        WL = ZL + 24
        WMr = 96
        e('''
        v_mul_u32_u24 v6, 208, v2
        v_lshl_add_u32 v6, v3, 4, v6
        v_mov_b32 v7, 0
        v_lshlrev_b32 v9, 2, v3
        ''')
        for cg in range(2):
            for t in range(3):
                e(f'ds_read_b128 {vr(ZB + (cg*3+t)*4, 4)}, v6 offset:{F_ZC + cg*16*208 + t*64}')
        e(f'ds_read_b128 {vr(WL,4)}, v7 offset:{F_WL}')
        e(f'ds_read_b128 {vr(WL+4,4)}, v7 offset:{F_WL+16}')
        e(f'ds_read_b128 {vr(WMr,4)}, v7 offset:{F_WM}')
        e(f'ds_read_b128 {vr(WMr+4,4)}, v7 offset:{F_WM+16}')
        e(f'ds_read_b32 v104, v9 offset:{F_WM}')
        e(f'ds_read_b32 v105, v9 offset:{F_WM+16}')
        DA = 108
        n = 0
        for cg in range(2):
            for t in range(3):
                e(f's_waitcnt lgkmcnt({11 - n})')
                for ee in range(2):
                    D = DA + (cg * 2 + ee) * 4
                    e(f'{MF} {vr(D,4)}, {vr(ZB + (cg*3+t)*4, 4)}, {vr(WVO + (ee*3+t)*4, 4)}, ' + ('0' if t == 0 else vr(D, 4)))
                n += 1
        e(f'''
        s_waitcnt lgkmcnt(0)
        v_max3_f32 v{TM}, v{WMr}, v{WMr+1}, v{WMr+2}
        v_max3_f32 v{TM+1}, v{WMr+3}, v{WMr+4}, v{WMr+5}
        v_max3_f32 v{TM}, v{TM}, v{WMr+6}, v{WMr+7}
        v_max_f32 v{TM}, v{TM}, v{TM+1}
        ''')
        for v in range(8): e(f'v_sub_f32 v{WMr+v}, v{WMr+v}, v{TM}')
        e(f'v_sub_f32 v104, v104, v{TM}')
        e(f'v_sub_f32 v105, v105, v{TM}')
        for v in range(8): e(f'v_exp_f32 v{WMr+v}, v{WMr+v}')
        e('v_exp_f32 v104, v104')
        e('v_exp_f32 v105, v105')
        e(f'v_mul_f32 v{TM+1}, v{WL}, v{WMr}')
        for v in range(1, 8): e(f'v_fmac_f32 v{TM+1}, v{WL+v}, v{WMr+v}')
        e(f'v_rcp_f32 v{TM+1}, v{TM+1}')
        e(f'v_mul_f32 v104, v104, v{TM+1}')
        e(f'v_mul_f32 v105, v105, v{TM+1}')
        for ee in range(2):
            for cg in range(2):
                D = DA + (cg * 2 + ee) * 4
                e(f'v_add_f32 v{D}, v{D}, v{D+1}')
                e(f'v_add_f32 v{D+2}, v{D+2}, v{D+3}')
        for ee in range(2):
            for cg in range(2):
                D = DA + (cg * 2 + ee) * 4
                e(f'v_add_f32 v{D}, v{D}, v{D+2}')
        for ee in range(2):
            e(f'v_mul_f32 v{TM+4+ee}, v{DA+ee*4}, v104')
            e(f'v_fmac_f32 v{TM+4+ee}, v{DA+(2+ee)*4}, v105')
        for ee in range(2):
            e(f'v_mov_b32 v{TM+6+ee}, v{TM+4+ee}')
        for ee in range(2):
            e(f'v_permlane16_swap_b32 v{TM+4+ee}, v{TM+6+ee}')
        for ee in range(2):
            e(f'v_add_f32 v{TM+4+ee}, v{TM+4+ee}, v{TM+6+ee}')
        for ee in range(2):
            e(f'v_mov_b32 v{TM+6+ee}, v{TM+4+ee}')
        for ee in range(2):
            e(f'v_permlane32_swap_b32 v{TM+4+ee}, v{TM+6+ee}')
        for ee in range(2):
            e(f'v_add_f32 v{TM+4+ee}, v{TM+4+ee}, v{TM+6+ee}')
        for ee in range(2):
            e(f'v_mov_b32_dpp v{TM+6+ee}, v{TM+4+ee} quad_perm:[1,1,3,3] row_mask:0xf bank_mask:0xf')
        for ee in range(2):
            e(f'v_cvt_pk_bf16_f32 v{TM+8+ee}, v{TM+4+ee}, v{TM+6+ee}')
        e(f'''
        s_mul_i32 s33, s46, 384
        s_lshl_b32 s34, s28, 6
        s_add_u32 s33, s33, s34
        v_lshl_add_u32 v4, v2, 1, s33
        s_and_b32 exec_lo, s56, 0x5555
        s_mov_b32 exec_hi, 0
        ''')
        self.nodry(f'''
        global_atomic_pk_add_bf16 v4, v{TM+8}, s[22:23]
        global_atomic_pk_add_bf16 v4, v{TM+9}, s[22:23] offset:32
        ''')
        self.stamp(5)
        if self.opt.get('fdry', 1): self.br('''
        s_cmp_lg_u32 s58, 0
        s_cbranch_scc1 L_fin_dry_ret''')
        self.br('s_branch L_end')

    def role_main(self):
        a, e = self.a, self.e
        lh = self.lab('helper')
        self.br(f'''
        s_cmp_eq_u32 s28, 7
        s_cbranch_scc1 {lh}''')
        NT = ' nt'
        F1, T0, T1, QK = 24, 48, 72, 96
        ONES = 20
        S1, S0, S0b = 120, 124, 128
        SS0, SS1 = 132, 136
        AC = 140
        RS, MR = 148, 156
        L1, L0, L0b = 164, 168, 172
        TM = 176
        C5, SQ, MX0 = 188, 189, 190
        DV = 191
        M1 = 197
        M0E = 244
        QA = 252
        QL, QT = 200, 216
        XQ = [120 + 4 * i for i in range(7)] + [200 + 4 * i for i in range(11)]
        e(f'''
        s_lshr_b32 s31, s30, 1
        s_and_b32 s32, s30, 1
        s_mul_i32 s32, s32, 56
        s_lshl_b32 s33, s28, 3
        s_add_u32 s32, s32, s33
        s_mul_i32 s33, s31, 112
        s_add_u32 s33, s33, s32
        s_mul_i32 s33, s33, 384
        s_add_u32 s34, s12, s33
        s_addc_u32 s35, s13, 0
        s_mul_i32 s33, s31, 448
        s_lshl_b32 s32, s32, 1
        s_add_u32 s33, s33, s32
        s_mul_i32 s33, s33, 384
        s_add_u32 s36, s10, s33
        s_addc_u32 s37, s11, 0
        s_add_u32 s38, s36, 86016
        s_addc_u32 s39, s37, 0
        s_mul_i32 s43, s28, {XREG}
        s_add_u32 s43, s43, {L_X}
        s_movk_i32 s44, 2731
        ''')
        for jj in range(3):
            u, p = TM + 4 * jj, TM + 4 * jj + 1
            e(f'''
            v_add_u32 v{u}, {64*jj}, v1
            v_mul_u32_u24 v{p}, s44, v{u}
            v_lshrrev_b32 v{p}, 16, v{p}
            v_mul_u32_u24 v{u+2}, 24, v{p}
            v_sub_u32 v{u}, v{u}, v{u+2}
            v_bfe_u32 v{u+2}, v{p}, 1, 1
            v_bfe_u32 v{u+3}, v{p}, 2, 1
            v_lshl_add_u32 v{u+2}, v{u+2}, 2, v{u+3}
            v_xor_b32 v{u+2}, v{u+2}, v{u}
            v_mul_u32_u24 v{u+3}, 384, v{p}
            v_lshl_add_u32 v{4+jj}, v{u+2}, 4, v{u+3}
            s_add_u32 m0, s43, {jj*1024}
            global_load_lds_dwordx4 v{4+jj}, s[34:35]{NT}
            ''')
        for jj in range(3):
            u, p = TM + 4 * jj, TM + 4 * jj + 1
            e(f'''
            v_bfe_u32 v{u+2}, v{p}, 1, 2
            v_lshlrev_b32 v{u+2}, 1, v{u+2}
            v_xor_b32 v{u+2}, v{u+2}, v{u}
            v_lshl_add_u32 v{DV+jj}, v{u+2}, 4, v{u+3}
            v_xor_b32 v{DV+3+jj}, 16, v{DV+jj}
            ''')
        def fine_group(gidx):
            t, hf = gidx >> 1, gidx & 1
            sp = (36, 38)[t]
            for jj in range(3):
                e(f's_add_u32 m0, s43, {3072 + t*6144 + jj*1024}')
                if hf == 0:
                    e(f'global_load_lds_dwordx4 v{DV+jj}, s[{sp}:{sp+1}]{NT}')
                else:
                    e(f'global_load_lds_dwordx4 v{DV+3+jj}, s[{sp}:{sp+1}] offset:3072{NT}')
        WUP = self.opt.get('wup', 3)
        for gi in range(WUP): fine_group(gi)
        self.stamp(1)
        e(f'''
        v_and_b32 v{TM}, 1, v3
        v_lshlrev_b32 v{TM}, 1, v{TM}
        v_lshrrev_b32 v{TM+1}, 1, v3
        v_or_b32 v{TM}, v{TM}, v{TM+1}
        v_bfe_u32 v{TM+1}, v2, 1, 2
        v_lshlrev_b32 v{TM+1}, 1, v{TM+1}
        v_lshrrev_b32 v{TM+2}, 3, v2
        v_or_b32 v{TM+1}, v{TM+1}, v{TM+2}
        v_xor_b32 v{TM+1}, v{TM+1}, v{TM}
        v_mul_u32_u24 v{TM+3}, 384, v2
        v_add_u32 v{TM+3}, s43, v{TM+3}
        v_lshl_add_u32 v13, v{TM+1}, 4, v{TM+3}
        v_xor_b32 v{TM+1}, 4, v{TM+1}
        v_lshl_add_u32 v14, v{TM+1}, 4, v{TM+3}
        v_bfe_u32 v{TM+1}, v2, 2, 1
        v_lshlrev_b32 v{TM+1}, 2, v{TM+1}
        v_lshrrev_b32 v{TM+2}, 3, v2
        v_or_b32 v{TM+1}, v{TM+1}, v{TM+2}
        v_xor_b32 v{TM+1}, v{TM+1}, v{TM}
        v_lshrrev_b32 v{TM+2}, 1, v2
        v_mul_u32_u24 v{TM+2}, 384, v{TM+2}
        v_add_u32 v{TM+2}, s43, v{TM+2}
        v_lshl_add_u32 v16, v{TM+1}, 4, v{TM+2}
        v_xor_b32 v{TM+1}, 4, v{TM+1}
        v_lshl_add_u32 v15, v{TM+1}, 4, v{TM+2}
        v_mov_b32 v17, 1.0
        v_lshlrev_b32 v18, 4, v1
        v_lshlrev_b32 v19, 5, v2
        v_mov_b32 v20, 0x3f803f80
        v_mov_b32 v21, 0x3f803f80
        v_mov_b32 v22, 0x3f803f80
        v_mov_b32 v23, 0x3f803f80
        ''')
        QRA = 199
        e(f'''
        v_mul_u32_u24 v{QRA}, 400, v2
        v_lshl_add_u32 v{QRA}, v{TM}, 4, v{QRA}
        ''')
        for i in range(8): e(f'v_mov_b32 v{AC+i}, 0')
        A0, A1, A2, A3 = 4, 5, 6, 7
        C0, C1, C2, C3, C4 = 8, 9, 10, 11, 12
        e(f'''
        v_bfe_u32 v{TM}, v1, 2, 4
        v_bfe_u32 v{TM+1}, v{TM}, 1, 2
        v_lshlrev_b32 v{TM+1}, 1, v{TM+1}
        v_lshrrev_b32 v{TM+2}, 3, v{TM}
        v_or_b32 v{TM+1}, v{TM+1}, v{TM+2}
        v_bfe_u32 v{TM+2}, v1, 1, 1
        s_and_b32 s44, s28, 1
        s_lshl_b32 s44, s44, 2
        v_or_b32 v{TM+2}, s44, v{TM+2}
        v_xor_b32 v{TM+1}, v{TM+1}, v{TM+2}
        v_mul_u32_u24 v{TM+3}, 384, v{TM}
        v_and_b32 v{TM+4}, 1, v1
        v_lshl_add_u32 v{TM+3}, v{TM+4}, 3, v{TM+3}
        s_lshr_b32 s45, s28, 1
        s_lshl_b32 s45, s45, 7
        s_add_u32 s45, s45, {L_X}
        v_add_u32 v{TM+3}, s45, v{TM+3}
        v_lshl_add_u32 v{A0}, v{TM+1}, 4, v{TM+3}
        v_xor_b32 v{TM+1}, 2, v{TM+1}
        v_lshl_add_u32 v{A1}, v{TM+1}, 4, v{TM+3}
        v_add_u32 v{A2}, {4*XREG}, v{A0}
        v_add_u32 v{A3}, {4*XREG}, v{A1}
        v_and_b32 v{TM}, 1, v3
        v_lshlrev_b32 v{TM}, 2, v{TM}
        v_lshrrev_b32 v{TM+1}, 1, v3
        v_or_b32 v{TM}, v{TM}, v{TM+1}
        v_xor_b32 v{TM}, v{TM}, v{TM+2}
        v_bfe_u32 v{TM+1}, v1, 2, 1
        v_lshl_add_u32 v{TM+1}, v3, 1, v{TM+1}
        v_mul_u32_u24 v{TM+1}, 384, v{TM+1}
        v_lshl_add_u32 v{TM+1}, v{TM+4}, 3, v{TM+1}
        v_add_u32 v{TM+1}, s45, v{TM+1}
        v_bfe_u32 v{TM+3}, v1, 3, 1
        v_mul_u32_u24 v{TM+3}, {XREG}, v{TM+3}
        v_add_u32 v{TM+3}, v{TM+3}, v{TM+1}
        v_lshl_add_u32 v{C0}, v{TM}, 4, v{TM+3}
        v_xor_b32 v{TM}, 2, v{TM}
        v_lshl_add_u32 v{C1}, v{TM}, 4, v{TM+3}
        v_add_u32 v{C2}, {4*XREG}, v{C0}
        v_add_u32 v{C3}, {4*XREG}, v{C1}
        v_lshl_add_u32 v{C5}, v{TM}, 4, v{TM+1}
        v_xor_b32 v{TM}, 2, v{TM}
        v_lshl_add_u32 v{C4}, v{TM}, 4, v{TM+1}
        v_add_u32 v{C4}, {6*XREG}, v{C4}
        v_add_u32 v{C5}, {6*XREG}, v{C5}
        ''')
        self.qblock_addr(QA)

        def aread(dst, ve, vo, off):
            for ks in range(6):
                e(f'ds_read_b128 {vr(dst+4*ks,4)}, v{ve if ks % 2 == 0 else vo} offset:{off + (ks >> 1)*128}')
        e(f's_mov_b32 s44, {f32bits(1.0/192)}')
        e(f's_mov_b32 s45, {f32bits(1e-5)}')
        def finalize(t, SD, SSD):
            for r in range(4): e(f'v_mul_f32 v{SD+r}, s44, v{SD+r}')
            for r in range(4): e(f'v_mul_f32 v{TM+r}, v{SD+r}, v{SD+r}')
            for r in range(4): e(f'v_fma_f32 v{SSD+r}, v{SSD+r}, s44, -v{TM+r}')
            for r in range(4): e(f'v_max_f32 v{SSD+r}, 0, v{SSD+r}')
            for r in range(4): e(f'v_add_f32 v{SSD+r}, s45, v{SSD+r}')
            for r in range(4): e(f'v_rsq_f32 v{RS+4*t+r}, v{SSD+r}')
            for r in range(4): e(f'v_sub_f32 v{M0E+4*t+r}, v{SD+r}, v{S1+r}')
            for r in range(4): e(f'v_mul_f32 v{MR+4*t+r}, v{SD+r}, v{RS+4*t+r}')
        def xissue(k):
            if k < 7:
                for ee in range(2):
                    base = (A0, A1)[ee] if k < 4 else (A2, A3)[ee]
                    uoff = (k if k < 4 else k - 4) * XREG
                    for tt in range(2):
                        e(f'ds_read_b64_tr_b16 {vr(XQ[k*2+ee] + tt*2, 2)}, v{base} offset:{uoff + 3072 + tt*6144}')
            else:
                aa = k - 7
                for ee in range(2):
                    for hh in range(2):
                        if aa == 0: base, off = (C0, C1)[ee], hh * 2 * XREG
                        elif hh == 0: base, off = (C2, C3)[ee], 0
                        else: base, off = (C4, C5)[ee], 0
                        e(f'ds_read_b64_tr_b16 {vr(XQ[k*2+ee] + hh*2, 2)}, v{base} offset:{off}')
        ac = AC + 2
        def stats_tail(SSD):
            e(f'''
            v_add_f32 v{ac}, v{ac}, v{ac+1}
            v_add_f32 v{ac+2}, v{ac+2}, v{ac+3}
            v_add_f32 v{ac}, v{ac}, v{AC}
            v_fma_f32 v{ac}, 2.0, v{ac+2}, v{ac}
            {MF4} {vr(SSD,4)}, v{ac}, v17, 0
            ''')
        def dots(TT):
            for i in range(24):
                e(f'v_dot2c_f32_bf16 v{ac+(i&1)}, v{TT+i}, v{TT+i}')
                e(f'v_dot2c_f32_bf16 v{ac+2+(i&1)}, v{TT+i}, v{F1+i}')
        SM1 = TM + 8
        e(f's_waitcnt vmcnt({3*WUP})')
        if WUP < 4: fine_group(WUP)
        aread(F1, 16, 15, 0)
        for ks in range(6):
            e(f's_waitcnt lgkmcnt({5-ks})')
            e(f'{MF} {vr(S1,4)}, {vr(F1+4*ks,4)}, {vr(ONES,4)}, ' + ('0' if ks == 0 else vr(S1, 4)))
        for r in range(F1, F1 + 24):
            e(f'v_dot2c_f32_bf16 v{AC+(r&1)}, v{r}, v{r}')
        e(f'v_add_f32 v{AC}, v{AC}, v{AC+1}')
        for r in range(4): e(f'v_mov_b32 v{L1+r}, v{S1+r}')
        for r in range(4): e(f'v_mul_f32 v{S1+r}, s44, v{S1+r}')
        e(f'v_mov_b32 v{M1}, v{S1}')
        e(f'v_mov_b32 v{M1+1}, v{S1+2}')
        if WUP == 1:
            e('s_waitcnt vmcnt(3)')
            fine_group(2)
            e('s_waitcnt vmcnt(3)')
            fine_group(3)
        elif WUP == 2:
            e('s_waitcnt vmcnt(6)')
            fine_group(3)
            e('s_waitcnt vmcnt(6)')
        elif WUP == 3:
            e('s_waitcnt vmcnt(6)')
        else:
            e('s_waitcnt vmcnt(6)')
        QPOS = self.opt.get('qpos', 0)
        def qissue_all():
            self.qblock_issue(QA, QL)
            l6 = self.lab('w6q')
            self.br(f'''
            s_cmp_lg_u32 s28, 6
            s_cbranch_scc1 {l6}''')
            self.qblock_addr(184, '7')
            self.qblock_issue(184, 228)
            a.label(l6)
        def wait_minus(n):
            l6, l6b = self.lab('w6w'), self.lab('w6w')
            self.br(f'''
            s_cmp_lg_u32 s28, 6
            s_cbranch_scc1 {l6}''')
            e(f's_waitcnt vmcnt({8 + n})')
            self.br(f's_branch {l6b}')
            a.label(l6)
            e(f's_waitcnt vmcnt({4 + n})')
            a.label(l6b)
        if QPOS == 1: qissue_all()
        aread(T0, 13, 14, 3072)
        for ks in range(6):
            e(f's_waitcnt lgkmcnt({5-ks})')
            e(f'{MF} {vr(S0,4)}, {vr(T0+4*ks,4)}, {vr(ONES,4)}, ' + (vr(L1, 4) if ks == 0 else vr(S0, 4)))
        dots(T0)
        stats_tail(SS0)
        for i in range(4): e(f'v_mov_b32 v{ac+i}, 0')
        finalize(0, S0, SS0)
        self.stamp(2)
        if QPOS == 0:
            e('s_waitcnt vmcnt(3)')
            qissue_all()
        wait_minus(0)
        self.stamp(7)
        aread(T1, 13, 14, 3072 + 6144)
        for ks in range(6):
            e(f's_waitcnt lgkmcnt({5-ks})')
            e(f'{MF} {vr(S0b,4)}, {vr(T1+4*ks,4)}, {vr(ONES,4)}, ' + (vr(L1, 4) if ks == 0 else vr(S0b, 4)))
        dots(T1)
        stats_tail(SS1)
        finalize(1, S0b, SS1)
        self.stamp(8)
        self.qblock_finish(QA, QL, QT)
        l6 = self.lab('w6f')
        self.br(f'''
        s_cmp_lg_u32 s28, 6
        s_cbranch_scc1 {l6}''')
        self.qblock_finish(184, 228, QT, '7')
        a.label(l6)
        e('s_waitcnt lgkmcnt(0)')
        e('s_barrier')
        self.stamp(3)
        a.label('L_main_tail')
        e(f'v_lshlrev_b32 v{TM+1}, 4, v2')
        e(f'ds_read_b128 {vr(TM+4,4)}, v{TM+1} offset:{L_SQ}')
        for ks in range(6):
            e(f'ds_read_b128 {vr(QK+4*ks,4)}, v{QRA} offset:{L_QK + ks*64}')
        xl = []
        def xlist(k):
            out = []
            if k < 7:
                for ee in range(2):
                    base = (A0, A1)[ee] if k < 4 else (A2, A3)[ee]
                    uoff = (k if k < 4 else k - 4) * XREG
                    for tt in range(2):
                        out.append(f'ds_read_b64_tr_b16 {vr(XQ[k*2+ee] + tt*2, 2)}, v{base} offset:{uoff + 3072 + tt*6144}')
            else:
                aa = k - 7
                for ee in range(2):
                    for hh in range(2):
                        if aa == 0: base, off = (C0, C1)[ee], hh * 2 * XREG
                        elif hh == 0: base, off = (C2, C3)[ee], 0
                        else: base, off = (C4, C5)[ee], 0
                        out.append(f'ds_read_b64_tr_b16 {vr(XQ[k*2+ee] + hh*2, 2)}, v{base} offset:{off}')
            return out
        for k in range(9): xl += xlist(k)
        lsk, lj = self.lab('skipx'), self.lab('joinx')
        def logits(withx):
            xi = 0
            for ks in range(6):
                e(f's_waitcnt lgkmcnt({min(15, 5 - ks + xi)})')
                for (LD, TT) in ((L1, F1), (L0, T0), (L0b, T1)):
                    e(f'{MF} {vr(LD,4)}, {vr(TT+4*ks,4)}, {vr(QK+4*ks,4)}, ' + ('0' if ks == 0 else vr(LD, 4)))
                    if withx:
                        for _ in range(1):
                            e(xl[xi]); xi += 1
            assert (not withx) or xi == 18
        logits(True)
        e(f'''
        v_add_f32 v{TM+4}, v{TM+4}, v{TM+5}
        v_add_f32 v{TM+6}, v{TM+6}, v{TM+7}
        v_add_f32 v{SQ}, v{TM+4}, v{TM+6}
        ''')
        for x in range(8): e(f'v_mul_f32 v{MR+x}, v{MR+x}, v{SQ}')
        for LD in (L0, L0b):
            for r in range(4): e(f'v_add_f32 v{LD+r}, v{LD+r}, v{L1+r}')
        for t, LD in enumerate((L0, L0b)):
            for r in range(4):
                e(f'v_fma_f32 v{LD+r}, v{LD+r}, v{RS+4*t+r}, -v{MR+4*t+r}')
        e(f'''
        v_max3_f32 v{TM}, v{L0}, v{L0+1}, v{L0+2}
        v_max3_f32 v{TM+1}, v{L0+3}, v{L0b}, v{L0b+1}
        v_max3_f32 v{TM}, v{TM}, v{L0b+2}, v{L0b+3}
        v_max_f32 v{TM}, v{TM}, v{TM+1}
        v_mov_b32 v{TM+1}, v{TM}
        v_permlane16_swap_b32 v{TM}, v{TM+1}
        v_max_f32 v{TM}, v{TM}, v{TM+1}
        v_mov_b32 v{TM+1}, v{TM}
        v_permlane32_swap_b32 v{TM}, v{TM+1}
        v_max_f32 v{TM}, v{TM}, v{TM+1}
        s_lshl_b32 s46, s28, 2
        v_add_u32 v{TM+2}, s46, v19
        ds_write_b32 v{TM+2}, v{TM} offset:{L_MX}
        s_waitcnt lgkmcnt(0)
        ''')
        self.bar()
        e(f'''
        ds_read_b128 {vr(TM+4,4)}, v19 offset:{L_MX}
        ds_read_b128 {vr(TM+8,4)}, v19 offset:{L_MX+16}
        ''')
        for x in xl[18:31]: e(x)
        e('s_waitcnt lgkmcnt(13)')
        e(f'''
        v_max3_f32 v{TM}, v{TM+4}, v{TM+5}, v{TM+6}
        v_max3_f32 v{TM+1}, v{TM+7}, v{TM+8}, v{TM+9}
        v_max3_f32 v{TM}, v{TM}, v{TM+10}, v{TM+11}
        v_max_f32 v{TM}, v{TM}, v{TM+1}
        v_ceil_f32 v{TM}, v{TM}
        ''')
        for x in xl[31:]: e(x)
        self.stamp(4)
        P = [L0, L0 + 1, L0 + 2, L0 + 3, L0b, L0b + 1, L0b + 2, L0b + 3]
        for x in P: e(f'v_sub_f32 v{x}, v{x}, v{TM}')
        for x in P: e(f'v_exp_f32 v{x}, v{x}')
        W = TM + 4
        e(f'v_add_f32 v{TM}, v{P[0]}, v{P[1]}')
        e(f'v_add_f32 v{TM+1}, v{P[2]}, v{P[3]}')
        for x in range(4, 8, 2):
            e(f'v_add_f32 v{TM}, v{TM}, v{P[x]}')
            e(f'v_add_f32 v{TM+1}, v{TM+1}, v{P[x+1]}')
        for x in range(8): e(f'v_mul_f32 v{P[x]}, v{P[x]}, v{RS+x}')
        e(f'v_add_f32 v{TM}, v{TM}, v{TM+1}')
        for i in range(4): e(f'v_cvt_pk_bf16_f32 v{W+i}, v{P[2*i]}, v{P[2*i+1]}')
        e(f'{MF4} {vr(QK,4)}, v17, v{TM}, 0')
        e(f'''
        s_lshl_b32 s46, s28, 10
        v_add_u32 v{TM+3}, s46, v18
        ds_write_b128 v{TM+3}, {vr(W,4)} offset:{L_WF}
        v_add_f32 v{TM+8}, v{P[0]}, v{P[1]}
        v_add_f32 v{TM+9}, v{P[4]}, v{P[5]}
        v_add_f32 v{TM+10}, v{P[2]}, v{P[3]}
        v_add_f32 v{TM+11}, v{P[6]}, v{P[7]}
        v_add_f32 v{TM+8}, v{TM+8}, v{TM+9}
        v_add_f32 v{TM+10}, v{TM+10}, v{TM+11}
        v_cvt_pk_bf16_f32 v{TM+8}, v{TM+8}, v{TM+10}
        ''')
        for i in range(4):
            e(f'v_lshlrev_b32 v{P[2*i]}, 16, v{W+i}')
            e(f'v_and_b32 v{P[2*i+1]}, 0xffff0000, v{W+i}')
        e(f'''
        s_lshr_b32 s46, s28, 2
        s_lshl_b32 s46, s46, 10
        s_and_b32 s47, s28, 3
        s_lshl_b32 s47, s47, 2
        s_add_u32 s46, s46, s47
        v_add_u32 v{TM+3}, s46, v18
        ds_write_b32 v{TM+3}, v{TM+8} offset:{L_WC}
        v_lshlrev_b32 v{TM+9}, 16, v{TM+8}
        v_and_b32 v{TM+10}, 0xffff0000, v{TM+8}
        v_mul_f32 v{TM+1}, v{TM+9}, v{M1}
        v_mul_f32 v{TM+2}, v{TM+10}, v{M1+1}
        ''')
        for x in range(0, 8, 2):
            e(f'v_fmac_f32 v{TM+1}, v{P[x]}, v{M0E+x}')
            e(f'v_fmac_f32 v{TM+2}, v{P[x+1]}, v{M0E+x+1}')
        e(f'v_add_f32 v{TM+1}, v{TM+1}, v{TM+2}')
        e(f'{MF4} {vr(QK+4,4)}, v17, v{TM+1}, 0')
        e(f'''
        s_lshl_b32 s46, s28, 2
        v_add_u32 v{TM+3}, s46, v19
        ds_write_b32 v{TM+3}, v{QK} offset:{L_LS}
        ds_write_b32 v{TM+3}, v{QK+4} offset:{L_CO}
        s_waitcnt lgkmcnt(0)
        ''')
        self.bar()
        self.stamp(5)
        self.br('''
        s_cmp_ge_u32 s28, 6
        s_cbranch_scc1 L_w6_done''')
        lnf = self.lab('nf')
        self.br(f'''
        s_cmp_eq_u32 s54, 0
        s_cbranch_scc1 {lnf}''')
        e(f'''
        s_and_b32 s33, s53, 1
        s_mul_i32 s33, s33, 6
        s_add_u32 s33, s33, s28
        s_mul_i32 s33, s33, 6144
        s_add_u32 s33, s33, {WS_WVO}
        v_lshl_add_u32 v172, v1, 4, s33
        v_add_u32 v173, 3072, v172
        ''')
        for qd in range(6):
            e(f'global_load_dwordx4 {vr(148+4*qd,4)}, v{172 if qd < 3 else 173}, s[26:27] offset:{(qd%3)*1024} sc1')
        a.label(lnf)
        WBL = [24 + 4 * i for i in range(6)] + [72, 76, 80]
        ACC, CW, O = 84, 104, 112
        for k in range(9):
            e(f'ds_read_b128 {vr(WBL[k],4)}, v18 offset:{(L_WF + k*1024) if k < 7 else (L_WC + (k-7)*1024)}')
        e(f'ds_read_b128 {vr(CW,4)}, v19 offset:{L_CO}')
        e(f'ds_read_b128 {vr(CW+4,4)}, v19 offset:{L_CO+16}')
        e(f'''
        v_mul_u32_u24 v{TM}, {2*ZREG}, v2
        v_and_b32 v{TM+1}, 1, v3
        v_lshlrev_b32 v{TM+1}, 5, v{TM+1}
        v_lshrrev_b32 v{TM+2}, 1, v3
        v_lshl_add_u32 v{TM+1}, v{TM+2}, 4, v{TM+1}
        v_add_u32 v{TM}, v{TM}, v{TM+1}
        s_mul_i32 s46, s30, 192
        s_add_u32 s46, s46, {WS_Z}
        s_cmp_ge_u32 s28, 3
        s_cselect_b32 s47, {ZREG - 192}, 0
        s_add_u32 s46, s46, s47
        s_lshl_b32 s47, s28, 6
        s_add_u32 s46, s46, s47
        v_add_u32 v{TM}, s46, v{TM}
        ''')
        for k in range(9):
            e(f's_waitcnt lgkmcnt({10-k})')
            for ee in range(2):
                e(f'{MF} {vr(ACC+4*ee,4)}, {vr(XQ[k*2+ee],4)}, {vr(WBL[k],4)}, ' + ('0' if k == 0 else vr(ACC + 4 * ee, 4)))
        e(f'''
        s_waitcnt lgkmcnt(0)
        v_add_f32 v{CW}, v{CW}, v{CW+1}
        v_add_f32 v{CW+2}, v{CW+2}, v{CW+3}
        v_add_f32 v{CW+4}, v{CW+4}, v{CW+5}
        v_add_f32 v{CW+6}, v{CW+6}, v{CW+7}
        v_add_f32 v{CW}, v{CW}, v{CW+2}
        v_add_f32 v{CW+4}, v{CW+4}, v{CW+6}
        v_add_f32 v{CW}, v{CW}, v{CW+4}
        ''')
        for x in range(8): e(f'v_sub_f32 v{ACC+x}, v{ACC+x}, v{CW}')
        e(f'''
        v_cvt_pk_bf16_f32 v{O}, v{ACC}, v{ACC+1}
        v_cvt_pk_bf16_f32 v{O+1}, v{ACC+2}, v{ACC+3}
        v_cvt_pk_bf16_f32 v{O+2}, v{ACC+4}, v{ACC+5}
        v_cvt_pk_bf16_f32 v{O+3}, v{ACC+6}, v{ACC+7}
        v_permlane16_swap_b32 v{O}, v{O+2}
        v_permlane16_swap_b32 v{O+1}, v{O+3}
        ''')
        self.nodry(f'global_store_dwordx4 v{TM}, {vr(O,4)}, s[26:27] sc1')
        if self.opt.get('mlafter', 0): self.bar()
        self.stamp(6)
        a.label('L_w6_done')
        self.br('''
        s_cmp_lg_u32 s54, 0
        s_cbranch_scc1 L_fin_tail''')
        self.br('s_branch L_end')

        a.label(lh)
        e(f'''
        v_lshlrev_b32 v18, 4, v1
        v_lshlrev_b32 v19, 5, v2
        v_mov_b32 v4, 0
        v_mov_b32 v5, 0xff800000
        ds_write_b32 v18, v4 offset:{L_WC + 1024 + 12}
        ds_write_b32 v19, v5 offset:{L_MX + 28}
        ds_write_b32 v19, v4 offset:{L_LS + 28}
        ds_write_b32 v19, v4 offset:{L_CO + 28}
        ''')
        if self.opt.get('cpf', 0):
            lcp = self.lab('cpf')
            self.br(f'''
            s_cmp_ge_u32 s30, {self.opt.get('cpf')}
            s_cbranch_scc1 {lcp}''')
            a.raw('    s_getpc_b64 s[50:51]')
            a.raw('L_pc_here:')
            a.raw('    s_sub_u32 s50, s50, (L_pc_here - %s)' % KNAME)
            a.raw('    s_subb_u32 s51, s51, 0')
            e('v_lshlrev_b32 v12, 4, v1')
            ncode = self.opt.get('cpfkb', 12)
            for i in range(ncode):
                e(f'global_load_dwordx4 v[64:67], v12, s[50:51]')
                e('v_add_u32 v12, 1024, v12')
            a.label(lcp)
        e(f'''
        v_mov_b32 v56, -1
        v_mov_b32 v57, -1
        v_mov_b32 v58, -1
        v_mov_b32 v59, -1
        v_min_u32 v12, 47, v1
        v_mul_u32_u24 v13, 43, v12
        v_lshrrev_b32 v13, 9, v13
        v_mul_u32_u24 v14, 12, v13
        v_sub_u32 v14, v12, v14
        v_mul_u32_u24 v13, {ZREG}, v13
        v_lshl_add_u32 v13, v14, 4, v13
        s_mul_i32 s44, s30, 192
        s_add_u32 s44, s44, {WS_Z}
        v_add_u32 v13, s44, v13
        ''')
        for i in range(8):
            e('global_store_dwordx4 v13, v[56:59], s[26:27] sc1')
            if i < 7: e(f'v_add_u32 v13, {4*ZREG}, v13')
        loi = self.lab('oi')
        self.br(f'''
        s_cmp_ge_u32 s30, 16
        s_cbranch_scc1 {loi}''')
        e('''
        s_mul_i32 s44, s30, 384
        v_lshl_add_u32 v13, v1, 4, s44
        s_mov_b32 exec_lo, 0xffffff
        s_mov_b32 exec_hi, 0
        global_load_dwordx4 v[60:63], v13, s[8:9]
        s_waitcnt vmcnt(0)
        global_store_dwordx4 v13, v[60:63], s[22:23] sc1
        s_mov_b64 exec, -1
        ''')
        a.label(loi)
        if self.opt.get('dry', 0):
            self.dry_call('L_main_tail', 'L_main_dry_ret')
        self.stamp(2)
        self.poll_nonce0(52, 12)
        e(f'''
        v_mov_b32 v12, {L_NON}
        ds_write_b32 v12, v52
        ''')
        lnf = self.lab('hnf')
        self.br(f'''
        s_cmp_eq_u32 s54, 0
        s_cbranch_scc1 {lnf}''')
        if self.opt.get('fdry', 1):
            self.dry_call('L_fin_tail', 'L_fin_dry_ret')
        e(f'''
        s_and_b32 s33, s53, 1
        s_mul_i32 s33, s33, 6
        v_min_u32 v13, 5, v1
        v_add_u32 v13, s33, v13
        v_lshlrev_b32 v13, 7, v13
        v_add_u32 v13, {WS_WF}, v13
        s_mov_b32 s42, 0
        ''')
        lp, ld = self.lab('poll'), self.lab('polld')
        a.label(lp)
        e('''
        global_load_dword v14, v13, s[26:27] sc1
        s_add_u32 s42, s42, 1
        s_waitcnt vmcnt(0)
        v_cmp_ne_u32 vcc, v14, v52
        ''')
        self.br(f's_cbranch_vccz {ld}')
        e('s_sleep 4')
        e('s_cmp_lt_u32 s42, 0x40000')
        self.br(f's_cbranch_scc1 {lp}')
        a.label(ld)
        a.label(lnf)
        e('s_waitcnt lgkmcnt(0)')
        self.stamp(4)
        e('s_barrier')
        self.stamp(3)
        e(f'''
        s_barrier
        s_barrier
        ds_read_b128 v[24:27], v19 offset:{L_MX}
        ds_read_b128 v[28:31], v19 offset:{L_MX+16}
        ds_read_b128 v[32:35], v19 offset:{L_LS}
        ds_read_b128 v[36:39], v19 offset:{L_LS+16}
        s_lshl_b32 s44, s30, 8
        s_add_u32 s44, s44, {WS_ML}
        v_lshl_add_u32 v8, v2, 4, s44
        v_mov_b32 v6, v52
        v_mov_b32 v7, v52
        s_waitcnt lgkmcnt(0)
        v_max3_f32 v4, v24, v25, v26
        v_max3_f32 v5, v27, v28, v29
        v_max3_f32 v4, v4, v30, v31
        v_max_f32 v4, v4, v5
        v_ceil_f32 v4, v4
        v_add_f32 v32, v32, v33
        v_add_f32 v34, v34, v35
        v_add_f32 v36, v36, v37
        v_add_f32 v38, v38, v39
        v_add_f32 v32, v32, v34
        v_add_f32 v36, v36, v38
        v_add_f32 v5, v32, v36
        ''')
        if self.opt.get('mlafter', 0): e('s_barrier')
        e('''
        s_mov_b32 exec_lo, 0xffff
        s_mov_b32 exec_hi, 0
        global_store_dwordx4 v8, v[4:7], s[26:27] sc1
        s_mov_b64 exec, -1
        ''')
        self.stamp(6)
        self.br('''
        s_cmp_lg_u32 s54, 0
        s_cbranch_scc1 L_fin_tail''')
        self.br('s_branch L_end')


HEADER = open('standalone__detection_seg_dino__vision.s.ref').read().split('; Override')[0]

def kd(name, vgpr=256, sgpr=102):
    return '''.amdhsa_kernel %s
  .amdhsa_next_free_vgpr %d
  .amdhsa_next_free_sgpr %d
  .amdhsa_accum_offset %d
  .amdhsa_group_segment_fixed_size 0
  .amdhsa_kernarg_size 80
  .amdhsa_user_sgpr_count 2
  .amdhsa_user_sgpr_kernarg_segment_ptr 1
  .amdhsa_system_sgpr_workgroup_id_x 1
.end_amdhsa_kernel
''' % (name, vgpr, sgpr, (vgpr + 3) // 4 * 4)

def build(stamps=False, opt=None):
    out = HEADER
    out += '; @launch grid=(256,1,1) block=(512,1,1) lds=%d\n' % max(LDS_TOTAL, L_X + 7 * XREG)
    out += '.amdgcn_target "amdgcn-amd-amdhsa--gfx950"\n.text\n'
    G = Gen(stamps, opt)
    a = G.a
    n = KNAME
    a.raw('.globl %s\n.p2align 8\n.type %s,@function\n%s:' % (n, n, n))
    G.br('''
    s_cmp_ge_u32 s2, 256
    s_cbranch_scc1 L_exit''')
    G.stamp_init()
    G.prologue()
    G.stamp(0)
    G.e('s_and_b32 s31, s2, 7')
    G.br('''
    s_cmp_eq_u32 s31, 0
    s_cbranch_scc1 L_helpers''')
    G.e('''
    s_lshr_b32 s53, s2, 3
    s_sub_u32 s30, s2, s53
    s_sub_u32 s30, s30, 1
    s_mul_i32 s32, s53, 37
    s_lshr_b32 s32, s32, 8
    s_mul_i32 s32, s32, 7
    s_sub_u32 s32, s53, s32
    s_add_u32 s32, s32, 1
    s_cmp_eq_u32 s32, s31
    s_cselect_b32 s54, 1, 0
    ''')
    G.role_main()
    G.role_final(False)
    a.label('L_helpers')
    G.e('s_lshr_b32 s30, s2, 3')
    G.br('''
    s_cmp_ge_u32 s30, 24
    s_cbranch_scc1 L_end''')
    G.br('''
    s_cmp_ge_u32 s30, 12
    s_cbranch_scc1 L_role_wvo''')
    G.role_qk()
    G.br('s_branch L_end')
    a.label('L_role_wvo')
    G.e('s_sub_u32 s30, s30, 12')
    G.role_wvo()
    a.label('L_end')
    G.stamp_flush()
    a.label('L_exit')
    G.e('s_endpgm')
    out += a.text()
    out += '.section .rodata,"a"\n.p2align 6\n' + kd(n)
    return out

if __name__ == '__main__':
    ap = argparse.ArgumentParser()
    ap.add_argument('--stamps', action='store_true')
    ap.add_argument('--opt', default='')
    ap.add_argument('-o', default='standalone__detection_seg_dino__vision.s')
    args = ap.parse_args()
    OPT = {}
    for kv in args.opt.split(','):
        if kv:
            k, v = kv.split('='); OPT[k] = int(v)
    s = build(args.stamps, OPT)
    open(args.o, 'w').write(s)
    print('wrote', args.o, len(s), 'bytes')
```

```python
import sys, argparse, struct
from asmdsl import Asm

KNAME = 'standalone__detection_seg_dino__vision_kernel'

WS_QK = 0
WS_ML = 32768
WS_Z = 163840
ZREG = 224 * 192
WS_WVO = 0x200000
WS_WF = 0x220000

XREG = 15392
L_QK = 0
L_WF = 6400
L_WC = L_WF + 7168
L_SQ = L_WC + 2048
L_MX = L_SQ + 256
L_LS = L_MX + 512
L_CO = L_LS + 512
L_NON = 17408
L_X = 17664
F_ZC = L_X
F_SCT = L_X + 6656
F_WM = L_X + 7680
F_WL = L_X + 7712
H_RED = 0
H_ZC = 0
H_SCT = 6656
H_WM = 7680
H_WL = 7712
H_NON = 12288
H_Q = 12544
H_WK = 18688
H_WQ = 24832
H_WV = 12544
H_WO = 49408
LDS_TOTAL = 61696

QSCALE = (192.0 ** -0.5) * 1.4426950408889634

def f32bits(x):
    return '0x%08x' % struct.unpack('<I', struct.pack('<f', x))[0]

def vr(a, n):
    return 'v[%d:%d]' % (a, a + n - 1)

MF = 'v_mfma_f32_16x16x32_bf16'
MF4 = 'v_mfma_f32_16x16x4_f32'

class Gen:
    def __init__(self, stamps=False, opt=None):
        self.a = Asm()
        self.stamps = stamps
        self.opt = opt or {}
        self.uid = 0

    def lab(self, base):
        self.uid += 1
        return 'L_%s_%d' % (base, self.uid)

    def e(self, text):
        self.a.emit(text)

    def br(self, text):
        for l in text.strip().split('\n'):
            self.a.branch(l.strip())

    def prologue(self):
        self.e('''
        s_load_dwordx16 s[8:23], s[0:1], 0
        s_load_dwordx4 s[24:27], s[0:1], 64
        v_and_b32 v1, 63, v0
        v_lshrrev_b32 v4, 6, v0
        v_and_b32 v2, 15, v1
        v_readfirstlane_b32 s28, v4
        v_lshrrev_b32 v3, 4, v1
        s_mov_b32 s58, 0
        s_mov_b64 s[56:57], -1
        s_waitcnt lgkmcnt(0)
        ''')

    def stamp(self, idx):
        if not self.stamps: return
        self.e('s_memrealtime s[%d:%d]' % (60 + 2 * idx, 61 + 2 * idx))
        self.e('s_waitcnt lgkmcnt(0)')

    def stamp_init(self):
        if not self.stamps: return
        for i in range(24):
            self.e('s_mov_b32 s%d, 0' % (60 + i))

    def stamp_flush(self):
        if not self.stamps: return
        self.e('''
        s_lshl_b32 s92, s2, 3
        s_add_u32 s92, s92, s28
        s_lshl_b32 s92, s92, 7
        s_add_u32 s92, s92, %d
        s_mov_b64 exec, 1
        v_mov_b32 v4, s92
        ''' % 0x1000000)
        for i in range(12):
            self.e('v_mov_b32 v6, s%d' % (60 + 2 * i))
            self.e('v_mov_b32 v7, s%d' % (61 + 2 * i))
            self.e('global_store_dwordx2 v4, v[6:7], s[26:27] offset:%d' % (i * 8))
            self.e('s_nop 1')

    def setexec(self, mask):
        lo, hi = mask & 0xffffffff, mask >> 32
        if mask == (1 << 64) - 1:
            self.e('s_mov_b64 exec, -1')
        else:
            self.e('s_mov_b32 exec_lo, 0x%x' % lo)
            self.e('s_mov_b32 exec_hi, 0x%x' % hi)

    def bar(self):
        l = self.lab('bar')
        self.a.branch('s_cmp_lg_u32 s58, 0')
        self.a.branch(f's_cbranch_scc1 {l}')
        self.a.raw('    s_barrier')
        self.a.raw(l + ':')

    def nodry(self, text):
        l = self.lab('nd')
        self.a.branch('s_cmp_lg_u32 s58, 0')
        self.a.branch(f's_cbranch_scc1 {l}')
        self.e(text)
        self.a.label(l)

    def dry_call(self, target, ret, mode=1):
        self.e(f'''
        s_mov_b32 s59, s28
        s_mov_b32 s28, 0
        s_mov_b32 s58, {mode}
        s_mov_b64 s[56:57], 0
        s_mov_b64 exec, 0
        ''')
        self.br(f's_branch {target}')
        self.a.label(ret)
        self.e('''
        s_mov_b32 s28, s59
        s_mov_b32 s58, 0
        s_mov_b64 s[56:57], -1
        s_mov_b64 exec, -1
        ''')

    def poll_dbg(self, byte_off, ndw, vt, sleep):
        lp, ld = self.lab('poll'), self.lab('polld')
        self.e(f'''
        v_lshlrev_b32 v{vt}, 2, v1
        v_mov_b32 v{vt+1}, 0x01010101
        s_mov_b32 s42, 0
        ''')
        self.setexec((1 << ndw) - 1)
        self.a.label(lp)
        self.e(f'''
        global_load_dword v{vt+2}, v{vt}, s[24:25] offset:{byte_off} sc1
        s_add_u32 s42, s42, 1
        s_waitcnt vmcnt(0)
        v_cmp_ne_u32 vcc, v{vt+2}, v{vt+1}
        ''')
        self.br(f's_cbranch_vccz {ld}')
        self.e(f's_sleep {sleep}')
        self.e('s_cmp_lt_u32 s42, 0x40000')
        self.br(f's_cbranch_scc1 {lp}')
        self.a.label(ld)
        self.e('s_mov_b64 exec, -1')

    def poll_nonce0(self, vdst, vt):
        lp, ld = self.lab('poll'), self.lab('polld')
        self.e(f'''
        v_mov_b32 v{vt}, 0
        s_mov_b32 s42, 0
        ''')
        self.a.label(lp)
        self.e(f'''
        global_load_dword v{vdst}, v{vt}, s[24:25] sc1
        s_add_u32 s42, s42, 1
        s_waitcnt vmcnt(0)
        v_cmp_eq_u32 vcc, 0, v{vdst}
        ''')
        self.br(f's_cbranch_vccz {ld}')
        self.e('s_sleep 2')
        self.e('s_cmp_lt_u32 s42, 0x40000')
        self.br(f's_cbranch_scc1 {lp}')
        self.a.label(ld)

    def role_wvo(self):
        a, e = self.a, self.e
        WO, AV, DD = 24, 72, 96
        e(f'''
        s_cmp_ge_u32 s30, 6
        s_cselect_b32 s31, 1, 0
        s_mul_i32 s32, s31, 6
        s_sub_u32 s32, s30, s32
        ''')
        lw, lw2 = self.lab('wvo_a'), self.lab('wvo_b')
        self.br(f'''
        s_cmp_ge_u32 s28, 6
        s_cbranch_scc1 {lw}''')
        e(f'''
        s_mul_i32 s33, s28, 6144
        s_mul_i32 s34, s31, 36864
        s_add_u32 s34, s34, s33
        v_lshl_add_u32 v9, v1, 4, s34
        s_add_u32 s34, s33, {H_WV}
        ''')
        for i in range(6):
            e(f's_add_u32 m0, s34, {i*1024}')
            if i: e('v_add_u32 v9, 1024, v9')
            e('global_load_lds_dwordx4 v9, s[18:19]')
        self.br(f's_branch {lw2}')
        a.label(lw)
        e(f'''
        s_sub_u32 s33, s28, 6
        v_lshrrev_b32 v9, 2, v1
        v_mul_u32_u24 v9, 384, v9
        v_and_b32 v8, 3, v1
        v_lshl_add_u32 v9, v8, 4, v9
        s_mul_i32 s34, s33, 36864
        s_lshl_b32 s35, s32, 6
        s_add_u32 s34, s34, s35
        v_add_u32 v9, s34, v9
        s_mul_i32 s34, s33, 6144
        s_add_u32 s34, s34, {H_WO}
        ''')
        for i in range(6):
            e(f's_add_u32 m0, s34, {i*1024}')
            if i: e('v_add_u32 v9, 6144, v9')
            e('global_load_lds_dwordx4 v9, s[20:21]')
        a.label(lw2)
        e('s_waitcnt vmcnt(0)')
        e('s_barrier')
        ldone = self.lab('wvo_d')
        self.br(f'''
        s_cmp_ge_u32 s28, 6
        s_cbranch_scc1 {ldone}''')
        e(f'''
        v_bfe_u32 v6, v1, 2, 2
        v_lshl_add_u32 v6, v3, 3, v6
        v_lshlrev_b32 v6, 6, v6
        v_and_b32 v7, 3, v1
        v_lshl_add_u32 v6, v7, 3, v6
        v_mul_u32_u24 v7, 384, v2
        v_lshl_add_u32 v7, v3, 4, v7
        s_mul_i32 s33, s28, 6144
        s_add_u32 s33, s33, {H_WV}
        v_add_u32 v7, s33, v7
        ''')
        for ks in range(6):
            e(f'ds_read_b128 {vr(AV+4*ks,4)}, v7 offset:{ks*64}')
        for d in range(2):
            for ks in range(6):
                for h in range(2):
                    e(f'ds_read_b64_tr_b16 {vr(WO + (d*6+ks)*4 + 2*h, 2)}, v6 offset:{H_WO + ks*2048 + h*256 + d*32}')
        e('s_waitcnt lgkmcnt(0)')
        for ks in range(6):
            for ee in range(2):
                D = DD + 4 * ee
                e(f'{MF} {vr(D,4)}, {vr(AV+4*ks,4)}, {vr(WO + (ee*6+ks)*4, 4)}, ' + ('0' if ks == 0 else vr(D, 4)))
        e(f'''
        s_mul_i32 s33, s30, 6144
        s_lshr_b32 s34, s28, 1
        s_lshl_b32 s34, s34, 10
        s_add_u32 s33, s33, s34
        s_and_b32 s34, s28, 1
        s_lshl_b32 s34, s34, 3
        s_add_u32 s33, s33, s34
        s_add_u32 s33, s33, {WS_WVO}
        v_lshl_add_u32 v5, v1, 4, s33
        v_cvt_pk_bf16_f32 v{DD+8}, v{DD}, v{DD+1}
        v_cvt_pk_bf16_f32 v{DD+9}, v{DD+2}, v{DD+3}
        v_cvt_pk_bf16_f32 v{DD+10}, v{DD+4}, v{DD+5}
        v_cvt_pk_bf16_f32 v{DD+11}, v{DD+6}, v{DD+7}
        global_store_dwordx2 v5, {vr(DD+8,2)}, s[26:27] sc1
        global_store_dwordx2 v5, {vr(DD+10,2)}, s[26:27] offset:3072 sc1
        s_waitcnt vmcnt(0)
        ''')
        a.label(ldone)
        e('s_barrier')
        lnf = self.lab('wvo_nf')
        self.br(f'''
        s_cmp_lg_u32 s28, 0
        s_cbranch_scc1 {lnf}''')
        self.poll_nonce0(10, 4)
        e(f'''
        s_lshl_b32 s33, s30, 7
        s_add_u32 s33, s33, {WS_WF}
        v_mov_b32 v4, s33
        s_mov_b64 exec, 1
        global_store_dword v4, v10, s[26:27] sc1
        s_mov_b64 exec, -1
        ''')
        a.label(lnf)
        self.stamp(1)

    def qblock_addr(self, VA, B='s28'):
        self.e(f'''
        s_lshl_b32 s46, {B}, 10
        v_add_u32 v{VA}, s46, v18
        v_add_u32 v{VA+1}, 8192, v{VA}
        v_add_u32 v{VA+2}, 16384, v{VA}
        s_lshr_b32 s46, {B}, 1
        s_mul_i32 s46, s46, 12
        v_mov_b32 v{VA+3}, s46
        ''')

    def qblock_issue(self, VA, QL):
        self.e(f'''
        global_load_dwordx3 {vr(QL+12, 3)}, v{VA+3}, s[24:25] sc1
        global_load_dwordx4 {vr(QL, 4)}, v{VA}, s[26:27] sc1
        global_load_dwordx4 {vr(QL+4, 4)}, v{VA+1}, s[26:27] sc1
        global_load_dwordx4 {vr(QL+8, 4)}, v{VA+2}, s[26:27] sc1
        ''')

    def qblock_finish(self, VA, QL, QT, B='s28'):
        lr, lok = self.lab('qretry'), self.lab('qok')
        self.e('s_mov_b32 s42, 0')
        self.a.label(lr)
        self.e(f'''
        s_waitcnt vmcnt(0)
        v_xor_b32 v{QT}, v{QL+3}, v{QL+12}
        v_xor_b32 v{QT+1}, v{QL+7}, v{QL+13}
        v_xor_b32 v{QT+2}, v{QL+11}, v{QL+14}
        v_or3_b32 v{QT}, v{QT}, v{QT+1}, v{QT+2}
        v_min3_u32 v{QT+1}, v{QL+12}, v{QL+13}, v{QL+14}
        v_cmp_eq_u32 vcc, 0, v{QT+1}
        v_cndmask_b32 v{QT+1}, 0, 1, vcc
        v_or_b32 v{QT}, v{QT}, v{QT+1}
        v_cmp_ne_u32 vcc, 0, v{QT}
        ''')
        self.br(f's_cbranch_vccz {lok}')
        self.e('s_add_u32 s42, s42, 1')
        self.e('s_cmp_ge_u32 s42, 0x40000')
        self.br(f's_cbranch_scc1 {lok}')
        self.qblock_issue(VA, QL)
        self.br(f's_branch {lr}')
        self.a.label(lok)
        self.e(f'''
        v_mov_b32 v{QT+9}, 0x00003f80
        v_mov_b32 v{QT+10}, 0x3f800000
        v_mov_b32 v{QT+11}, 0x3f803f80
        ''')
        for p in range(3):
            for t in range(3):
                src = QL + 4 * p + t
                c0 = '0' if p == 0 else f'v{QT+2*t}'
                c1 = '0' if p == 0 else f'v{QT+2*t+1}'
                self.e(f'v_dot2_f32_bf16 v{QT+2*t}, v{src}, v{QT+9}, {c0}')
                self.e(f'v_dot2_f32_bf16 v{QT+2*t+1}, v{src}, v{QT+10}, {c1}')
        for t in range(3):
            self.e(f'v_cvt_pk_bf16_f32 v{QL+t}, v{QT+2*t}, v{QT+2*t+1}')
        self.e(f'''
        s_and_b32 s46, {B}, 1
        s_lshl_b32 s46, s46, 3
        v_lshrrev_b32 v{QT+6}, 3, v1
        v_add_u32 v{QT+6}, s46, v{QT+6}
        v_and_b32 v{QT+7}, 7, v1
        v_mul_u32_u24 v{QT+7}, 12, v{QT+7}
        v_mul_u32_u24 v{QT+8}, 400, v{QT+6}
        s_lshr_b32 s47, {B}, 1
        s_mul_i32 s46, s47, 96
        s_add_u32 s46, s46, {L_QK}
        v_add3_u32 v{QT+7}, v{QT+7}, v{QT+8}, s46
        ds_write2_b32 v{QT+7}, v{QL}, v{QL+1} offset0:0 offset1:1
        ds_write_b32 v{QT+7}, v{QL+2} offset:8
        v_mov_b32 v{QT}, 0
        v_dot2c_f32_bf16 v{QT}, v{QL}, v{QT+11}
        v_dot2c_f32_bf16 v{QT}, v{QL+1}, v{QT+11}
        v_dot2c_f32_bf16 v{QT}, v{QL+2}, v{QT+11}
        v_add_f32_dpp v{QT}, v{QT}, v{QT} quad_perm:[1,0,3,2] row_mask:0xf bank_mask:0xf
        v_add_f32_dpp v{QT}, v{QT}, v{QT} quad_perm:[2,3,0,1] row_mask:0xf bank_mask:0xf
        v_add_f32_dpp v{QT}, v{QT}, v{QT} row_half_mirror row_mask:0xf bank_mask:0xf
        s_lshl_b32 s47, s47, 2
        s_add_u32 s47, s47, {L_SQ}
        v_lshl_add_u32 v{QT+6}, v{QT+6}, 4, s47
        s_mov_b32 exec_lo, 0x01010101
        s_mov_b32 exec_hi, 0x01010101
        ds_write_b32 v{QT+6}, v{QT}
        s_mov_b64 exec, -1
        ''')

    def role_qk(self):
        a, e = self.a, self.e
        VQ, VWK, VWQ, T = 8, 32, 40, 88
        lwarm = self.lab('qk_warm')
        lw8 = self.lab('qk_w8')
        self.br(f'''
        s_cmp_ge_u32 s28, 4
        s_cbranch_scc1 {lwarm}''')
        e(f'''
        s_mul_i32 s32, s30, 86
        s_lshr_b32 s32, s32, 8
        s_mul_i32 s31, s32, 3
        s_sub_u32 s31, s30, s31
        v_lshrrev_b32 v5, 3, v1
        v_mul_u32_u24 v5, 384, v5
        v_and_b32 v6, 7, v1
        v_bfe_u32 v7, v1, 4, 1
        v_lshlrev_b32 v7, 1, v7
        v_xor_b32 v6, v6, v7
        s_lshl_b32 s33, s31, 7
        s_mul_i32 s34, s28, 18432
        s_add_u32 s34, s34, s33
        v_add_u32 v8, s34, v5
        v_lshl_add_u32 v9, v6, 4, v8
        v_xor_b32 v6, 4, v6
        v_lshl_add_u32 v10, v6, 4, v8
        v_add_u32 v10, 3072, v10
        s_mul_i32 s34, s28, 6144
        s_add_u32 m0, s34, {H_WQ}
        ''')
        for k in range(6):
            src = 9 if k % 2 == 0 else 10
            e(f'global_load_lds_dwordx4 v{src}, s[14:15]')
            if k < 4: e(f'v_add_u32 v{src}, 6144, v{src}')
            if k < 5: e('s_add_u32 m0, m0, 1024')
        lnq = self.lab('qk_noq')
        self.br(f'''
        s_cmp_ge_u32 s28, 3
        s_cbranch_scc1 {lnq}''')
        e('''
        s_lshl_b32 s33, s28, 7
        s_movk_i32 s34, 2731
        ''')
        for t in range(2):
            e(f'''
            v_add_u32 v6, s33, v1
            v_add_u32 v6, {64*t}, v6
            v_mul_u32_u24 v7, s34, v6
            v_lshrrev_b32 v7, 16, v7
            v_mul_u32_u24 v8, 24, v7
            v_sub_u32 v6, v6, v8
            v_bfe_u32 v8, v7, 1, 3
            v_xor_b32 v6, v6, v8
            v_mul_u32_u24 v7, 384, v7
            v_lshl_add_u32 v6, v6, 4, v7
            s_lshl_b32 s35, s28, 11
            s_add_u32 m0, s35, {H_Q + t*1024}
            global_load_lds_dwordx4 v6, s[8:9]
            ''')
        e(f'''
        s_mul_i32 s33, s32, 48
        s_lshl_b32 s34, s28, 4
        s_add_u32 s33, s33, s34
        s_mul_i32 s33, s33, 384
        s_lshl_b32 s34, s31, 7
        s_add_u32 s33, s33, s34
        v_and_b32 v6, 7, v1
        v_lshl_add_u32 v6, v6, 4, v5
        v_add_u32 v6, s33, v6
        s_add_u32 m0, s35, {H_WK}
        v_add_u32 v7, 3072, v6
        global_load_lds_dwordx4 v6, s[16:17]
        s_add_u32 m0, s35, {H_WK + 1024}
        s_nop 0
        global_load_lds_dwordx4 v7, s[16:17]
        ''')
        a.label(lnq)
        e(f'''
        v_mov_b32 v{T}, 0x3f803f80
        v_mov_b32 v{T+1}, 0x3f803f80
        v_mov_b32 v{T+2}, 0x3f803f80
        v_mov_b32 v{T+3}, 0x3f803f80
        v_mov_b32 v{T+4}, 1.0
        v_mov_b32 v{T+5}, 0
        v_mov_b32 v{T+6}, 0
        v_bfe_u32 v6, v2, 1, 3
        v_xor_b32 v6, v6, v3
        v_mul_u32_u24 v7, 384, v2
        v_lshl_add_u32 v151, v6, 4, v7
        v_xor_b32 v6, 4, v6
        v_lshl_add_u32 v152, v6, 4, v7
        v_lshlrev_b32 v4, 4, v1
        ''')
        self.stamp(7)
        e('s_waitcnt vmcnt(0)')
        self.br(f's_branch {lw8}')
        a.label(lwarm)
        l7 = self.lab('qk7')
        self.br(f'''
        s_cmp_lg_u32 s28, 7
        s_cbranch_scc1 {l7}''')
        e(f'''
        s_memrealtime s[40:41]
        s_lshl_b32 s33, s30, 2
        v_mov_b32 v6, s33
        v_mov_b32 v7, {H_NON}
        s_waitcnt lgkmcnt(0)
        s_or_b32 s40, s40, 1
        v_mov_b32 v5, s40
        s_mov_b64 exec, 1
        global_store_dword v6, v5, s[24:25] sc1
        ds_write_b32 v7, v5
        s_mov_b64 exec, -1
        ''')
        a.label(l7)
        if self.opt.get('qdry', 1):
            lx = [self.lab('qd') for _ in range(4)]
            ljoin = self.lab('qd')
            segs = (('L_qk_segA', 'L_qk_retA1', 1), ('L_qk_segA2', 'L_qk_retA', 2), ('L_qk_segB', 'L_qk_retB1', 1), ('L_qk_segB2', 'L_qk_retB', 2))
            for i, (tg, rt, md) in enumerate(segs):
                if i < 3:
                    self.br(f'''
                    s_cmp_lg_u32 s28, {4 + i}
                    s_cbranch_scc1 {lx[i]}''')
                self.dry_call(tg, rt, md)
                if i < 3:
                    self.br(f's_branch {ljoin}')
                    a.label(lx[i])
            a.label(ljoin)
        e('s_waitcnt lgkmcnt(0)')
        a.label(lw8)
        self.stamp(9)
        e('s_barrier')
        self.stamp(10)
        lb3 = self.lab('qk_b3')
        lwo = self.lab('qk_wo')
        self.br(f'''
        s_cmp_ge_u32 s28, 4
        s_cbranch_scc1 {lwo}''')
        a.label('L_qk_segA')
        for ks in range(6):
            e(f'ds_read_b128 {vr(VQ+4*ks, 4)}, v{151 if ks % 2 == 0 else 152} offset:{H_Q + (ks >> 1) * 128}')
        e('''
        v_bfe_u32 v5, v1, 2, 2
        v_lshl_add_u32 v6, v3, 3, v5
        v_lshlrev_b32 v6, 7, v6
        v_lshrrev_b32 v5, 1, v5
        v_and_b32 v7, 1, v3
        v_lshl_or_b32 v5, v7, 1, v5
        v_lshlrev_b32 v5, 1, v5
        v_bfe_u32 v7, v1, 1, 1
        s_lshl_b32 s33, s28, 1
        v_or_b32 v7, s33, v7
        v_xor_b32 v5, v5, v7
        v_lshl_add_u32 v6, v5, 4, v6
        v_and_b32 v7, 1, v1
        v_lshl_add_u32 v6, v7, 3, v6
        ''')
        for ks in range(6):
            for h in range(2):
                e(f'ds_read_b64_tr_b16 {vr(VWQ+4*ks+2*h, 2)}, v6 offset:{H_WQ + ks*4096 + h*512}')
        e('''
        v_lshlrev_b32 v7, 7, v2
        v_lshl_add_u32 v7, v3, 3, v7
        s_lshl_b32 s33, s28, 5
        v_add_u32 v7, s33, v7
        ''')
        for tau in range(3):
            e(f'ds_read_b64 {vr(VWK+2*tau, 2)}, v7 offset:{H_WK + tau*2048}')
        MEAN, SSQ, D1, CSQ = T + 8, T + 12, T + 36, T + 16
        for ks in range(6):
            e(f's_waitcnt lgkmcnt({min(15, 20 - ks)})')
            e(f'{MF} {vr(MEAN,4)}, {vr(T,4)}, {vr(VQ+4*ks,4)}, ' + ('0' if ks == 0 else vr(MEAN, 4)))
        for i in range(24):
            e(f'v_dot2c_f32_bf16 v{T+5+(i&1)}, v{VQ+i}, v{VQ+i}')
        e(f'v_add_f32 v{T+5}, v{T+5}, v{T+6}')
        e(f'{MF4} {vr(SSQ,4)}, v{T+4}, v{T+5}, 0')
        if self.opt.get('qdry', 1):
            self.br('''
            s_cmp_eq_u32 s58, 1
            s_cbranch_scc1 L_qk_retA1''')
            a.label('L_qk_segA2')
        for ks in range(6):
            e(f's_waitcnt lgkmcnt({13 - 2*ks})')
            e(f'{MF} {vr(D1,4)}, {vr(VWQ+4*ks,4)}, {vr(VQ+4*ks,4)}, ' + ('0' if ks == 0 else vr(D1, 4)))
            e(f'{MF} {vr(CSQ,4)}, {vr(VWQ+4*ks,4)}, {vr(T,4)}, ' + ('0' if ks == 0 else vr(CSQ, 4)))
        e(f'''
        s_mov_b32 s36, {f32bits(1.0/192)}
        v_mul_f32 v{MEAN}, s36, v{MEAN}
        v_mul_f32 v{SSQ}, s36, v{SSQ}
        v_fma_f32 v{SSQ}, -v{MEAN}, v{MEAN}, v{SSQ}
        v_max_f32 v{SSQ}, 0, v{SSQ}
        v_add_f32 v{SSQ}, {f32bits(1e-5)}, v{SSQ}
        v_rsq_f32 v{SSQ}, v{SSQ}
        ''')
        for r in range(4):
            e(f'v_fma_f32 v{D1+r}, -v{MEAN}, v{CSQ+r}, v{D1+r}')
        for r in range(4):
            e(f'v_mul_f32 v{D1+r}, v{D1+r}, v{SSQ}')
        P = T + 40
        e(f'v_cvt_pk_bf16_f32 v{P}, v{D1}, v{D1+1}')
        e(f'v_cvt_pk_bf16_f32 v{P+1}, v{D1+2}, v{D1+3}')
        e('s_waitcnt lgkmcnt(0)')
        D2 = T + 44
        for tau in range(3):
            e(f'v_mfma_f32_16x16x16_bf16 {vr(D2+4*tau,4)}, {vr(VWK+2*tau,2)}, {vr(P,2)}, 0')
        e('''
        s_mul_i32 s33, s28, 3072
        v_add_u32 v5, s33, v4
        ''')
        for tau in range(3):
            e(f'ds_write_b128 v5, {vr(D2+4*tau,4)} offset:{H_RED + tau*1024}')
        e('s_waitcnt lgkmcnt(0)')
        if self.opt.get('qdry', 1): self.br('''
        s_cmp_lg_u32 s58, 0
        s_cbranch_scc1 L_qk_retA''')
        a.label(lwo)
        a.label(lb3)
        e('s_barrier')
        self.stamp(11)
        lq_done = self.lab('qk_done')
        self.br(f'''
        s_cmp_ge_u32 s28, 2
        s_cbranch_scc1 {lq_done}''')
        a.label('L_qk_segB')
        e(f'''
        v_lshrrev_b32 v5, 3, v1
        s_lshl_b32 s33, s28, 3
        v_add_u32 v5, s33, v5
        v_lshlrev_b32 v5, 4, v5
        v_and_b32 v6, 7, v1
        v_mul_u32_u24 v6, 6, v6
        v_mov_b32 v10, {H_NON}
        ds_read_b32 v{VQ+27}, v10
        ''')
        for p in range(3):
            e(f'''
            v_add_u32 v7, {2*p}, v6
            v_lshrrev_b32 v8, 2, v7
            v_lshl_add_u32 v8, v8, 8, v5
            v_and_b32 v7, 3, v7
            v_lshl_add_u32 v{150+p}, v7, 2, v8
            ''')
        R = 40
        for p in range(3):
            for d in range(4):
                e(f'ds_read_b64 {vr(R + (p*4+d)*2, 2)}, v{150+p} offset:{H_RED + d*3072}')
        if self.opt.get('qdry', 1):
            self.br('''
            s_cmp_eq_u32 s58, 1
            s_cbranch_scc1 L_qk_retB1''')
            a.label('L_qk_segB2')
        e(f'''
        s_mov_b32 s36, {f32bits(QSCALE)}
        s_mul_i32 s33, s31, 8192
        s_lshl_b32 s34, s32, 11
        s_add_u32 s33, s33, s34
        s_lshl_b32 s34, s28, 10
        s_add_u32 s33, s33, s34
        v_add_u32 v5, s33, v4
        s_waitcnt lgkmcnt(0)
        ''')
        for p in range(3):
            b = R + p * 8
            for x in range(2):
                e(f'v_add_f32 v{b+x}, v{b+x}, v{b+2+x}')
                e(f'v_add_f32 v{b+4+x}, v{b+4+x}, v{b+6+x}')
        for p in range(3):
            b = R + p * 8
            for x in range(2):
                e(f'v_add_f32 v{b+x}, v{b+x}, v{b+4+x}')
        for p in range(3):
            b = R + p * 8
            for x in range(2):
                e(f'v_mul_f32 v{b+x}, s36, v{b+x}')
        O = VQ + 24
        for p in range(3):
            b = R + p * 8
            e(f'v_cvt_pk_bf16_f32 v{O+p}, v{b}, v{b+1}')
        self.nodry(f'global_store_dwordx4 v5, {vr(O,4)}, s[26:27] offset:{WS_QK} sc1')
        if self.opt.get('qdry', 1): self.br('''
        s_cmp_lg_u32 s58, 0
        s_cbranch_scc1 L_qk_retB''')
        self.stamp(8)
        a.label(lq_done)


    def weights_issue(self):
        e = self.e
        e(f'''
        s_sub_u32 s35, s28, 4
        s_mul_i32 s33, s35, 18432
        v_lshl_add_u32 v9, v1, 4, s33
        s_add_u32 s34, s33, {H_WO}
        ''')
        for i in range(18):
            e(f's_add_u32 m0, s34, {i*1024}')
            if i: e('v_add_u32 v9, 1024, v9')
            e('global_load_lds_dwordx4 v9, s[20:21]')
        e(f'''
        s_mul_i32 s33, s35, 9216
        s_and_b32 s34, s2, 1
        s_mul_i32 s34, s34, 36864
        s_add_u32 s34, s34, s33
        v_lshl_add_u32 v9, v1, 4, s34
        s_add_u32 s34, s33, {H_WV}
        ''')
        for i in range(9):
            e(f's_add_u32 m0, s34, {i*1024}')
            if i: e('v_add_u32 v9, 1024, v9')
            e('global_load_lds_dwordx4 v9, s[18:19]')

    def zinit(self, freg):
        e = self.e
        e(f'''
        s_mul_i32 s33, s{freg}, {ZREG}
        s_add_u32 s33, s33, {WS_Z}
        v_lshl_add_u32 v4, v0, 4, s33
        ''')
        for i in range(10):
            e('global_store_dwordx4 v4, v[200:203], s[26:27] sc1')
            e('v_add_u32 v4, 4096, v4')
        e(f'''
        s_mul_i32 s33, s{freg}, 896
        s_add_u32 s33, s33, {WS_ML - 2048}
        v_lshl_add_u32 v5, v0, 4, s33
        v_cmp_gt_u32 vcc, 128, v0
        v_cndmask_b32 v4, v5, v4, vcc
        v_cmp_gt_u32 vcc, 184, v0
        s_and_saveexec_b64 s[40:41], vcc
        ''')
        l = self.lab('zi')
        self.br(f's_cbranch_execz {l}')
        e('global_store_dwordx4 v4, v[200:203], s[26:27] sc1')
        self.a.label(l)
        e('s_mov_b64 exec, -1')
        l2 = self.lab('oi')
        self.br(f'''
        s_cmp_lg_u32 s28, 3
        s_cbranch_scc1 {l2}''')
        self.br(f'''
        s_bitcmp1_b32 s{freg}, 0
        s_cbranch_scc1 {l2}''')
        e(f'''
        s_lshr_b32 s33, s{freg}, 1
        s_mul_i32 s33, s33, 384
        v_lshl_add_u32 v5, v1, 4, s33
        s_mov_b32 exec_lo, 0xffffff
        s_mov_b32 exec_hi, 0
        global_load_dwordx4 v[204:207], v5, s[8:9]
        s_waitcnt vmcnt(0)
        global_store_dwordx4 v5, v[204:207], s[22:23] sc1
        s_mov_b64 exec, -1
        ''')
        self.a.label(l2)

    def role_final(self, isqk):
        a, e = self.a, self.e
        WO = 24
        WVO = 148
        ZL = 24
        ACC = 188
        TM = 200
        a.label('L_fin_tail')
        e(f'''
        s_lshr_b32 s46, s53, 1
        v_mov_b32 v4, {L_NON}
        ds_read_b32 v10, v4
        s_waitcnt lgkmcnt(0)
        ''')
        e(f'''
        s_mul_i32 s33, s28, 28
        v_min_u32 v4, 27, v1
        v_add_u32 v4, s33, v4
        v_lshlrev_b32 v4, 4, v4
        s_mul_i32 s34, s53, 3584
        s_add_u32 s34, s34, {WS_ML}
        v_add_u32 v4, s34, v4
        s_mul_i32 s34, s53, 224
        s_add_u32 s34, s34, s33
        s_mul_i32 s34, s34, 192
        s_add_u32 s34, s34, {WS_Z}
        v_min_u32 v5, 47, v1
        v_lshlrev_b32 v5, 4, v5
        v_add_u32 v5, s34, v5
        v_add_u32 v6, 3840, v5
        s_mov_b32 s42, 0
        ''')
        def zl(i):
            return f'global_load_dwordx4 {vr(ZL+4*i,4)}, v{5 + i//5}, s[26:27] offset:{(i%5)*768} sc1'
        def zload(i):
            e(zl(i))
        UM = TM + 14
        if self.opt.get('zpoll', 0):
            lp, ld = self.lab('poll'), self.lab('polld')
            a.label(lp)
            e(f'''
            global_load_dwordx4 {vr(TM,4)}, v4, s[26:27] sc1
            s_add_u32 s42, s42, 1
            s_waitcnt vmcnt(0)
            v_cmp_eq_u32 vcc, v{TM+2}, v10
            ''')
            self.br(f's_cbranch_vccnz {ld}')
            e('s_cmp_lt_u32 s42, 0x40000')
            self.br(f's_cbranch_scc1 {lp}')
            a.label(ld)
            self.stamp(1)
            lp, ld = self.lab('poll'), self.lab('polld')
            a.label(lp)
            e(f'global_load_dwordx4 {vr(TM,4)}, v4, s[26:27] sc1')
            for i in range(7): zload(i)
            e(f'''
            s_add_u32 s42, s42, 1
            v_mov_b32 v{UM}, 0
            s_waitcnt vmcnt(7)
            v_cmp_ne_u32 vcc, v{TM+2}, v10
            v_cndmask_b32 v{UM}, 0, -1, vcc
            ''')
            for i in range(7):
                e(f's_waitcnt vmcnt({6-i})')
                e(f'v_max3_u32 v{UM}, v{UM}, v{ZL+4*i}, v{ZL+4*i+1}')
                e(f'v_max3_u32 v{UM}, v{UM}, v{ZL+4*i+2}, v{ZL+4*i+3}')
            e(f'v_cmp_eq_u32 vcc, -1, v{UM}')
            self.br(f's_cbranch_vccz {ld}')
            e('s_cmp_lt_u32 s42, 0x40000')
            self.br(f's_cbranch_scc1 {lp}')
            a.label(ld)
            self.stamp(3)
        else:
            NP = self.opt.get('npoll', 1)
            if NP == 1:
                lp, ld = self.lab('poll'), self.lab('polld')
                a.label(lp)
                self.nodry(f'global_load_dwordx4 {vr(TM,4)}, v4, s[26:27] sc1')
                e(f'''
                s_add_u32 s42, s42, 1
                s_waitcnt vmcnt(0)
                v_cmp_ne_u32 vcc, v{TM+2}, v10
                ''')
                self.br(f's_cbranch_vccz {ld}')
                if self.opt.get('fsl', 0): e(f's_sleep {self.opt.get("fsl")}')
                e('s_cmp_lt_u32 s42, 0x40000')
                self.br(f's_cbranch_scc1 {lp}')
                a.label(ld)
            else:
                PS = 56
                lp, ld = self.lab('poll'), self.lab('polld')
                lx = [self.lab('px') for _ in range(NP)]
                for k in range(NP - 1):
                    self.nodry(f'global_load_dwordx4 {vr(PS+4*k,4)}, v4, s[26:27] sc1')
                    e(f's_sleep {self.opt.get("psl", 3)}')
                a.label(lp)
                for k in range(NP):
                    kk = (k + NP - 1) % NP
                    self.nodry(f'global_load_dwordx4 {vr(PS+4*kk,4)}, v4, s[26:27] sc1')
                    e(f'''
                    s_waitcnt vmcnt({NP-1})
                    v_cmp_ne_u32 vcc, v{PS+4*k+2}, v10
                    ''')
                    self.br(f's_cbranch_vccz {lx[k]}')
                e('s_add_u32 s42, s42, 1')
                e('s_cmp_lt_u32 s42, 0x20000')
                self.br(f's_cbranch_scc1 {lp}')
                for k in range(NP):
                    a.label(lx[k])
                    e(f'v_mov_b32 v{TM}, v{PS+4*k}')
                    e(f'v_mov_b32 v{TM+1}, v{PS+4*k+1}')
                    if k < NP - 1: self.br(f's_branch {ld}')
                a.label(ld)
            self.stamp(3)
            self.nodry('\n'.join(zl(i) for i in range(7)))
        M, L, X = TM, TM + 1, TM + 2
        e(f'v_mov_b32 v{X}, v{M}')
        for sh in (1, 2, 4, 8):
            e(f'v_max_f32_dpp v{X}, v{X}, v{X} row_ror:{sh} row_mask:0xf bank_mask:0xf')
        e(f'''
        v_mov_b32 v{X+1}, v{X}
        v_permlane16_swap_b32 v{X}, v{X+1}
        v_max_f32 v{X}, v{X}, v{X+1}
        v_mov_b32 v{X+1}, v{X}
        v_permlane32_swap_b32 v{X}, v{X+1}
        v_max_f32 v{X}, v{X}, v{X+1}
        s_lshl_b32 s35, s28, 2
        v_mov_b32 v8, s35
        ds_write_b32 v8, v{X} offset:{F_WM}
        v_sub_f32 v{M}, v{M}, v{X}
        v_exp_f32 v{M}, v{M}
        v_cmp_gt_u32 vcc, 28, v1
        v_mul_f32 v{L}, v{L}, v{M}
        v_cndmask_b32 v{L}, 0, v{L}, vcc
        v_lshrrev_b32 v{M}, 16, v{M}
        s_lshl_b32 s34, s28, 7
        s_add_u32 s34, s34, {F_SCT}
        v_lshl_add_u32 v9, v1, 2, s34
        s_mov_b32 exec_hi, 0
        ds_write_b32 v9, v{M}
        s_mov_b32 exec_hi, s57
        v_mul_u32_u24 v9, 43, v1
        v_lshrrev_b32 v9, 9, v9
        v_min_u32 v9, 3, v9
        v_lshl_add_u32 v9, v9, 2, s34
        ''')
        for sh in (1, 2, 4, 8):
            e(f'v_add_f32_dpp v{L}, v{L}, v{L} row_ror:{sh} row_mask:0xf bank_mask:0xf')
        e(f'''
        v_mov_b32 v{X+1}, v{L}
        v_permlane16_swap_b32 v{L}, v{X+1}
        v_add_f32 v{L}, v{L}, v{X+1}
        s_waitcnt lgkmcnt(0)
        ''')
        SCL = TM + 4
        for i in range(7):
            e(f'ds_read_b32 v{SCL+i}, v9 offset:{i*16}')
        e(f'''
        s_and_b32 exec_lo, s56, 1
        s_mov_b32 exec_hi, 0
        ds_write_b32 v8, v{L} offset:{F_WL}
        s_mov_b64 exec, s[56:57]
        ''')
        HI = TM + 12
        lredo, lok = self.lab('redo'), self.lab('zok')
        a.label(lredo)
        for i in range(8): e(f'v_mov_b32 v{ACC+i}, 0')
        zp = self.opt.get('zpoll', 0)
        if not zp: e(f'v_mov_b32 v{UM}, 0')
        e('s_waitcnt lgkmcnt(0)')
        for i in range(7):
            e(f'v_lshlrev_b32 v{HI+(i&1)}, 16, v{SCL+i}')
            if not zp:
                e(f's_waitcnt vmcnt({6-i})')
                e(f'v_max3_u32 v{UM}, v{UM}, v{ZL+4*i}, v{ZL+4*i+1}')
                e(f'v_max3_u32 v{UM}, v{UM}, v{ZL+4*i+2}, v{ZL+4*i+3}')
            for j in range(4):
                e(f'v_dot2c_f32_bf16 v{ACC+2*j}, v{ZL+4*i+j}, v{SCL+i}')
                e(f'v_dot2c_f32_bf16 v{ACC+2*j+1}, v{ZL+4*i+j}, v{HI+(i&1)}')
        if not zp:
            e(f'v_cmp_eq_u32 vcc, -1, v{UM}')
            self.br(f's_cbranch_vccz {lok}')
            e('s_add_u32 s42, s42, 1')
            e('s_cmp_ge_u32 s42, 0x40000')
            self.br(f's_cbranch_scc1 {lok}')
            self.nodry('\n'.join(zl(i) for i in range(7)))
            self.br(f's_branch {lredo}')
        a.label(lok)
        e(f'''
        v_cvt_pk_bf16_f32 v{TM+4}, v{ACC}, v{ACC+1}
        v_cvt_pk_bf16_f32 v{TM+5}, v{ACC+2}, v{ACC+3}
        v_cvt_pk_bf16_f32 v{TM+6}, v{ACC+4}, v{ACC+5}
        v_cvt_pk_bf16_f32 v{TM+7}, v{ACC+6}, v{ACC+7}
        v_mul_u32_u24 v8, 43, v1
        v_lshrrev_b32 v8, 9, v8
        v_mul_u32_u24 v9, 12, v8
        v_sub_u32 v9, v1, v9
        s_lshl_b32 s34, s28, 2
        v_add_u32 v8, s34, v8
        v_mul_u32_u24 v8, 208, v8
        v_lshrrev_b32 v10, 2, v9
        v_lshl_add_u32 v8, v10, 6, v8
        v_and_b32 v10, 1, v9
        v_lshl_add_u32 v8, v10, 5, v8
        v_bfe_u32 v10, v9, 1, 1
        v_lshl_add_u32 v8, v10, 3, v8
        s_and_b32 exec_hi, s57, 0xffff
        ds_write_b64 v8, {vr(TM+4,2)} offset:{F_ZC}
        ds_write_b64 v8, {vr(TM+6,2)} offset:{F_ZC+16}
        s_mov_b32 exec_hi, s57
        s_waitcnt lgkmcnt(0)
        ''')
        self.bar()
        self.stamp(4)
        self.br('''
        s_cmp_ge_u32 s28, 6
        s_cbranch_scc1 L_end''')
        ZB = ZL
        WL = ZL + 24
        WMr = 96
        e('''
        v_mul_u32_u24 v6, 208, v2
        v_lshl_add_u32 v6, v3, 4, v6
        v_mov_b32 v7, 0
        v_lshlrev_b32 v9, 2, v3
        ''')
        for cg in range(2):
            for t in range(3):
                e(f'ds_read_b128 {vr(ZB + (cg*3+t)*4, 4)}, v6 offset:{F_ZC + cg*16*208 + t*64}')
        e(f'ds_read_b128 {vr(WL,4)}, v7 offset:{F_WL}')
        e(f'ds_read_b128 {vr(WL+4,4)}, v7 offset:{F_WL+16}')
        e(f'ds_read_b128 {vr(WMr,4)}, v7 offset:{F_WM}')
        e(f'ds_read_b128 {vr(WMr+4,4)}, v7 offset:{F_WM+16}')
        e(f'ds_read_b32 v104, v9 offset:{F_WM}')
        e(f'ds_read_b32 v105, v9 offset:{F_WM+16}')
        DA = 108
        n = 0
        for cg in range(2):
            for t in range(3):
                e(f's_waitcnt lgkmcnt({11 - n})')
                for ee in range(2):
                    D = DA + (cg * 2 + ee) * 4
                    e(f'{MF} {vr(D,4)}, {vr(ZB + (cg*3+t)*4, 4)}, {vr(WVO + (ee*3+t)*4, 4)}, ' + ('0' if t == 0 else vr(D, 4)))
                n += 1
        e(f'''
        s_waitcnt lgkmcnt(0)
        v_max3_f32 v{TM}, v{WMr}, v{WMr+1}, v{WMr+2}
        v_max3_f32 v{TM+1}, v{WMr+3}, v{WMr+4}, v{WMr+5}
        v_max3_f32 v{TM}, v{TM}, v{WMr+6}, v{WMr+7}
        v_max_f32 v{TM}, v{TM}, v{TM+1}
        ''')
        for v in range(8): e(f'v_sub_f32 v{WMr+v}, v{WMr+v}, v{TM}')
        e(f'v_sub_f32 v104, v104, v{TM}')
        e(f'v_sub_f32 v105, v105, v{TM}')
        for v in range(8): e(f'v_exp_f32 v{WMr+v}, v{WMr+v}')
        e('v_exp_f32 v104, v104')
        e('v_exp_f32 v105, v105')
        e(f'v_mul_f32 v{TM+1}, v{WL}, v{WMr}')
        for v in range(1, 8): e(f'v_fmac_f32 v{TM+1}, v{WL+v}, v{WMr+v}')
        e(f'v_rcp_f32 v{TM+1}, v{TM+1}')
        e(f'v_mul_f32 v104, v104, v{TM+1}')
        e(f'v_mul_f32 v105, v105, v{TM+1}')
        for ee in range(2):
            for cg in range(2):
                D = DA + (cg * 2 + ee) * 4
                e(f'v_add_f32 v{D}, v{D}, v{D+1}')
                e(f'v_add_f32 v{D+2}, v{D+2}, v{D+3}')
        for ee in range(2):
            for cg in range(2):
                D = DA + (cg * 2 + ee) * 4
                e(f'v_add_f32 v{D}, v{D}, v{D+2}')
        for ee in range(2):
            e(f'v_mul_f32 v{TM+4+ee}, v{DA+ee*4}, v104')
            e(f'v_fmac_f32 v{TM+4+ee}, v{DA+(2+ee)*4}, v105')
        for ee in range(2):
            e(f'v_mov_b32 v{TM+6+ee}, v{TM+4+ee}')
        for ee in range(2):
            e(f'v_permlane16_swap_b32 v{TM+4+ee}, v{TM+6+ee}')
        for ee in range(2):
            e(f'v_add_f32 v{TM+4+ee}, v{TM+4+ee}, v{TM+6+ee}')
        for ee in range(2):
            e(f'v_mov_b32 v{TM+6+ee}, v{TM+4+ee}')
        for ee in range(2):
            e(f'v_permlane32_swap_b32 v{TM+4+ee}, v{TM+6+ee}')
        for ee in range(2):
            e(f'v_add_f32 v{TM+4+ee}, v{TM+4+ee}, v{TM+6+ee}')
        for ee in range(2):
            e(f'v_mov_b32_dpp v{TM+6+ee}, v{TM+4+ee} quad_perm:[1,1,3,3] row_mask:0xf bank_mask:0xf')
        for ee in range(2):
            e(f'v_cvt_pk_bf16_f32 v{TM+8+ee}, v{TM+4+ee}, v{TM+6+ee}')
        e(f'''
        s_mul_i32 s33, s46, 384
        s_lshl_b32 s34, s28, 6
        s_add_u32 s33, s33, s34
        v_lshl_add_u32 v4, v2, 1, s33
        s_and_b32 exec_lo, s56, 0x5555
        s_mov_b32 exec_hi, 0
        ''')
        self.nodry(f'''
        global_atomic_pk_add_bf16 v4, v{TM+8}, s[22:23]
        global_atomic_pk_add_bf16 v4, v{TM+9}, s[22:23] offset:32
        ''')
        self.stamp(5)
        if self.opt.get('fdry', 1): self.br('''
        s_cmp_lg_u32 s58, 0
        s_cbranch_scc1 L_fin_dry_ret''')
        self.br('s_branch L_end')

    def role_main(self):
        a, e = self.a, self.e
        lh = self.lab('helper')
        self.br(f'''
        s_cmp_eq_u32 s28, 7
        s_cbranch_scc1 {lh}''')
        NT = ' nt'
        F1, T0, T1, QK = 24, 48, 72, 96
        ONES = 20
        S1, S0, S0b = 120, 124, 128
        SS0, SS1 = 132, 136
        AC = 140
        RS, MR = 148, 156
        L1, L0, L0b = 164, 168, 172
        TM = 176
        C5, SQ, MX0 = 188, 189, 190
        DV = 191
        M1 = 197
        M0E = 244
        QA = 252
        QL, QT = 200, 216
        XQ = [120 + 4 * i for i in range(7)] + [200 + 4 * i for i in range(11)]
        e(f'''
        s_lshr_b32 s31, s30, 1
        s_and_b32 s32, s30, 1
        s_mul_i32 s32, s32, 56
        s_lshl_b32 s33, s28, 3
        s_add_u32 s32, s32, s33
        s_mul_i32 s33, s31, 112
        s_add_u32 s33, s33, s32
        s_mul_i32 s33, s33, 384
        s_add_u32 s34, s12, s33
        s_addc_u32 s35, s13, 0
        s_mul_i32 s33, s31, 448
        s_lshl_b32 s32, s32, 1
        s_add_u32 s33, s33, s32
        s_mul_i32 s33, s33, 384
        s_add_u32 s36, s10, s33
        s_addc_u32 s37, s11, 0
        s_add_u32 s38, s36, 86016
        s_addc_u32 s39, s37, 0
        s_mul_i32 s43, s28, {XREG}
        s_add_u32 s43, s43, {L_X}
        s_movk_i32 s44, 2731
        ''')
        for jj in range(3):
            u, p = TM + 4 * jj, TM + 4 * jj + 1
            e(f'''
            v_add_u32 v{u}, {64*jj}, v1
            v_mul_u32_u24 v{p}, s44, v{u}
            v_lshrrev_b32 v{p}, 16, v{p}
            v_mul_u32_u24 v{u+2}, 24, v{p}
            v_sub_u32 v{u}, v{u}, v{u+2}
            v_bfe_u32 v{u+2}, v{p}, 1, 1
            v_bfe_u32 v{u+3}, v{p}, 2, 1
            v_lshl_add_u32 v{u+2}, v{u+2}, 2, v{u+3}
            v_xor_b32 v{u+2}, v{u+2}, v{u}
            v_mul_u32_u24 v{u+3}, 384, v{p}
            v_lshl_add_u32 v{4+jj}, v{u+2}, 4, v{u+3}
            s_add_u32 m0, s43, {jj*1024}
            global_load_lds_dwordx4 v{4+jj}, s[34:35]{NT}
            ''')
        for jj in range(3):
            u, p = TM + 4 * jj, TM + 4 * jj + 1
            e(f'''
            v_bfe_u32 v{u+2}, v{p}, 1, 2
            v_lshlrev_b32 v{u+2}, 1, v{u+2}
            v_xor_b32 v{u+2}, v{u+2}, v{u}
            v_lshl_add_u32 v{DV+jj}, v{u+2}, 4, v{u+3}
            v_xor_b32 v{DV+3+jj}, 16, v{DV+jj}
            ''')
        def fine_group(gidx):
            t, hf = gidx >> 1, gidx & 1
            sp = (36, 38)[t]
            for jj in range(3):
                e(f's_add_u32 m0, s43, {3072 + t*6144 + jj*1024}')
                if hf == 0:
                    e(f'global_load_lds_dwordx4 v{DV+jj}, s[{sp}:{sp+1}]{NT}')
                else:
                    e(f'global_load_lds_dwordx4 v{DV+3+jj}, s[{sp}:{sp+1}] offset:3072{NT}')
        WUP = self.opt.get('wup', 3)
        for gi in range(WUP): fine_group(gi)
        self.stamp(1)
        e(f'''
        v_and_b32 v{TM}, 1, v3
        v_lshlrev_b32 v{TM}, 1, v{TM}
        v_lshrrev_b32 v{TM+1}, 1, v3
        v_or_b32 v{TM}, v{TM}, v{TM+1}
        v_bfe_u32 v{TM+1}, v2, 1, 2
        v_lshlrev_b32 v{TM+1}, 1, v{TM+1}
        v_lshrrev_b32 v{TM+2}, 3, v2
        v_or_b32 v{TM+1}, v{TM+1}, v{TM+2}
        v_xor_b32 v{TM+1}, v{TM+1}, v{TM}
        v_mul_u32_u24 v{TM+3}, 384, v2
        v_add_u32 v{TM+3}, s43, v{TM+3}
        v_lshl_add_u32 v13, v{TM+1}, 4, v{TM+3}
        v_xor_b32 v{TM+1}, 4, v{TM+1}
        v_lshl_add_u32 v14, v{TM+1}, 4, v{TM+3}
        v_bfe_u32 v{TM+1}, v2, 2, 1
        v_lshlrev_b32 v{TM+1}, 2, v{TM+1}
        v_lshrrev_b32 v{TM+2}, 3, v2
        v_or_b32 v{TM+1}, v{TM+1}, v{TM+2}
        v_xor_b32 v{TM+1}, v{TM+1}, v{TM}
        v_lshrrev_b32 v{TM+2}, 1, v2
        v_mul_u32_u24 v{TM+2}, 384, v{TM+2}
        v_add_u32 v{TM+2}, s43, v{TM+2}
        v_lshl_add_u32 v16, v{TM+1}, 4, v{TM+2}
        v_xor_b32 v{TM+1}, 4, v{TM+1}
        v_lshl_add_u32 v15, v{TM+1}, 4, v{TM+2}
        v_mov_b32 v17, 1.0
        v_lshlrev_b32 v18, 4, v1
        v_lshlrev_b32 v19, 5, v2
        v_mov_b32 v20, 0x3f803f80
        v_mov_b32 v21, 0x3f803f80
        v_mov_b32 v22, 0x3f803f80
        v_mov_b32 v23, 0x3f803f80
        ''')
        QRA = 199
        e(f'''
        v_mul_u32_u24 v{QRA}, 400, v2
        v_lshl_add_u32 v{QRA}, v{TM}, 4, v{QRA}
        ''')
        for i in range(8): e(f'v_mov_b32 v{AC+i}, 0')
        A0, A1, A2, A3 = 4, 5, 6, 7
        C0, C1, C2, C3, C4 = 8, 9, 10, 11, 12
        e(f'''
        v_bfe_u32 v{TM}, v1, 2, 4
        v_bfe_u32 v{TM+1}, v{TM}, 1, 2
        v_lshlrev_b32 v{TM+1}, 1, v{TM+1}
        v_lshrrev_b32 v{TM+2}, 3, v{TM}
        v_or_b32 v{TM+1}, v{TM+1}, v{TM+2}
        v_bfe_u32 v{TM+2}, v1, 1, 1
        s_and_b32 s44, s28, 1
        s_lshl_b32 s44, s44, 2
        v_or_b32 v{TM+2}, s44, v{TM+2}
        v_xor_b32 v{TM+1}, v{TM+1}, v{TM+2}
        v_mul_u32_u24 v{TM+3}, 384, v{TM}
        v_and_b32 v{TM+4}, 1, v1
        v_lshl_add_u32 v{TM+3}, v{TM+4}, 3, v{TM+3}
        s_lshr_b32 s45, s28, 1
        s_lshl_b32 s45, s45, 7
        s_add_u32 s45, s45, {L_X}
        v_add_u32 v{TM+3}, s45, v{TM+3}
        v_lshl_add_u32 v{A0}, v{TM+1}, 4, v{TM+3}
        v_xor_b32 v{TM+1}, 2, v{TM+1}
        v_lshl_add_u32 v{A1}, v{TM+1}, 4, v{TM+3}
        v_add_u32 v{A2}, {4*XREG}, v{A0}
        v_add_u32 v{A3}, {4*XREG}, v{A1}
        v_and_b32 v{TM}, 1, v3
        v_lshlrev_b32 v{TM}, 2, v{TM}
        v_lshrrev_b32 v{TM+1}, 1, v3
        v_or_b32 v{TM}, v{TM}, v{TM+1}
        v_xor_b32 v{TM}, v{TM}, v{TM+2}
        v_bfe_u32 v{TM+1}, v1, 2, 1
        v_lshl_add_u32 v{TM+1}, v3, 1, v{TM+1}
        v_mul_u32_u24 v{TM+1}, 384, v{TM+1}
        v_lshl_add_u32 v{TM+1}, v{TM+4}, 3, v{TM+1}
        v_add_u32 v{TM+1}, s45, v{TM+1}
        v_bfe_u32 v{TM+3}, v1, 3, 1
        v_mul_u32_u24 v{TM+3}, {XREG}, v{TM+3}
        v_add_u32 v{TM+3}, v{TM+3}, v{TM+1}
        v_lshl_add_u32 v{C0}, v{TM}, 4, v{TM+3}
        v_xor_b32 v{TM}, 2, v{TM}
        v_lshl_add_u32 v{C1}, v{TM}, 4, v{TM+3}
        v_add_u32 v{C2}, {4*XREG}, v{C0}
        v_add_u32 v{C3}, {4*XREG}, v{C1}
        v_lshl_add_u32 v{C5}, v{TM}, 4, v{TM+1}
        v_xor_b32 v{TM}, 2, v{TM}
        v_lshl_add_u32 v{C4}, v{TM}, 4, v{TM+1}
        v_add_u32 v{C4}, {6*XREG}, v{C4}
        v_add_u32 v{C5}, {6*XREG}, v{C5}
        ''')
        self.qblock_addr(QA)

        def aread(dst, ve, vo, off):
            for ks in range(6):
                e(f'ds_read_b128 {vr(dst+4*ks,4)}, v{ve if ks % 2 == 0 else vo} offset:{off + (ks >> 1)*128}')
        e(f's_mov_b32 s44, {f32bits(1.0/192)}')
        e(f's_mov_b32 s45, {f32bits(1e-5)}')
        def finalize(t, SD, SSD):
            for r in range(4): e(f'v_mul_f32 v{SD+r}, s44, v{SD+r}')
            for r in range(4): e(f'v_mul_f32 v{TM+r}, v{SD+r}, v{SD+r}')
            for r in range(4): e(f'v_fma_f32 v{SSD+r}, v{SSD+r}, s44, -v{TM+r}')
            for r in range(4): e(f'v_max_f32 v{SSD+r}, 0, v{SSD+r}')
            for r in range(4): e(f'v_add_f32 v{SSD+r}, s45, v{SSD+r}')
            for r in range(4): e(f'v_rsq_f32 v{RS+4*t+r}, v{SSD+r}')
            for r in range(4): e(f'v_sub_f32 v{M0E+4*t+r}, v{SD+r}, v{S1+r}')
            for r in range(4): e(f'v_mul_f32 v{MR+4*t+r}, v{SD+r}, v{RS+4*t+r}')
        def xissue(k):
            if k < 7:
                for ee in range(2):
                    base = (A0, A1)[ee] if k < 4 else (A2, A3)[ee]
                    uoff = (k if k < 4 else k - 4) * XREG
                    for tt in range(2):
                        e(f'ds_read_b64_tr_b16 {vr(XQ[k*2+ee] + tt*2, 2)}, v{base} offset:{uoff + 3072 + tt*6144}')
            else:
                aa = k - 7
                for ee in range(2):
                    for hh in range(2):
                        if aa == 0: base, off = (C0, C1)[ee], hh * 2 * XREG
                        elif hh == 0: base, off = (C2, C3)[ee], 0
                        else: base, off = (C4, C5)[ee], 0
                        e(f'ds_read_b64_tr_b16 {vr(XQ[k*2+ee] + hh*2, 2)}, v{base} offset:{off}')
        ac = AC + 2
        def stats_tail(SSD):
            e(f'''
            v_add_f32 v{ac}, v{ac}, v{ac+1}
            v_add_f32 v{ac+2}, v{ac+2}, v{ac+3}
            v_add_f32 v{ac}, v{ac}, v{AC}
            v_fma_f32 v{ac}, 2.0, v{ac+2}, v{ac}
            {MF4} {vr(SSD,4)}, v{ac}, v17, 0
            ''')
        def dots(TT):
            for i in range(24):
                e(f'v_dot2c_f32_bf16 v{ac+(i&1)}, v{TT+i}, v{TT+i}')
                e(f'v_dot2c_f32_bf16 v{ac+2+(i&1)}, v{TT+i}, v{F1+i}')
        SM1 = TM + 8
        e(f's_waitcnt vmcnt({3*WUP})')
        if WUP < 4: fine_group(WUP)
        aread(F1, 16, 15, 0)
        for ks in range(6):
            e(f's_waitcnt lgkmcnt({5-ks})')
            e(f'{MF} {vr(S1,4)}, {vr(F1+4*ks,4)}, {vr(ONES,4)}, ' + ('0' if ks == 0 else vr(S1, 4)))
        for r in range(F1, F1 + 24):
            e(f'v_dot2c_f32_bf16 v{AC+(r&1)}, v{r}, v{r}')
        e(f'v_add_f32 v{AC}, v{AC}, v{AC+1}')
        for r in range(4): e(f'v_mov_b32 v{L1+r}, v{S1+r}')
        for r in range(4): e(f'v_mul_f32 v{S1+r}, s44, v{S1+r}')
        e(f'v_mov_b32 v{M1}, v{S1}')
        e(f'v_mov_b32 v{M1+1}, v{S1+2}')
        if WUP == 1:
            e('s_waitcnt vmcnt(3)')
            fine_group(2)
            e('s_waitcnt vmcnt(3)')
            fine_group(3)
        elif WUP == 2:
            e('s_waitcnt vmcnt(6)')
            fine_group(3)
            e('s_waitcnt vmcnt(6)')
        elif WUP == 3:
            e('s_waitcnt vmcnt(6)')
        else:
            e('s_waitcnt vmcnt(6)')
        QPOS = self.opt.get('qpos', 0)
        def qissue_all():
            self.qblock_issue(QA, QL)
            l6 = self.lab('w6q')
            self.br(f'''
            s_cmp_lg_u32 s28, 6
            s_cbranch_scc1 {l6}''')
            self.qblock_addr(184, '7')
            self.qblock_issue(184, 228)
            a.label(l6)
        def wait_minus(n):
            l6, l6b = self.lab('w6w'), self.lab('w6w')
            self.br(f'''
            s_cmp_lg_u32 s28, 6
            s_cbranch_scc1 {l6}''')
            e(f's_waitcnt vmcnt({8 + n})')
            self.br(f's_branch {l6b}')
            a.label(l6)
            e(f's_waitcnt vmcnt({4 + n})')
            a.label(l6b)
        if QPOS == 1: qissue_all()
        aread(T0, 13, 14, 3072)
        for ks in range(6):
            e(f's_waitcnt lgkmcnt({5-ks})')
            e(f'{MF} {vr(S0,4)}, {vr(T0+4*ks,4)}, {vr(ONES,4)}, ' + (vr(L1, 4) if ks == 0 else vr(S0, 4)))
        dots(T0)
        stats_tail(SS0)
        for i in range(4): e(f'v_mov_b32 v{ac+i}, 0')
        finalize(0, S0, SS0)
        self.stamp(2)
        if QPOS == 0:
            e('s_waitcnt vmcnt(3)')
            qissue_all()
        wait_minus(0)
        self.stamp(7)
        aread(T1, 13, 14, 3072 + 6144)
        for ks in range(6):
            e(f's_waitcnt lgkmcnt({5-ks})')
            e(f'{MF} {vr(S0b,4)}, {vr(T1+4*ks,4)}, {vr(ONES,4)}, ' + (vr(L1, 4) if ks == 0 else vr(S0b, 4)))
        dots(T1)
        stats_tail(SS1)
        finalize(1, S0b, SS1)
        self.stamp(8)
        self.qblock_finish(QA, QL, QT)
        l6 = self.lab('w6f')
        self.br(f'''
        s_cmp_lg_u32 s28, 6
        s_cbranch_scc1 {l6}''')
        self.qblock_finish(184, 228, QT, '7')
        a.label(l6)
        e('s_waitcnt lgkmcnt(0)')
        e('s_barrier')
        self.stamp(3)
        a.label('L_main_tail')
        e(f'v_lshlrev_b32 v{TM+1}, 4, v2')
        e(f'ds_read_b128 {vr(TM+4,4)}, v{TM+1} offset:{L_SQ}')
        for ks in range(6):
            e(f'ds_read_b128 {vr(QK+4*ks,4)}, v{QRA} offset:{L_QK + ks*64}')
        xl = []
        def xlist(k):
            out = []
            if k < 7:
                for ee in range(2):
                    base = (A0, A1)[ee] if k < 4 else (A2, A3)[ee]
                    uoff = (k if k < 4 else k - 4) * XREG
                    for tt in range(2):
                        out.append(f'ds_read_b64_tr_b16 {vr(XQ[k*2+ee] + tt*2, 2)}, v{base} offset:{uoff + 3072 + tt*6144}')
            else:
                aa = k - 7
                for ee in range(2):
                    for hh in range(2):
                        if aa == 0: base, off = (C0, C1)[ee], hh * 2 * XREG
                        elif hh == 0: base, off = (C2, C3)[ee], 0
                        else: base, off = (C4, C5)[ee], 0
                        out.append(f'ds_read_b64_tr_b16 {vr(XQ[k*2+ee] + hh*2, 2)}, v{base} offset:{off}')
            return out
        for k in range(9): xl += xlist(k)
        lsk, lj = self.lab('skipx'), self.lab('joinx')
        def logits(withx):
            xi = 0
            for ks in range(6):
                e(f's_waitcnt lgkmcnt({min(15, 5 - ks + xi)})')
                for (LD, TT) in ((L1, F1), (L0, T0), (L0b, T1)):
                    e(f'{MF} {vr(LD,4)}, {vr(TT+4*ks,4)}, {vr(QK+4*ks,4)}, ' + ('0' if ks == 0 else vr(LD, 4)))
                    if withx:
                        for _ in range(1):
                            e(xl[xi]); xi += 1
            assert (not withx) or xi == 18
        logits(True)
        e(f'''
        v_add_f32 v{TM+4}, v{TM+4}, v{TM+5}
        v_add_f32 v{TM+6}, v{TM+6}, v{TM+7}
        v_add_f32 v{SQ}, v{TM+4}, v{TM+6}
        ''')
        for x in range(8): e(f'v_mul_f32 v{MR+x}, v{MR+x}, v{SQ}')
        for LD in (L0, L0b):
            for r in range(4): e(f'v_add_f32 v{LD+r}, v{LD+r}, v{L1+r}')
        for t, LD in enumerate((L0, L0b)):
            for r in range(4):
                e(f'v_fma_f32 v{LD+r}, v{LD+r}, v{RS+4*t+r}, -v{MR+4*t+r}')
        e(f'''
        v_max3_f32 v{TM}, v{L0}, v{L0+1}, v{L0+2}
        v_max3_f32 v{TM+1}, v{L0+3}, v{L0b}, v{L0b+1}
        v_max3_f32 v{TM}, v{TM}, v{L0b+2}, v{L0b+3}
        v_max_f32 v{TM}, v{TM}, v{TM+1}
        v_mov_b32 v{TM+1}, v{TM}
        v_permlane16_swap_b32 v{TM}, v{TM+1}
        v_max_f32 v{TM}, v{TM}, v{TM+1}
        v_mov_b32 v{TM+1}, v{TM}
        v_permlane32_swap_b32 v{TM}, v{TM+1}
        v_max_f32 v{TM}, v{TM}, v{TM+1}
        s_lshl_b32 s46, s28, 2
        v_add_u32 v{TM+2}, s46, v19
        ds_write_b32 v{TM+2}, v{TM} offset:{L_MX}
        s_waitcnt lgkmcnt(0)
        ''')
        self.bar()
        e(f'''
        ds_read_b128 {vr(TM+4,4)}, v19 offset:{L_MX}
        ds_read_b128 {vr(TM+8,4)}, v19 offset:{L_MX+16}
        ''')
        for x in xl[18:31]: e(x)
        e('s_waitcnt lgkmcnt(13)')
        e(f'''
        v_max3_f32 v{TM}, v{TM+4}, v{TM+5}, v{TM+6}
        v_max3_f32 v{TM+1}, v{TM+7}, v{TM+8}, v{TM+9}
        v_max3_f32 v{TM}, v{TM}, v{TM+10}, v{TM+11}
        v_max_f32 v{TM}, v{TM}, v{TM+1}
        v_ceil_f32 v{TM}, v{TM}
        ''')
        for x in xl[31:]: e(x)
        self.stamp(4)
        P = [L0, L0 + 1, L0 + 2, L0 + 3, L0b, L0b + 1, L0b + 2, L0b + 3]
        for x in P: e(f'v_sub_f32 v{x}, v{x}, v{TM}')
        for x in P: e(f'v_exp_f32 v{x}, v{x}')
        W = TM + 4
        e(f'v_add_f32 v{TM}, v{P[0]}, v{P[1]}')
        e(f'v_add_f32 v{TM+1}, v{P[2]}, v{P[3]}')
        for x in range(4, 8, 2):
            e(f'v_add_f32 v{TM}, v{TM}, v{P[x]}')
            e(f'v_add_f32 v{TM+1}, v{TM+1}, v{P[x+1]}')
        for x in range(8): e(f'v_mul_f32 v{P[x]}, v{P[x]}, v{RS+x}')
        e(f'v_add_f32 v{TM}, v{TM}, v{TM+1}')
        for i in range(4): e(f'v_cvt_pk_bf16_f32 v{W+i}, v{P[2*i]}, v{P[2*i+1]}')
        e(f'{MF4} {vr(QK,4)}, v17, v{TM}, 0')
        e(f'''
        s_lshl_b32 s46, s28, 10
        v_add_u32 v{TM+3}, s46, v18
        ds_write_b128 v{TM+3}, {vr(W,4)} offset:{L_WF}
        v_add_f32 v{TM+8}, v{P[0]}, v{P[1]}
        v_add_f32 v{TM+9}, v{P[4]}, v{P[5]}
        v_add_f32 v{TM+10}, v{P[2]}, v{P[3]}
        v_add_f32 v{TM+11}, v{P[6]}, v{P[7]}
        v_add_f32 v{TM+8}, v{TM+8}, v{TM+9}
        v_add_f32 v{TM+10}, v{TM+10}, v{TM+11}
        v_cvt_pk_bf16_f32 v{TM+8}, v{TM+8}, v{TM+10}
        ''')
        for i in range(4):
            e(f'v_lshlrev_b32 v{P[2*i]}, 16, v{W+i}')
            e(f'v_and_b32 v{P[2*i+1]}, 0xffff0000, v{W+i}')
        e(f'''
        s_lshr_b32 s46, s28, 2
        s_lshl_b32 s46, s46, 10
        s_and_b32 s47, s28, 3
        s_lshl_b32 s47, s47, 2
        s_add_u32 s46, s46, s47
        v_add_u32 v{TM+3}, s46, v18
        ds_write_b32 v{TM+3}, v{TM+8} offset:{L_WC}
        v_lshlrev_b32 v{TM+9}, 16, v{TM+8}
        v_and_b32 v{TM+10}, 0xffff0000, v{TM+8}
        v_mul_f32 v{TM+1}, v{TM+9}, v{M1}
        v_mul_f32 v{TM+2}, v{TM+10}, v{M1+1}
        ''')
        for x in range(0, 8, 2):
            e(f'v_fmac_f32 v{TM+1}, v{P[x]}, v{M0E+x}')
            e(f'v_fmac_f32 v{TM+2}, v{P[x+1]}, v{M0E+x+1}')
        e(f'v_add_f32 v{TM+1}, v{TM+1}, v{TM+2}')
        e(f'{MF4} {vr(QK+4,4)}, v17, v{TM+1}, 0')
        e(f'''
        s_lshl_b32 s46, s28, 2
        v_add_u32 v{TM+3}, s46, v19
        ds_write_b32 v{TM+3}, v{QK} offset:{L_LS}
        ds_write_b32 v{TM+3}, v{QK+4} offset:{L_CO}
        s_waitcnt lgkmcnt(0)
        ''')
        self.bar()
        self.stamp(5)
        self.br('''
        s_cmp_ge_u32 s28, 6
        s_cbranch_scc1 L_w6_done''')
        lnf = self.lab('nf')
        self.br(f'''
        s_cmp_eq_u32 s54, 0
        s_cbranch_scc1 {lnf}''')
        e(f'''
        s_and_b32 s33, s53, 1
        s_mul_i32 s33, s33, 6
        s_add_u32 s33, s33, s28
        s_mul_i32 s33, s33, 6144
        s_add_u32 s33, s33, {WS_WVO}
        v_lshl_add_u32 v172, v1, 4, s33
        v_add_u32 v173, 3072, v172
        ''')
        for qd in range(6):
            e(f'global_load_dwordx4 {vr(148+4*qd,4)}, v{172 if qd < 3 else 173}, s[26:27] offset:{(qd%3)*1024} sc1')
        a.label(lnf)
        WBL = [24 + 4 * i for i in range(6)] + [72, 76, 80]
        ACC, CW, O = 84, 104, 112
        for k in range(9):
            e(f'ds_read_b128 {vr(WBL[k],4)}, v18 offset:{(L_WF + k*1024) if k < 7 else (L_WC + (k-7)*1024)}')
        e(f'ds_read_b128 {vr(CW,4)}, v19 offset:{L_CO}')
        e(f'ds_read_b128 {vr(CW+4,4)}, v19 offset:{L_CO+16}')
        e(f'''
        v_mul_u32_u24 v{TM}, {2*ZREG}, v2
        v_and_b32 v{TM+1}, 1, v3
        v_lshlrev_b32 v{TM+1}, 5, v{TM+1}
        v_lshrrev_b32 v{TM+2}, 1, v3
        v_lshl_add_u32 v{TM+1}, v{TM+2}, 4, v{TM+1}
        v_add_u32 v{TM}, v{TM}, v{TM+1}
        s_mul_i32 s46, s30, 192
        s_add_u32 s46, s46, {WS_Z}
        s_cmp_ge_u32 s28, 3
        s_cselect_b32 s47, {ZREG - 192}, 0
        s_add_u32 s46, s46, s47
        s_lshl_b32 s47, s28, 6
        s_add_u32 s46, s46, s47
        v_add_u32 v{TM}, s46, v{TM}
        ''')
        for k in range(9):
            e(f's_waitcnt lgkmcnt({10-k})')
            for ee in range(2):
                e(f'{MF} {vr(ACC+4*ee,4)}, {vr(XQ[k*2+ee],4)}, {vr(WBL[k],4)}, ' + ('0' if k == 0 else vr(ACC + 4 * ee, 4)))
        e(f'''
        s_waitcnt lgkmcnt(0)
        v_add_f32 v{CW}, v{CW}, v{CW+1}
        v_add_f32 v{CW+2}, v{CW+2}, v{CW+3}
        v_add_f32 v{CW+4}, v{CW+4}, v{CW+5}
        v_add_f32 v{CW+6}, v{CW+6}, v{CW+7}
        v_add_f32 v{CW}, v{CW}, v{CW+2}
        v_add_f32 v{CW+4}, v{CW+4}, v{CW+6}
        v_add_f32 v{CW}, v{CW}, v{CW+4}
        ''')
        for x in range(8): e(f'v_sub_f32 v{ACC+x}, v{ACC+x}, v{CW}')
        e(f'''
        v_cvt_pk_bf16_f32 v{O}, v{ACC}, v{ACC+1}
        v_cvt_pk_bf16_f32 v{O+1}, v{ACC+2}, v{ACC+3}
        v_cvt_pk_bf16_f32 v{O+2}, v{ACC+4}, v{ACC+5}
        v_cvt_pk_bf16_f32 v{O+3}, v{ACC+6}, v{ACC+7}
        v_permlane16_swap_b32 v{O}, v{O+2}
        v_permlane16_swap_b32 v{O+1}, v{O+3}
        ''')
        self.nodry(f'global_store_dwordx4 v{TM}, {vr(O,4)}, s[26:27] sc1')
        if self.opt.get('mlafter', 0): self.bar()
        self.stamp(6)
        a.label('L_w6_done')
        self.br('''
        s_cmp_lg_u32 s54, 0
        s_cbranch_scc1 L_fin_tail''')
        self.br('s_branch L_end')

        a.label(lh)
        e(f'''
        v_lshlrev_b32 v18, 4, v1
        v_lshlrev_b32 v19, 5, v2
        v_mov_b32 v4, 0
        v_mov_b32 v5, 0xff800000
        ds_write_b32 v18, v4 offset:{L_WC + 1024 + 12}
        ds_write_b32 v19, v5 offset:{L_MX + 28}
        ds_write_b32 v19, v4 offset:{L_LS + 28}
        ds_write_b32 v19, v4 offset:{L_CO + 28}
        ''')
        if self.opt.get('cpf', 0):
            lcp = self.lab('cpf')
            self.br(f'''
            s_cmp_ge_u32 s30, {self.opt.get('cpf')}
            s_cbranch_scc1 {lcp}''')
            a.raw('    s_getpc_b64 s[50:51]')
            a.raw('L_pc_here:')
            a.raw('    s_sub_u32 s50, s50, (L_pc_here - %s)' % KNAME)
            a.raw('    s_subb_u32 s51, s51, 0')
            e('v_lshlrev_b32 v12, 4, v1')
            ncode = self.opt.get('cpfkb', 12)
            for i in range(ncode):
                e(f'global_load_dwordx4 v[64:67], v12, s[50:51]')
                e('v_add_u32 v12, 1024, v12')
            a.label(lcp)
        e(f'''
        v_mov_b32 v56, -1
        v_mov_b32 v57, -1
        v_mov_b32 v58, -1
        v_mov_b32 v59, -1
        v_min_u32 v12, 47, v1
        v_mul_u32_u24 v13, 43, v12
        v_lshrrev_b32 v13, 9, v13
        v_mul_u32_u24 v14, 12, v13
        v_sub_u32 v14, v12, v14
        v_mul_u32_u24 v13, {ZREG}, v13
        v_lshl_add_u32 v13, v14, 4, v13
        s_mul_i32 s44, s30, 192
        s_add_u32 s44, s44, {WS_Z}
        v_add_u32 v13, s44, v13
        ''')
        for i in range(8):
            e('global_store_dwordx4 v13, v[56:59], s[26:27] sc1')
            if i < 7: e(f'v_add_u32 v13, {4*ZREG}, v13')
        loi = self.lab('oi')
        self.br(f'''
        s_cmp_ge_u32 s30, 16
        s_cbranch_scc1 {loi}''')
        e('''
        s_mul_i32 s44, s30, 384
        v_lshl_add_u32 v13, v1, 4, s44
        s_mov_b32 exec_lo, 0xffffff
        s_mov_b32 exec_hi, 0
        global_load_dwordx4 v[60:63], v13, s[8:9]
        s_waitcnt vmcnt(0)
        global_store_dwordx4 v13, v[60:63], s[22:23] sc1
        s_mov_b64 exec, -1
        ''')
        a.label(loi)
        if self.opt.get('dry', 0):
            self.dry_call('L_main_tail', 'L_main_dry_ret')
        self.stamp(2)
        self.poll_nonce0(52, 12)
        e(f'''
        v_mov_b32 v12, {L_NON}
        ds_write_b32 v12, v52
        ''')
        lnf = self.lab('hnf')
        self.br(f'''
        s_cmp_eq_u32 s54, 0
        s_cbranch_scc1 {lnf}''')
        if self.opt.get('fdry', 1):
            self.dry_call('L_fin_tail', 'L_fin_dry_ret')
        e(f'''
        s_and_b32 s33, s53, 1
        s_mul_i32 s33, s33, 6
        v_min_u32 v13, 5, v1
        v_add_u32 v13, s33, v13
        v_lshlrev_b32 v13, 7, v13
        v_add_u32 v13, {WS_WF}, v13
        s_mov_b32 s42, 0
        ''')
        lp, ld = self.lab('poll'), self.lab('polld')
        a.label(lp)
        e('''
        global_load_dword v14, v13, s[26:27] sc1
        s_add_u32 s42, s42, 1
        s_waitcnt vmcnt(0)
        v_cmp_ne_u32 vcc, v14, v52
        ''')
        self.br(f's_cbranch_vccz {ld}')
        e('s_sleep 4')
        e('s_cmp_lt_u32 s42, 0x40000')
        self.br(f's_cbranch_scc1 {lp}')
        a.label(ld)
        a.label(lnf)
        e('s_waitcnt lgkmcnt(0)')
        self.stamp(4)
        e('s_barrier')
        self.stamp(3)
        e(f'''
        s_barrier
        s_barrier
        ds_read_b128 v[24:27], v19 offset:{L_MX}
        ds_read_b128 v[28:31], v19 offset:{L_MX+16}
        ds_read_b128 v[32:35], v19 offset:{L_LS}
        ds_read_b128 v[36:39], v19 offset:{L_LS+16}
        s_lshl_b32 s44, s30, 4
        s_add_u32 s44, s44, {WS_ML}
        v_lshlrev_b32 v8, 1, v2
        v_add_u32 v8, v8, v3
        v_mul_u32_u24 v8, 3584, v8
        v_add_u32 v8, s44, v8
        v_mov_b32 v6, v52
        v_mov_b32 v7, v52
        s_waitcnt lgkmcnt(0)
        v_max3_f32 v4, v24, v25, v26
        v_max3_f32 v5, v27, v28, v29
        v_max3_f32 v4, v4, v30, v31
        v_max_f32 v4, v4, v5
        v_ceil_f32 v4, v4
        v_add_f32 v32, v32, v33
        v_add_f32 v34, v34, v35
        v_add_f32 v36, v36, v37
        v_add_f32 v38, v38, v39
        v_add_f32 v32, v32, v34
        v_add_f32 v36, v36, v38
        v_add_f32 v5, v32, v36
        ''')
        if self.opt.get('mlafter', 0): e('s_barrier')
        e('''
        s_mov_b32 exec_lo, -1
        s_mov_b32 exec_hi, 0
        global_store_dwordx4 v8, v[4:7], s[26:27] sc1
        s_mov_b64 exec, -1
        ''')
        self.stamp(6)
        self.br('''
        s_cmp_lg_u32 s54, 0
        s_cbranch_scc1 L_fin_tail''')
        self.br('s_branch L_end')


HEADER = open('standalone__detection_seg_dino__vision.s.ref').read().split('; Override')[0]

def kd(name, vgpr=256, sgpr=102):
    return '''.amdhsa_kernel %s
  .amdhsa_next_free_vgpr %d
  .amdhsa_next_free_sgpr %d
  .amdhsa_accum_offset %d
  .amdhsa_group_segment_fixed_size 0
  .amdhsa_kernarg_size 80
  .amdhsa_user_sgpr_count 2
  .amdhsa_user_sgpr_kernarg_segment_ptr 1
  .amdhsa_system_sgpr_workgroup_id_x 1
.end_amdhsa_kernel
''' % (name, vgpr, sgpr, (vgpr + 3) // 4 * 4)

def build(stamps=False, opt=None):
    out = HEADER
    out += '; @launch grid=(256,1,1) block=(512,1,1) lds=%d\n' % max(LDS_TOTAL, L_X + 7 * XREG)
    out += '.amdgcn_target "amdgcn-amd-amdhsa--gfx950"\n.text\n'
    G = Gen(stamps, opt)
    a = G.a
    n = KNAME
    a.raw('.globl %s\n.p2align 8\n.type %s,@function\n%s:' % (n, n, n))
    G.br('''
    s_cmp_ge_u32 s2, 256
    s_cbranch_scc1 L_exit''')
    G.stamp_init()
    G.prologue()
    G.stamp(0)
    G.e('s_and_b32 s31, s2, 7')
    G.br('''
    s_cmp_eq_u32 s31, 0
    s_cbranch_scc1 L_helpers''')
    G.e('''
    s_lshr_b32 s53, s2, 3
    s_sub_u32 s30, s2, s53
    s_sub_u32 s30, s30, 1
    s_mul_i32 s32, s53, 37
    s_lshr_b32 s32, s32, 8
    s_mul_i32 s32, s32, 7
    s_sub_u32 s32, s53, s32
    s_add_u32 s32, s32, 1
    s_cmp_eq_u32 s32, s31
    s_cselect_b32 s54, 1, 0
    ''')
    G.role_main()
    G.role_final(False)
    a.label('L_helpers')
    G.e('s_lshr_b32 s30, s2, 3')
    G.br('''
    s_cmp_ge_u32 s30, 24
    s_cbranch_scc1 L_end''')
    G.br('''
    s_cmp_ge_u32 s30, 12
    s_cbranch_scc1 L_role_wvo''')
    G.role_qk()
    G.br('s_branch L_end')
    a.label('L_role_wvo')
    G.e('s_sub_u32 s30, s30, 12')
    G.role_wvo()
    a.label('L_end')
    G.stamp_flush()
    a.label('L_exit')
    G.e('s_endpgm')
    out += a.text()
    out += '.section .rodata,"a"\n.p2align 6\n' + kd(n)
    return out

if __name__ == '__main__':
    ap = argparse.ArgumentParser()
    ap.add_argument('--stamps', action='store_true')
    ap.add_argument('--opt', default='')
    ap.add_argument('-o', default='standalone__detection_seg_dino__vision.s')
    args = ap.parse_args()
    OPT = {}
    for kv in args.opt.split(','):
        if kv:
            k, v = kv.split('='); OPT[k] = int(v)
    s = build(args.stamps, OPT)
    open(args.o, 'w').write(s)
    print('wrote', args.o, len(s), 'bytes')
```

```python
import sys, argparse, struct
from asmdsl import Asm

KNAME = 'standalone__detection_seg_dino__vision_kernel'

WS_QK = 0
WS_ML = 32768
WS_Z = 163840
ZREG = 224 * 192
WS_WVO = 0x200000
WS_WF = 0x220000

XREG = 15392
L_QK = 0
L_WF = 6400
L_WC = L_WF + 7168
L_SQ = L_WC + 2048
L_MX = L_SQ + 256
L_LS = L_MX + 512
L_CO = L_LS + 512
L_NON = 17408
L_X = 17664
F_ZC = L_X
F_SCT = L_X + 6656
F_WM = L_X + 7680
F_WL = L_X + 7712
H_RED = 0
H_ZC = 0
H_SCT = 6656
H_WM = 7680
H_WL = 7712
H_NON = 12288
H_Q = 12544
H_WK = 18688
H_WQ = 24832
H_WV = 12544
H_WO = 49408
LDS_TOTAL = 61696

QSCALE = (192.0 ** -0.5) * 1.4426950408889634

def f32bits(x):
    return '0x%08x' % struct.unpack('<I', struct.pack('<f', x))[0]

def vr(a, n):
    return 'v[%d:%d]' % (a, a + n - 1)

MF = 'v_mfma_f32_16x16x32_bf16'
MF4 = 'v_mfma_f32_16x16x4_f32'

class Gen:
    def __init__(self, stamps=False, opt=None):
        self.a = Asm()
        self.stamps = stamps
        self.opt = opt or {}
        self.uid = 0

    def lab(self, base):
        self.uid += 1
        return 'L_%s_%d' % (base, self.uid)

    def e(self, text):
        self.a.emit(text)

    def br(self, text):
        for l in text.strip().split('\n'):
            self.a.branch(l.strip())

    def prologue(self):
        self.e('''
        s_load_dwordx16 s[8:23], s[0:1], 0
        s_load_dwordx4 s[24:27], s[0:1], 64
        v_and_b32 v1, 63, v0
        v_lshrrev_b32 v4, 6, v0
        v_and_b32 v2, 15, v1
        v_readfirstlane_b32 s28, v4
        v_lshrrev_b32 v3, 4, v1
        s_mov_b32 s58, 0
        s_mov_b64 s[56:57], -1
        s_waitcnt lgkmcnt(0)
        ''')

    def stamp(self, idx):
        if not self.stamps: return
        self.e('s_memrealtime s[%d:%d]' % (60 + 2 * idx, 61 + 2 * idx))
        self.e('s_waitcnt lgkmcnt(0)')

    def stamp_init(self):
        if not self.stamps: return
        for i in range(24):
            self.e('s_mov_b32 s%d, 0' % (60 + i))

    def stamp_flush(self):
        if not self.stamps: return
        self.e('''
        s_lshl_b32 s92, s2, 3
        s_add_u32 s92, s92, s28
        s_lshl_b32 s92, s92, 7
        s_add_u32 s92, s92, %d
        s_mov_b64 exec, 1
        v_mov_b32 v4, s92
        ''' % 0x1000000)
        for i in range(12):
            self.e('v_mov_b32 v6, s%d' % (60 + 2 * i))
            self.e('v_mov_b32 v7, s%d' % (61 + 2 * i))
            self.e('global_store_dwordx2 v4, v[6:7], s[26:27] offset:%d' % (i * 8))
            self.e('s_nop 1')

    def setexec(self, mask):
        lo, hi = mask & 0xffffffff, mask >> 32
        if mask == (1 << 64) - 1:
            self.e('s_mov_b64 exec, -1')
        else:
            self.e('s_mov_b32 exec_lo, 0x%x' % lo)
            self.e('s_mov_b32 exec_hi, 0x%x' % hi)

    def bar(self):
        l = self.lab('bar')
        self.a.branch('s_cmp_lg_u32 s58, 0')
        self.a.branch(f's_cbranch_scc1 {l}')
        self.a.raw('    s_barrier')
        self.a.raw(l + ':')

    def nodry(self, text):
        l = self.lab('nd')
        self.a.branch('s_cmp_lg_u32 s58, 0')
        self.a.branch(f's_cbranch_scc1 {l}')
        self.e(text)
        self.a.label(l)

    def dry_call(self, target, ret, mode=1):
        self.e(f'''
        s_mov_b32 s59, s28
        s_mov_b32 s28, 0
        s_mov_b32 s58, {mode}
        s_mov_b64 s[56:57], 0
        s_mov_b64 exec, 0
        ''')
        self.br(f's_branch {target}')
        self.a.label(ret)
        self.e('''
        s_mov_b32 s28, s59
        s_mov_b32 s58, 0
        s_mov_b64 s[56:57], -1
        s_mov_b64 exec, -1
        ''')

    def poll_dbg(self, byte_off, ndw, vt, sleep):
        lp, ld = self.lab('poll'), self.lab('polld')
        self.e(f'''
        v_lshlrev_b32 v{vt}, 2, v1
        v_mov_b32 v{vt+1}, 0x01010101
        s_mov_b32 s42, 0
        ''')
        self.setexec((1 << ndw) - 1)
        self.a.label(lp)
        self.e(f'''
        global_load_dword v{vt+2}, v{vt}, s[24:25] offset:{byte_off} sc1
        s_add_u32 s42, s42, 1
        s_waitcnt vmcnt(0)
        v_cmp_ne_u32 vcc, v{vt+2}, v{vt+1}
        ''')
        self.br(f's_cbranch_vccz {ld}')
        self.e(f's_sleep {sleep}')
        self.e('s_cmp_lt_u32 s42, 0x40000')
        self.br(f's_cbranch_scc1 {lp}')
        self.a.label(ld)
        self.e('s_mov_b64 exec, -1')

    def poll_nonce0(self, vdst, vt):
        lp, ld = self.lab('poll'), self.lab('polld')
        self.e(f'''
        v_mov_b32 v{vt}, 0
        s_mov_b32 s42, 0
        ''')
        self.a.label(lp)
        self.e(f'''
        global_load_dword v{vdst}, v{vt}, s[24:25] sc1
        s_add_u32 s42, s42, 1
        s_waitcnt vmcnt(0)
        v_cmp_eq_u32 vcc, 0, v{vdst}
        ''')
        self.br(f's_cbranch_vccz {ld}')
        self.e('s_sleep 2')
        self.e('s_cmp_lt_u32 s42, 0x40000')
        self.br(f's_cbranch_scc1 {lp}')
        self.a.label(ld)

    def role_wvo(self):
        a, e = self.a, self.e
        WO, AV, DD = 24, 72, 96
        e(f'''
        s_cmp_ge_u32 s30, 6
        s_cselect_b32 s31, 1, 0
        s_mul_i32 s32, s31, 6
        s_sub_u32 s32, s30, s32
        ''')
        lw, lw2 = self.lab('wvo_a'), self.lab('wvo_b')
        self.br(f'''
        s_cmp_ge_u32 s28, 6
        s_cbranch_scc1 {lw}''')
        e(f'''
        s_mul_i32 s33, s28, 6144
        s_mul_i32 s34, s31, 36864
        s_add_u32 s34, s34, s33
        v_lshl_add_u32 v9, v1, 4, s34
        s_add_u32 s34, s33, {H_WV}
        ''')
        for i in range(6):
            e(f's_add_u32 m0, s34, {i*1024}')
            if i: e('v_add_u32 v9, 1024, v9')
            e('global_load_lds_dwordx4 v9, s[18:19]')
        self.br(f's_branch {lw2}')
        a.label(lw)
        e(f'''
        s_sub_u32 s33, s28, 6
        v_lshrrev_b32 v9, 2, v1
        v_mul_u32_u24 v9, 384, v9
        v_and_b32 v8, 3, v1
        v_lshl_add_u32 v9, v8, 4, v9
        s_mul_i32 s34, s33, 36864
        s_lshl_b32 s35, s32, 6
        s_add_u32 s34, s34, s35
        v_add_u32 v9, s34, v9
        s_mul_i32 s34, s33, 6144
        s_add_u32 s34, s34, {H_WO}
        ''')
        for i in range(6):
            e(f's_add_u32 m0, s34, {i*1024}')
            if i: e('v_add_u32 v9, 6144, v9')
            e('global_load_lds_dwordx4 v9, s[20:21]')
        a.label(lw2)
        e('s_waitcnt vmcnt(0)')
        e('s_barrier')
        ldone = self.lab('wvo_d')
        self.br(f'''
        s_cmp_ge_u32 s28, 6
        s_cbranch_scc1 {ldone}''')
        e(f'''
        v_bfe_u32 v6, v1, 2, 2
        v_lshl_add_u32 v6, v3, 3, v6
        v_lshlrev_b32 v6, 6, v6
        v_and_b32 v7, 3, v1
        v_lshl_add_u32 v6, v7, 3, v6
        v_mul_u32_u24 v7, 384, v2
        v_lshl_add_u32 v7, v3, 4, v7
        s_mul_i32 s33, s28, 6144
        s_add_u32 s33, s33, {H_WV}
        v_add_u32 v7, s33, v7
        ''')
        for ks in range(6):
            e(f'ds_read_b128 {vr(AV+4*ks,4)}, v7 offset:{ks*64}')
        for d in range(2):
            for ks in range(6):
                for h in range(2):
                    e(f'ds_read_b64_tr_b16 {vr(WO + (d*6+ks)*4 + 2*h, 2)}, v6 offset:{H_WO + ks*2048 + h*256 + d*32}')
        e('s_waitcnt lgkmcnt(0)')
        for ks in range(6):
            for ee in range(2):
                D = DD + 4 * ee
                e(f'{MF} {vr(D,4)}, {vr(AV+4*ks,4)}, {vr(WO + (ee*6+ks)*4, 4)}, ' + ('0' if ks == 0 else vr(D, 4)))
        e(f'''
        s_mul_i32 s33, s30, 6144
        s_lshr_b32 s34, s28, 1
        s_lshl_b32 s34, s34, 10
        s_add_u32 s33, s33, s34
        s_and_b32 s34, s28, 1
        s_lshl_b32 s34, s34, 3
        s_add_u32 s33, s33, s34
        s_add_u32 s33, s33, {WS_WVO}
        v_lshl_add_u32 v5, v1, 4, s33
        v_cvt_pk_bf16_f32 v{DD+8}, v{DD}, v{DD+1}
        v_cvt_pk_bf16_f32 v{DD+9}, v{DD+2}, v{DD+3}
        v_cvt_pk_bf16_f32 v{DD+10}, v{DD+4}, v{DD+5}
        v_cvt_pk_bf16_f32 v{DD+11}, v{DD+6}, v{DD+7}
        global_store_dwordx2 v5, {vr(DD+8,2)}, s[26:27] sc1
        global_store_dwordx2 v5, {vr(DD+10,2)}, s[26:27] offset:3072 sc1
        s_waitcnt vmcnt(0)
        ''')
        a.label(ldone)
        e('s_barrier')
        lnf = self.lab('wvo_nf')
        self.br(f'''
        s_cmp_lg_u32 s28, 0
        s_cbranch_scc1 {lnf}''')
        self.poll_nonce0(10, 4)
        e(f'''
        s_lshl_b32 s33, s30, 7
        s_add_u32 s33, s33, {WS_WF}
        v_mov_b32 v4, s33
        s_mov_b64 exec, 1
        global_store_dword v4, v10, s[26:27] sc1
        s_mov_b64 exec, -1
        ''')
        a.label(lnf)
        self.stamp(1)

    def qblock_addr(self, VA, B='s28'):
        self.e(f'''
        s_lshl_b32 s46, {B}, 10
        v_add_u32 v{VA}, s46, v18
        v_add_u32 v{VA+1}, 8192, v{VA}
        v_add_u32 v{VA+2}, 16384, v{VA}
        s_lshr_b32 s46, {B}, 1
        s_mul_i32 s46, s46, 12
        v_mov_b32 v{VA+3}, s46
        ''')

    def qblock_issue(self, VA, QL):
        self.e(f'''
        global_load_dwordx3 {vr(QL+12, 3)}, v{VA+3}, s[24:25] sc1
        global_load_dwordx4 {vr(QL, 4)}, v{VA}, s[26:27] sc1
        global_load_dwordx4 {vr(QL+4, 4)}, v{VA+1}, s[26:27] sc1
        global_load_dwordx4 {vr(QL+8, 4)}, v{VA+2}, s[26:27] sc1
        ''')

    def qblock_finish(self, VA, QL, QT, B='s28'):
        lr, lok = self.lab('qretry'), self.lab('qok')
        self.e('s_mov_b32 s42, 0')
        self.a.label(lr)
        self.e(f'''
        s_waitcnt vmcnt(0)
        v_xor_b32 v{QT}, v{QL+3}, v{QL+12}
        v_xor_b32 v{QT+1}, v{QL+7}, v{QL+13}
        v_xor_b32 v{QT+2}, v{QL+11}, v{QL+14}
        v_or3_b32 v{QT}, v{QT}, v{QT+1}, v{QT+2}
        v_min3_u32 v{QT+1}, v{QL+12}, v{QL+13}, v{QL+14}
        v_cmp_eq_u32 vcc, 0, v{QT+1}
        v_cndmask_b32 v{QT+1}, 0, 1, vcc
        v_or_b32 v{QT}, v{QT}, v{QT+1}
        v_cmp_ne_u32 vcc, 0, v{QT}
        ''')
        self.br(f's_cbranch_vccz {lok}')
        self.e('s_add_u32 s42, s42, 1')
        self.e('s_cmp_ge_u32 s42, 0x40000')
        self.br(f's_cbranch_scc1 {lok}')
        self.qblock_issue(VA, QL)
        self.br(f's_branch {lr}')
        self.a.label(lok)
        self.e(f'''
        v_mov_b32 v{QT+9}, 0x00003f80
        v_mov_b32 v{QT+10}, 0x3f800000
        v_mov_b32 v{QT+11}, 0x3f803f80
        ''')
        for p in range(3):
            for t in range(3):
                src = QL + 4 * p + t
                c0 = '0' if p == 0 else f'v{QT+2*t}'
                c1 = '0' if p == 0 else f'v{QT+2*t+1}'
                self.e(f'v_dot2_f32_bf16 v{QT+2*t}, v{src}, v{QT+9}, {c0}')
                self.e(f'v_dot2_f32_bf16 v{QT+2*t+1}, v{src}, v{QT+10}, {c1}')
        for t in range(3):
            self.e(f'v_cvt_pk_bf16_f32 v{QL+t}, v{QT+2*t}, v{QT+2*t+1}')
        self.e(f'''
        s_and_b32 s46, {B}, 1
        s_lshl_b32 s46, s46, 3
        v_lshrrev_b32 v{QT+6}, 3, v1
        v_add_u32 v{QT+6}, s46, v{QT+6}
        v_and_b32 v{QT+7}, 7, v1
        v_mul_u32_u24 v{QT+7}, 12, v{QT+7}
        v_mul_u32_u24 v{QT+8}, 400, v{QT+6}
        s_lshr_b32 s47, {B}, 1
        s_mul_i32 s46, s47, 96
        s_add_u32 s46, s46, {L_QK}
        v_add3_u32 v{QT+7}, v{QT+7}, v{QT+8}, s46
        ds_write2_b32 v{QT+7}, v{QL}, v{QL+1} offset0:0 offset1:1
        ds_write_b32 v{QT+7}, v{QL+2} offset:8
        v_mov_b32 v{QT}, 0
        v_dot2c_f32_bf16 v{QT}, v{QL}, v{QT+11}
        v_dot2c_f32_bf16 v{QT}, v{QL+1}, v{QT+11}
        v_dot2c_f32_bf16 v{QT}, v{QL+2}, v{QT+11}
        v_add_f32_dpp v{QT}, v{QT}, v{QT} quad_perm:[1,0,3,2] row_mask:0xf bank_mask:0xf
        v_add_f32_dpp v{QT}, v{QT}, v{QT} quad_perm:[2,3,0,1] row_mask:0xf bank_mask:0xf
        v_add_f32_dpp v{QT}, v{QT}, v{QT} row_half_mirror row_mask:0xf bank_mask:0xf
        s_lshl_b32 s47, s47, 2
        s_add_u32 s47, s47, {L_SQ}
        v_lshl_add_u32 v{QT+6}, v{QT+6}, 4, s47
        s_mov_b32 exec_lo, 0x01010101
        s_mov_b32 exec_hi, 0x01010101
        ds_write_b32 v{QT+6}, v{QT}
        s_mov_b64 exec, -1
        ''')

    def role_qk(self):
        a, e = self.a, self.e
        VQ, VWK, VWQ, T = 8, 32, 40, 88
        lwarm = self.lab('qk_warm')
        lw8 = self.lab('qk_w8')
        self.br(f'''
        s_cmp_ge_u32 s28, 4
        s_cbranch_scc1 {lwarm}''')
        e(f'''
        s_mul_i32 s32, s30, 86
        s_lshr_b32 s32, s32, 8
        s_mul_i32 s31, s32, 3
        s_sub_u32 s31, s30, s31
        v_lshrrev_b32 v5, 3, v1
        v_mul_u32_u24 v5, 384, v5
        v_and_b32 v6, 7, v1
        v_bfe_u32 v7, v1, 4, 1
        v_lshlrev_b32 v7, 1, v7
        v_xor_b32 v6, v6, v7
        s_lshl_b32 s33, s31, 7
        s_mul_i32 s34, s28, 18432
        s_add_u32 s34, s34, s33
        v_add_u32 v8, s34, v5
        v_lshl_add_u32 v9, v6, 4, v8
        v_xor_b32 v6, 4, v6
        v_lshl_add_u32 v10, v6, 4, v8
        v_add_u32 v10, 3072, v10
        s_mul_i32 s34, s28, 6144
        s_add_u32 m0, s34, {H_WQ}
        ''')
        for k in range(6):
            src = 9 if k % 2 == 0 else 10
            e(f'global_load_lds_dwordx4 v{src}, s[14:15]')
            if k < 4: e(f'v_add_u32 v{src}, 6144, v{src}')
            if k < 5: e('s_add_u32 m0, m0, 1024')
        lnq = self.lab('qk_noq')
        self.br(f'''
        s_cmp_ge_u32 s28, 3
        s_cbranch_scc1 {lnq}''')
        e('''
        s_lshl_b32 s33, s28, 7
        s_movk_i32 s34, 2731
        ''')
        for t in range(2):
            e(f'''
            v_add_u32 v6, s33, v1
            v_add_u32 v6, {64*t}, v6
            v_mul_u32_u24 v7, s34, v6
            v_lshrrev_b32 v7, 16, v7
            v_mul_u32_u24 v8, 24, v7
            v_sub_u32 v6, v6, v8
            v_bfe_u32 v8, v7, 1, 3
            v_xor_b32 v6, v6, v8
            v_mul_u32_u24 v7, 384, v7
            v_lshl_add_u32 v6, v6, 4, v7
            s_lshl_b32 s35, s28, 11
            s_add_u32 m0, s35, {H_Q + t*1024}
            global_load_lds_dwordx4 v6, s[8:9]
            ''')
        e(f'''
        s_mul_i32 s33, s32, 48
        s_lshl_b32 s34, s28, 4
        s_add_u32 s33, s33, s34
        s_mul_i32 s33, s33, 384
        s_lshl_b32 s34, s31, 7
        s_add_u32 s33, s33, s34
        v_and_b32 v6, 7, v1
        v_lshl_add_u32 v6, v6, 4, v5
        v_add_u32 v6, s33, v6
        s_add_u32 m0, s35, {H_WK}
        v_add_u32 v7, 3072, v6
        global_load_lds_dwordx4 v6, s[16:17]
        s_add_u32 m0, s35, {H_WK + 1024}
        s_nop 0
        global_load_lds_dwordx4 v7, s[16:17]
        ''')
        a.label(lnq)
        e(f'''
        v_mov_b32 v{T}, 0x3f803f80
        v_mov_b32 v{T+1}, 0x3f803f80
        v_mov_b32 v{T+2}, 0x3f803f80
        v_mov_b32 v{T+3}, 0x3f803f80
        v_mov_b32 v{T+4}, 1.0
        v_mov_b32 v{T+5}, 0
        v_mov_b32 v{T+6}, 0
        v_bfe_u32 v6, v2, 1, 3
        v_xor_b32 v6, v6, v3
        v_mul_u32_u24 v7, 384, v2
        v_lshl_add_u32 v151, v6, 4, v7
        v_xor_b32 v6, 4, v6
        v_lshl_add_u32 v152, v6, 4, v7
        v_lshlrev_b32 v4, 4, v1
        ''')
        self.stamp(7)
        e('s_waitcnt vmcnt(0)')
        self.br(f's_branch {lw8}')
        a.label(lwarm)
        l7 = self.lab('qk7')
        self.br(f'''
        s_cmp_lg_u32 s28, 7
        s_cbranch_scc1 {l7}''')
        e(f'''
        s_memrealtime s[40:41]
        s_lshl_b32 s33, s30, 2
        v_mov_b32 v6, s33
        v_mov_b32 v7, {H_NON}
        s_waitcnt lgkmcnt(0)
        s_or_b32 s40, s40, 1
        v_mov_b32 v5, s40
        s_mov_b64 exec, 1
        global_store_dword v6, v5, s[24:25] sc1
        ds_write_b32 v7, v5
        s_mov_b64 exec, -1
        ''')
        a.label(l7)
        if self.opt.get('qdry', 1):
            lx = [self.lab('qd') for _ in range(4)]
            ljoin = self.lab('qd')
            segs = (('L_qk_segA', 'L_qk_retA1', 1), ('L_qk_segA2', 'L_qk_retA', 2), ('L_qk_segB', 'L_qk_retB1', 1), ('L_qk_segB2', 'L_qk_retB', 2))
            for i, (tg, rt, md) in enumerate(segs):
                if i < 3:
                    self.br(f'''
                    s_cmp_lg_u32 s28, {4 + i}
                    s_cbranch_scc1 {lx[i]}''')
                self.dry_call(tg, rt, md)
                if i < 3:
                    self.br(f's_branch {ljoin}')
                    a.label(lx[i])
            a.label(ljoin)
        e('s_waitcnt lgkmcnt(0)')
        a.label(lw8)
        self.stamp(9)
        e('s_barrier')
        self.stamp(10)
        lb3 = self.lab('qk_b3')
        lwo = self.lab('qk_wo')
        self.br(f'''
        s_cmp_ge_u32 s28, 4
        s_cbranch_scc1 {lwo}''')
        a.label('L_qk_segA')
        for ks in range(6):
            e(f'ds_read_b128 {vr(VQ+4*ks, 4)}, v{151 if ks % 2 == 0 else 152} offset:{H_Q + (ks >> 1) * 128}')
        e('''
        v_bfe_u32 v5, v1, 2, 2
        v_lshl_add_u32 v6, v3, 3, v5
        v_lshlrev_b32 v6, 7, v6
        v_lshrrev_b32 v5, 1, v5
        v_and_b32 v7, 1, v3
        v_lshl_or_b32 v5, v7, 1, v5
        v_lshlrev_b32 v5, 1, v5
        v_bfe_u32 v7, v1, 1, 1
        s_lshl_b32 s33, s28, 1
        v_or_b32 v7, s33, v7
        v_xor_b32 v5, v5, v7
        v_lshl_add_u32 v6, v5, 4, v6
        v_and_b32 v7, 1, v1
        v_lshl_add_u32 v6, v7, 3, v6
        ''')
        for ks in range(6):
            for h in range(2):
                e(f'ds_read_b64_tr_b16 {vr(VWQ+4*ks+2*h, 2)}, v6 offset:{H_WQ + ks*4096 + h*512}')
        e('''
        v_lshlrev_b32 v7, 7, v2
        v_lshl_add_u32 v7, v3, 3, v7
        s_lshl_b32 s33, s28, 5
        v_add_u32 v7, s33, v7
        ''')
        for tau in range(3):
            e(f'ds_read_b64 {vr(VWK+2*tau, 2)}, v7 offset:{H_WK + tau*2048}')
        MEAN, SSQ, D1, CSQ = T + 8, T + 12, T + 36, T + 16
        for ks in range(6):
            e(f's_waitcnt lgkmcnt({min(15, 20 - ks)})')
            e(f'{MF} {vr(MEAN,4)}, {vr(T,4)}, {vr(VQ+4*ks,4)}, ' + ('0' if ks == 0 else vr(MEAN, 4)))
        for i in range(24):
            e(f'v_dot2c_f32_bf16 v{T+5+(i&1)}, v{VQ+i}, v{VQ+i}')
        e(f'v_add_f32 v{T+5}, v{T+5}, v{T+6}')
        e(f'{MF4} {vr(SSQ,4)}, v{T+4}, v{T+5}, 0')
        if self.opt.get('qdry', 1):
            self.br('''
            s_cmp_eq_u32 s58, 1
            s_cbranch_scc1 L_qk_retA1''')
            a.label('L_qk_segA2')
        for ks in range(6):
            e(f's_waitcnt lgkmcnt({13 - 2*ks})')
            e(f'{MF} {vr(D1,4)}, {vr(VWQ+4*ks,4)}, {vr(VQ+4*ks,4)}, ' + ('0' if ks == 0 else vr(D1, 4)))
            e(f'{MF} {vr(CSQ,4)}, {vr(VWQ+4*ks,4)}, {vr(T,4)}, ' + ('0' if ks == 0 else vr(CSQ, 4)))
        e(f'''
        s_mov_b32 s36, {f32bits(1.0/192)}
        v_mul_f32 v{MEAN}, s36, v{MEAN}
        v_mul_f32 v{SSQ}, s36, v{SSQ}
        v_fma_f32 v{SSQ}, -v{MEAN}, v{MEAN}, v{SSQ}
        v_max_f32 v{SSQ}, 0, v{SSQ}
        v_add_f32 v{SSQ}, {f32bits(1e-5)}, v{SSQ}
        v_rsq_f32 v{SSQ}, v{SSQ}
        ''')
        for r in range(4):
            e(f'v_fma_f32 v{D1+r}, -v{MEAN}, v{CSQ+r}, v{D1+r}')
        for r in range(4):
            e(f'v_mul_f32 v{D1+r}, v{D1+r}, v{SSQ}')
        P = T + 40
        e(f'v_cvt_pk_bf16_f32 v{P}, v{D1}, v{D1+1}')
        e(f'v_cvt_pk_bf16_f32 v{P+1}, v{D1+2}, v{D1+3}')
        e('s_waitcnt lgkmcnt(0)')
        D2 = T + 44
        for tau in range(3):
            e(f'v_mfma_f32_16x16x16_bf16 {vr(D2+4*tau,4)}, {vr(VWK+2*tau,2)}, {vr(P,2)}, 0')
        e('''
        s_mul_i32 s33, s28, 3072
        v_add_u32 v5, s33, v4
        ''')
        for tau in range(3):
            e(f'ds_write_b128 v5, {vr(D2+4*tau,4)} offset:{H_RED + tau*1024}')
        e('s_waitcnt lgkmcnt(0)')
        if self.opt.get('qdry', 1): self.br('''
        s_cmp_lg_u32 s58, 0
        s_cbranch_scc1 L_qk_retA''')
        a.label(lwo)
        a.label(lb3)
        e('s_barrier')
        self.stamp(11)
        lq_done = self.lab('qk_done')
        self.br(f'''
        s_cmp_ge_u32 s28, 2
        s_cbranch_scc1 {lq_done}''')
        a.label('L_qk_segB')
        e(f'''
        v_lshrrev_b32 v5, 3, v1
        s_lshl_b32 s33, s28, 3
        v_add_u32 v5, s33, v5
        v_lshlrev_b32 v5, 4, v5
        v_and_b32 v6, 7, v1
        v_mul_u32_u24 v6, 6, v6
        v_mov_b32 v10, {H_NON}
        ds_read_b32 v{VQ+27}, v10
        ''')
        for p in range(3):
            e(f'''
            v_add_u32 v7, {2*p}, v6
            v_lshrrev_b32 v8, 2, v7
            v_lshl_add_u32 v8, v8, 8, v5
            v_and_b32 v7, 3, v7
            v_lshl_add_u32 v{150+p}, v7, 2, v8
            ''')
        R = 40
        for p in range(3):
            for d in range(4):
                e(f'ds_read_b64 {vr(R + (p*4+d)*2, 2)}, v{150+p} offset:{H_RED + d*3072}')
        if self.opt.get('qdry', 1):
            self.br('''
            s_cmp_eq_u32 s58, 1
            s_cbranch_scc1 L_qk_retB1''')
            a.label('L_qk_segB2')
        e(f'''
        s_mov_b32 s36, {f32bits(QSCALE)}
        s_mul_i32 s33, s31, 8192
        s_lshl_b32 s34, s32, 11
        s_add_u32 s33, s33, s34
        s_lshl_b32 s34, s28, 10
        s_add_u32 s33, s33, s34
        v_add_u32 v5, s33, v4
        s_waitcnt lgkmcnt(0)
        ''')
        for p in range(3):
            b = R + p * 8
            for x in range(2):
                e(f'v_add_f32 v{b+x}, v{b+x}, v{b+2+x}')
                e(f'v_add_f32 v{b+4+x}, v{b+4+x}, v{b+6+x}')
        for p in range(3):
            b = R + p * 8
            for x in range(2):
                e(f'v_add_f32 v{b+x}, v{b+x}, v{b+4+x}')
        for p in range(3):
            b = R + p * 8
            for x in range(2):
                e(f'v_mul_f32 v{b+x}, s36, v{b+x}')
        O = VQ + 24
        for p in range(3):
            b = R + p * 8
            e(f'v_cvt_pk_bf16_f32 v{O+p}, v{b}, v{b+1}')
        self.nodry(f'global_store_dwordx4 v5, {vr(O,4)}, s[26:27] offset:{WS_QK} sc1')
        if self.opt.get('qdry', 1): self.br('''
        s_cmp_lg_u32 s58, 0
        s_cbranch_scc1 L_qk_retB''')
        self.stamp(8)
        a.label(lq_done)


    def weights_issue(self):
        e = self.e
        e(f'''
        s_sub_u32 s35, s28, 4
        s_mul_i32 s33, s35, 18432
        v_lshl_add_u32 v9, v1, 4, s33
        s_add_u32 s34, s33, {H_WO}
        ''')
        for i in range(18):
            e(f's_add_u32 m0, s34, {i*1024}')
            if i: e('v_add_u32 v9, 1024, v9')
            e('global_load_lds_dwordx4 v9, s[20:21]')
        e(f'''
        s_mul_i32 s33, s35, 9216
        s_and_b32 s34, s2, 1
        s_mul_i32 s34, s34, 36864
        s_add_u32 s34, s34, s33
        v_lshl_add_u32 v9, v1, 4, s34
        s_add_u32 s34, s33, {H_WV}
        ''')
        for i in range(9):
            e(f's_add_u32 m0, s34, {i*1024}')
            if i: e('v_add_u32 v9, 1024, v9')
            e('global_load_lds_dwordx4 v9, s[18:19]')

    def zinit(self, freg):
        e = self.e
        e(f'''
        s_mul_i32 s33, s{freg}, {ZREG}
        s_add_u32 s33, s33, {WS_Z}
        v_lshl_add_u32 v4, v0, 4, s33
        ''')
        for i in range(10):
            e('global_store_dwordx4 v4, v[200:203], s[26:27] sc1')
            e('v_add_u32 v4, 4096, v4')
        e(f'''
        s_mul_i32 s33, s{freg}, 896
        s_add_u32 s33, s33, {WS_ML - 2048}
        v_lshl_add_u32 v5, v0, 4, s33
        v_cmp_gt_u32 vcc, 128, v0
        v_cndmask_b32 v4, v5, v4, vcc
        v_cmp_gt_u32 vcc, 184, v0
        s_and_saveexec_b64 s[40:41], vcc
        ''')
        l = self.lab('zi')
        self.br(f's_cbranch_execz {l}')
        e('global_store_dwordx4 v4, v[200:203], s[26:27] sc1')
        self.a.label(l)
        e('s_mov_b64 exec, -1')
        l2 = self.lab('oi')
        self.br(f'''
        s_cmp_lg_u32 s28, 3
        s_cbranch_scc1 {l2}''')
        self.br(f'''
        s_bitcmp1_b32 s{freg}, 0
        s_cbranch_scc1 {l2}''')
        e(f'''
        s_lshr_b32 s33, s{freg}, 1
        s_mul_i32 s33, s33, 384
        v_lshl_add_u32 v5, v1, 4, s33
        s_mov_b32 exec_lo, 0xffffff
        s_mov_b32 exec_hi, 0
        global_load_dwordx4 v[204:207], v5, s[8:9]
        s_waitcnt vmcnt(0)
        global_store_dwordx4 v5, v[204:207], s[22:23] sc1
        s_mov_b64 exec, -1
        ''')
        self.a.label(l2)

    def role_final(self, isqk):
        a, e = self.a, self.e
        WO = 24
        WVO = 148
        ZL = 24
        ACC = 188
        TM = 200
        a.label('L_fin_tail')
        e(f'''
        s_lshr_b32 s46, s53, 1
        v_mov_b32 v4, {L_NON}
        ds_read_b32 v10, v4
        s_waitcnt lgkmcnt(0)
        ''')
        e(f'''
        s_mul_i32 s33, s28, 28
        v_min_u32 v4, 27, v1
        v_add_u32 v4, s33, v4
        v_lshlrev_b32 v4, 4, v4
        s_mul_i32 s34, s53, 3584
        s_add_u32 s34, s34, {WS_ML}
        v_add_u32 v4, s34, v4
        s_mul_i32 s34, s53, 224
        s_add_u32 s34, s34, s33
        s_mul_i32 s34, s34, 192
        s_add_u32 s34, s34, {WS_Z}
        v_min_u32 v5, 47, v1
        v_lshlrev_b32 v5, 4, v5
        v_add_u32 v5, s34, v5
        v_add_u32 v6, 3840, v5
        s_mov_b32 s42, 0
        ''')
        def zl(i):
            return f'global_load_dwordx4 {vr(ZL+4*i,4)}, v{5 + i//5}, s[26:27] offset:{(i%5)*768} sc1'
        def zload(i):
            e(zl(i))
        UM = TM + 14
        if self.opt.get('zpoll', 0):
            lp, ld = self.lab('poll'), self.lab('polld')
            a.label(lp)
            e(f'''
            global_load_dwordx4 {vr(TM,4)}, v4, s[26:27] sc1
            s_add_u32 s42, s42, 1
            s_waitcnt vmcnt(0)
            v_cmp_eq_u32 vcc, v{TM+2}, v10
            ''')
            self.br(f's_cbranch_vccnz {ld}')
            e('s_cmp_lt_u32 s42, 0x40000')
            self.br(f's_cbranch_scc1 {lp}')
            a.label(ld)
            self.stamp(1)
            lp, ld = self.lab('poll'), self.lab('polld')
            a.label(lp)
            e(f'global_load_dwordx4 {vr(TM,4)}, v4, s[26:27] sc1')
            for i in range(7): zload(i)
            e(f'''
            s_add_u32 s42, s42, 1
            v_mov_b32 v{UM}, 0
            s_waitcnt vmcnt(7)
            v_cmp_ne_u32 vcc, v{TM+2}, v10
            v_cndmask_b32 v{UM}, 0, -1, vcc
            ''')
            for i in range(7):
                e(f's_waitcnt vmcnt({6-i})')
                e(f'v_max3_u32 v{UM}, v{UM}, v{ZL+4*i}, v{ZL+4*i+1}')
                e(f'v_max3_u32 v{UM}, v{UM}, v{ZL+4*i+2}, v{ZL+4*i+3}')
            e(f'v_cmp_eq_u32 vcc, -1, v{UM}')
            self.br(f's_cbranch_vccz {ld}')
            e('s_cmp_lt_u32 s42, 0x40000')
            self.br(f's_cbranch_scc1 {lp}')
            a.label(ld)
            self.stamp(3)
        else:
            NP = self.opt.get('npoll', 1)
            if NP == 1:
                lp, ld = self.lab('poll'), self.lab('polld')
                a.label(lp)
                self.nodry(f'global_load_dwordx4 {vr(TM,4)}, v4, s[26:27] sc1')
                e(f'''
                s_add_u32 s42, s42, 1
                s_waitcnt vmcnt(0)
                v_cmp_ne_u32 vcc, v{TM+2}, v10
                ''')
                self.br(f's_cbranch_vccz {ld}')
                if self.opt.get('fsl', 0): e(f's_sleep {self.opt.get("fsl")}')
                e('s_cmp_lt_u32 s42, 0x40000')
                self.br(f's_cbranch_scc1 {lp}')
                a.label(ld)
            else:
                PS = 56
                lp, ld = self.lab('poll'), self.lab('polld')
                lx = [self.lab('px') for _ in range(NP)]
                for k in range(NP - 1):
                    self.nodry(f'global_load_dwordx4 {vr(PS+4*k,4)}, v4, s[26:27] sc1')
                    e(f's_sleep {self.opt.get("psl", 3)}')
                a.label(lp)
                for k in range(NP):
                    kk = (k + NP - 1) % NP
                    self.nodry(f'global_load_dwordx4 {vr(PS+4*kk,4)}, v4, s[26:27] sc1')
                    e(f'''
                    s_waitcnt vmcnt({NP-1})
                    v_cmp_ne_u32 vcc, v{PS+4*k+2}, v10
                    ''')
                    self.br(f's_cbranch_vccz {lx[k]}')
                e('s_add_u32 s42, s42, 1')
                e('s_cmp_lt_u32 s42, 0x20000')
                self.br(f's_cbranch_scc1 {lp}')
                for k in range(NP):
                    a.label(lx[k])
                    e(f'v_mov_b32 v{TM}, v{PS+4*k}')
                    e(f'v_mov_b32 v{TM+1}, v{PS+4*k+1}')
                    if k < NP - 1: self.br(f's_branch {ld}')
                a.label(ld)
            self.stamp(3)
            self.nodry('\n'.join(zl(i) for i in range(7)))
        M, L, X = TM, TM + 1, TM + 2
        e(f'v_mov_b32 v{X}, v{M}')
        for sh in (1, 2, 4, 8):
            e(f'v_max_f32_dpp v{X}, v{X}, v{X} row_ror:{sh} row_mask:0xf bank_mask:0xf')
        e(f'''
        v_mov_b32 v{X+1}, v{X}
        v_permlane16_swap_b32 v{X}, v{X+1}
        v_max_f32 v{X}, v{X}, v{X+1}
        v_mov_b32 v{X+1}, v{X}
        v_permlane32_swap_b32 v{X}, v{X+1}
        v_max_f32 v{X}, v{X}, v{X+1}
        s_lshl_b32 s35, s28, 2
        v_mov_b32 v8, s35
        ds_write_b32 v8, v{X} offset:{F_WM}
        v_sub_f32 v{M}, v{M}, v{X}
        v_exp_f32 v{M}, v{M}
        v_cmp_gt_u32 vcc, 28, v1
        v_mul_f32 v{L}, v{L}, v{M}
        v_cndmask_b32 v{L}, 0, v{L}, vcc
        v_lshrrev_b32 v{M}, 16, v{M}
        s_lshl_b32 s34, s28, 7
        s_add_u32 s34, s34, {F_SCT}
        v_lshl_add_u32 v9, v1, 2, s34
        s_mov_b32 exec_hi, 0
        ds_write_b32 v9, v{M}
        s_mov_b32 exec_hi, s57
        v_mul_u32_u24 v9, 43, v1
        v_lshrrev_b32 v9, 9, v9
        v_min_u32 v9, 3, v9
        v_lshl_add_u32 v9, v9, 2, s34
        ''')
        for sh in (1, 2, 4, 8):
            e(f'v_add_f32_dpp v{L}, v{L}, v{L} row_ror:{sh} row_mask:0xf bank_mask:0xf')
        e(f'''
        v_mov_b32 v{X+1}, v{L}
        v_permlane16_swap_b32 v{L}, v{X+1}
        v_add_f32 v{L}, v{L}, v{X+1}
        s_waitcnt lgkmcnt(0)
        ''')
        SCL = TM + 4
        for i in range(7):
            e(f'ds_read_b32 v{SCL+i}, v9 offset:{i*16}')
        e(f'''
        s_and_b32 exec_lo, s56, 1
        s_mov_b32 exec_hi, 0
        ds_write_b32 v8, v{L} offset:{F_WL}
        s_mov_b64 exec, s[56:57]
        ''')
        HI = TM + 12
        lredo, lok = self.lab('redo'), self.lab('zok')
        a.label(lredo)
        for i in range(8): e(f'v_mov_b32 v{ACC+i}, 0')
        zp = self.opt.get('zpoll', 0)
        if not zp: e(f'v_mov_b32 v{UM}, 0')
        e('s_waitcnt lgkmcnt(0)')
        for i in range(7):
            e(f'v_lshlrev_b32 v{HI+(i&1)}, 16, v{SCL+i}')
            if not zp:
                e(f's_waitcnt vmcnt({6-i})')
                e(f'v_max3_u32 v{UM}, v{UM}, v{ZL+4*i}, v{ZL+4*i+1}')
                e(f'v_max3_u32 v{UM}, v{UM}, v{ZL+4*i+2}, v{ZL+4*i+3}')
            for j in range(4):
                e(f'v_dot2c_f32_bf16 v{ACC+2*j}, v{ZL+4*i+j}, v{SCL+i}')
                e(f'v_dot2c_f32_bf16 v{ACC+2*j+1}, v{ZL+4*i+j}, v{HI+(i&1)}')
        if not zp:
            e(f'v_cmp_eq_u32 vcc, -1, v{UM}')
            self.br(f's_cbranch_vccz {lok}')
            e('s_add_u32 s42, s42, 1')
            e('s_cmp_ge_u32 s42, 0x40000')
            self.br(f's_cbranch_scc1 {lok}')
            self.nodry('\n'.join(zl(i) for i in range(7)))
            self.br(f's_branch {lredo}')
        a.label(lok)
        e(f'''
        v_cvt_pk_bf16_f32 v{TM+4}, v{ACC}, v{ACC+1}
        v_cvt_pk_bf16_f32 v{TM+5}, v{ACC+2}, v{ACC+3}
        v_cvt_pk_bf16_f32 v{TM+6}, v{ACC+4}, v{ACC+5}
        v_cvt_pk_bf16_f32 v{TM+7}, v{ACC+6}, v{ACC+7}
        v_mul_u32_u24 v8, 43, v1
        v_lshrrev_b32 v8, 9, v8
        v_mul_u32_u24 v9, 12, v8
        v_sub_u32 v9, v1, v9
        s_lshl_b32 s34, s28, 2
        v_add_u32 v8, s34, v8
        v_mul_u32_u24 v8, 208, v8
        v_lshrrev_b32 v10, 2, v9
        v_lshl_add_u32 v8, v10, 6, v8
        v_and_b32 v10, 1, v9
        v_lshl_add_u32 v8, v10, 5, v8
        v_bfe_u32 v10, v9, 1, 1
        v_lshl_add_u32 v8, v10, 3, v8
        s_and_b32 exec_hi, s57, 0xffff
        ds_write_b64 v8, {vr(TM+4,2)} offset:{F_ZC}
        ds_write_b64 v8, {vr(TM+6,2)} offset:{F_ZC+16}
        s_mov_b32 exec_hi, s57
        s_waitcnt lgkmcnt(0)
        ''')
        self.bar()
        self.stamp(4)
        self.br('''
        s_cmp_ge_u32 s28, 6
        s_cbranch_scc1 L_end''')
        ZB = ZL
        WL = ZL + 24
        WMr = 96
        e('''
        v_mul_u32_u24 v6, 208, v2
        v_lshl_add_u32 v6, v3, 4, v6
        v_mov_b32 v7, 0
        v_lshlrev_b32 v9, 2, v3
        ''')
        for cg in range(2):
            for t in range(3):
                e(f'ds_read_b128 {vr(ZB + (cg*3+t)*4, 4)}, v6 offset:{F_ZC + cg*16*208 + t*64}')
        e(f'ds_read_b128 {vr(WL,4)}, v7 offset:{F_WL}')
        e(f'ds_read_b128 {vr(WL+4,4)}, v7 offset:{F_WL+16}')
        e(f'ds_read_b128 {vr(WMr,4)}, v7 offset:{F_WM}')
        e(f'ds_read_b128 {vr(WMr+4,4)}, v7 offset:{F_WM+16}')
        e(f'ds_read_b32 v104, v9 offset:{F_WM}')
        e(f'ds_read_b32 v105, v9 offset:{F_WM+16}')
        DA = 108
        n = 0
        for cg in range(2):
            for t in range(3):
                e(f's_waitcnt lgkmcnt({11 - n})')
                for ee in range(2):
                    D = DA + (cg * 2 + ee) * 4
                    e(f'{MF} {vr(D,4)}, {vr(ZB + (cg*3+t)*4, 4)}, {vr(WVO + (ee*3+t)*4, 4)}, ' + ('0' if t == 0 else vr(D, 4)))
                n += 1
        e(f'''
        s_waitcnt lgkmcnt(0)
        v_max3_f32 v{TM}, v{WMr}, v{WMr+1}, v{WMr+2}
        v_max3_f32 v{TM+1}, v{WMr+3}, v{WMr+4}, v{WMr+5}
        v_max3_f32 v{TM}, v{TM}, v{WMr+6}, v{WMr+7}
        v_max_f32 v{TM}, v{TM}, v{TM+1}
        ''')
        for v in range(8): e(f'v_sub_f32 v{WMr+v}, v{WMr+v}, v{TM}')
        e(f'v_sub_f32 v104, v104, v{TM}')
        e(f'v_sub_f32 v105, v105, v{TM}')
        for v in range(8): e(f'v_exp_f32 v{WMr+v}, v{WMr+v}')
        e('v_exp_f32 v104, v104')
        e('v_exp_f32 v105, v105')
        e(f'v_mul_f32 v{TM+1}, v{WL}, v{WMr}')
        for v in range(1, 8): e(f'v_fmac_f32 v{TM+1}, v{WL+v}, v{WMr+v}')
        e(f'v_rcp_f32 v{TM+1}, v{TM+1}')
        e(f'v_mul_f32 v104, v104, v{TM+1}')
        e(f'v_mul_f32 v105, v105, v{TM+1}')
        for ee in range(2):
            for cg in range(2):
                D = DA + (cg * 2 + ee) * 4
                e(f'v_add_f32 v{D}, v{D}, v{D+1}')
                e(f'v_add_f32 v{D+2}, v{D+2}, v{D+3}')
        for ee in range(2):
            for cg in range(2):
                D = DA + (cg * 2 + ee) * 4
                e(f'v_add_f32 v{D}, v{D}, v{D+2}')
        for ee in range(2):
            e(f'v_mul_f32 v{TM+4+ee}, v{DA+ee*4}, v104')
            e(f'v_fmac_f32 v{TM+4+ee}, v{DA+(2+ee)*4}, v105')
        for ee in range(2):
            e(f'v_mov_b32 v{TM+6+ee}, v{TM+4+ee}')
        for ee in range(2):
            e(f'v_permlane16_swap_b32 v{TM+4+ee}, v{TM+6+ee}')
        for ee in range(2):
            e(f'v_add_f32 v{TM+4+ee}, v{TM+4+ee}, v{TM+6+ee}')
        for ee in range(2):
            e(f'v_mov_b32 v{TM+6+ee}, v{TM+4+ee}')
        for ee in range(2):
            e(f'v_permlane32_swap_b32 v{TM+4+ee}, v{TM+6+ee}')
        for ee in range(2):
            e(f'v_add_f32 v{TM+4+ee}, v{TM+4+ee}, v{TM+6+ee}')
        for ee in range(2):
            e(f'v_mov_b32_dpp v{TM+6+ee}, v{TM+4+ee} quad_perm:[1,1,3,3] row_mask:0xf bank_mask:0xf')
        for ee in range(2):
            e(f'v_cvt_pk_bf16_f32 v{TM+8+ee}, v{TM+4+ee}, v{TM+6+ee}')
        e(f'''
        s_mul_i32 s33, s46, 384
        s_lshl_b32 s34, s28, 6
        s_add_u32 s33, s33, s34
        v_lshl_add_u32 v4, v2, 1, s33
        s_and_b32 exec_lo, s56, 0x5555
        s_mov_b32 exec_hi, 0
        ''')
        self.nodry(f'''
        global_atomic_pk_add_bf16 v4, v{TM+8}, s[22:23]
        global_atomic_pk_add_bf16 v4, v{TM+9}, s[22:23] offset:32
        ''')
        self.stamp(5)
        if self.opt.get('fdry', 1): self.br('''
        s_cmp_lg_u32 s58, 0
        s_cbranch_scc1 L_fin_dry_ret''')
        self.br('s_branch L_end')

    def role_main(self):
        a, e = self.a, self.e
        lh = self.lab('helper')
        self.br(f'''
        s_cmp_eq_u32 s28, 7
        s_cbranch_scc1 {lh}''')
        NT = ' nt'
        F1, T0, T1, QK = 24, 48, 72, 96
        ONES = 20
        S1, S0, S0b = 120, 124, 128
        SS0, SS1 = 132, 136
        AC = 140
        RS, MR = 148, 156
        L1, L0, L0b = 164, 168, 172
        TM = 176
        C5, SQ, MX0 = 188, 189, 190
        DV = 191
        M1 = 197
        M0E = 244
        QA = 252
        QL, QT = 200, 216
        XQ = [120 + 4 * i for i in range(7)] + [200 + 4 * i for i in range(11)]
        e(f'''
        s_lshr_b32 s31, s30, 1
        s_and_b32 s32, s30, 1
        s_mul_i32 s32, s32, 56
        s_lshl_b32 s33, s28, 3
        s_add_u32 s32, s32, s33
        s_mul_i32 s33, s31, 112
        s_add_u32 s33, s33, s32
        s_mul_i32 s33, s33, 384
        s_add_u32 s34, s12, s33
        s_addc_u32 s35, s13, 0
        s_mul_i32 s33, s31, 448
        s_lshl_b32 s32, s32, 1
        s_add_u32 s33, s33, s32
        s_mul_i32 s33, s33, 384
        s_add_u32 s36, s10, s33
        s_addc_u32 s37, s11, 0
        s_add_u32 s38, s36, 86016
        s_addc_u32 s39, s37, 0
        s_mul_i32 s43, s28, {XREG}
        s_add_u32 s43, s43, {L_X}
        s_movk_i32 s44, 2731
        ''')
        for jj in range(3):
            u, p = TM + 4 * jj, TM + 4 * jj + 1
            e(f'''
            v_add_u32 v{u}, {64*jj}, v1
            v_mul_u32_u24 v{p}, s44, v{u}
            v_lshrrev_b32 v{p}, 16, v{p}
            v_mul_u32_u24 v{u+2}, 24, v{p}
            v_sub_u32 v{u}, v{u}, v{u+2}
            v_bfe_u32 v{u+2}, v{p}, 1, 1
            v_bfe_u32 v{u+3}, v{p}, 2, 1
            v_lshl_add_u32 v{u+2}, v{u+2}, 2, v{u+3}
            v_xor_b32 v{u+2}, v{u+2}, v{u}
            v_mul_u32_u24 v{u+3}, 384, v{p}
            v_lshl_add_u32 v{4+jj}, v{u+2}, 4, v{u+3}
            s_add_u32 m0, s43, {jj*1024}
            global_load_lds_dwordx4 v{4+jj}, s[34:35]{NT}
            ''')
        for jj in range(3):
            u, p = TM + 4 * jj, TM + 4 * jj + 1
            e(f'''
            v_bfe_u32 v{u+2}, v{p}, 1, 2
            v_lshlrev_b32 v{u+2}, 1, v{u+2}
            v_xor_b32 v{u+2}, v{u+2}, v{u}
            v_lshl_add_u32 v{DV+jj}, v{u+2}, 4, v{u+3}
            v_xor_b32 v{DV+3+jj}, 16, v{DV+jj}
            ''')
        def fine_group(gidx):
            t, hf = gidx >> 1, gidx & 1
            sp = (36, 38)[t]
            for jj in range(3):
                e(f's_add_u32 m0, s43, {3072 + t*6144 + jj*1024}')
                if hf == 0:
                    e(f'global_load_lds_dwordx4 v{DV+jj}, s[{sp}:{sp+1}]{NT}')
                else:
                    e(f'global_load_lds_dwordx4 v{DV+3+jj}, s[{sp}:{sp+1}] offset:3072{NT}')
        WUP = self.opt.get('wup', 3)
        for gi in range(WUP): fine_group(gi)
        self.stamp(1)
        e(f'''
        v_and_b32 v{TM}, 1, v3
        v_lshlrev_b32 v{TM}, 1, v{TM}
        v_lshrrev_b32 v{TM+1}, 1, v3
        v_or_b32 v{TM}, v{TM}, v{TM+1}
        v_bfe_u32 v{TM+1}, v2, 1, 2
        v_lshlrev_b32 v{TM+1}, 1, v{TM+1}
        v_lshrrev_b32 v{TM+2}, 3, v2
        v_or_b32 v{TM+1}, v{TM+1}, v{TM+2}
        v_xor_b32 v{TM+1}, v{TM+1}, v{TM}
        v_mul_u32_u24 v{TM+3}, 384, v2
        v_add_u32 v{TM+3}, s43, v{TM+3}
        v_lshl_add_u32 v13, v{TM+1}, 4, v{TM+3}
        v_xor_b32 v{TM+1}, 4, v{TM+1}
        v_lshl_add_u32 v14, v{TM+1}, 4, v{TM+3}
        v_bfe_u32 v{TM+1}, v2, 2, 1
        v_lshlrev_b32 v{TM+1}, 2, v{TM+1}
        v_lshrrev_b32 v{TM+2}, 3, v2
        v_or_b32 v{TM+1}, v{TM+1}, v{TM+2}
        v_xor_b32 v{TM+1}, v{TM+1}, v{TM}
        v_lshrrev_b32 v{TM+2}, 1, v2
        v_mul_u32_u24 v{TM+2}, 384, v{TM+2}
        v_add_u32 v{TM+2}, s43, v{TM+2}
        v_lshl_add_u32 v16, v{TM+1}, 4, v{TM+2}
        v_xor_b32 v{TM+1}, 4, v{TM+1}
        v_lshl_add_u32 v15, v{TM+1}, 4, v{TM+2}
        v_mov_b32 v17, 1.0
        v_lshlrev_b32 v18, 4, v1
        v_lshlrev_b32 v19, 5, v2
        v_mov_b32 v20, 0x3f803f80
        v_mov_b32 v21, 0x3f803f80
        v_mov_b32 v22, 0x3f803f80
        v_mov_b32 v23, 0x3f803f80
        ''')
        QRA = 199
        e(f'''
        v_mul_u32_u24 v{QRA}, 400, v2
        v_lshl_add_u32 v{QRA}, v{TM}, 4, v{QRA}
        ''')
        for i in range(8): e(f'v_mov_b32 v{AC+i}, 0')
        A0, A1, A2, A3 = 4, 5, 6, 7
        C0, C1, C2, C3, C4 = 8, 9, 10, 11, 12
        e(f'''
        v_bfe_u32 v{TM}, v1, 2, 4
        v_bfe_u32 v{TM+1}, v{TM}, 1, 2
        v_lshlrev_b32 v{TM+1}, 1, v{TM+1}
        v_lshrrev_b32 v{TM+2}, 3, v{TM}
        v_or_b32 v{TM+1}, v{TM+1}, v{TM+2}
        v_bfe_u32 v{TM+2}, v1, 1, 1
        s_and_b32 s44, s28, 1
        s_lshl_b32 s44, s44, 2
        v_or_b32 v{TM+2}, s44, v{TM+2}
        v_xor_b32 v{TM+1}, v{TM+1}, v{TM+2}
        v_mul_u32_u24 v{TM+3}, 384, v{TM}
        v_and_b32 v{TM+4}, 1, v1
        v_lshl_add_u32 v{TM+3}, v{TM+4}, 3, v{TM+3}
        s_lshr_b32 s45, s28, 1
        s_lshl_b32 s45, s45, 7
        s_add_u32 s45, s45, {L_X}
        v_add_u32 v{TM+3}, s45, v{TM+3}
        v_lshl_add_u32 v{A0}, v{TM+1}, 4, v{TM+3}
        v_xor_b32 v{TM+1}, 2, v{TM+1}
        v_lshl_add_u32 v{A1}, v{TM+1}, 4, v{TM+3}
        v_add_u32 v{A2}, {4*XREG}, v{A0}
        v_add_u32 v{A3}, {4*XREG}, v{A1}
        v_and_b32 v{TM}, 1, v3
        v_lshlrev_b32 v{TM}, 2, v{TM}
        v_lshrrev_b32 v{TM+1}, 1, v3
        v_or_b32 v{TM}, v{TM}, v{TM+1}
        v_xor_b32 v{TM}, v{TM}, v{TM+2}
        v_bfe_u32 v{TM+1}, v1, 2, 1
        v_lshl_add_u32 v{TM+1}, v3, 1, v{TM+1}
        v_mul_u32_u24 v{TM+1}, 384, v{TM+1}
        v_lshl_add_u32 v{TM+1}, v{TM+4}, 3, v{TM+1}
        v_add_u32 v{TM+1}, s45, v{TM+1}
        v_bfe_u32 v{TM+3}, v1, 3, 1
        v_mul_u32_u24 v{TM+3}, {XREG}, v{TM+3}
        v_add_u32 v{TM+3}, v{TM+3}, v{TM+1}
        v_lshl_add_u32 v{C0}, v{TM}, 4, v{TM+3}
        v_xor_b32 v{TM}, 2, v{TM}
        v_lshl_add_u32 v{C1}, v{TM}, 4, v{TM+3}
        v_add_u32 v{C2}, {4*XREG}, v{C0}
        v_add_u32 v{C3}, {4*XREG}, v{C1}
        v_lshl_add_u32 v{C5}, v{TM}, 4, v{TM+1}
        v_xor_b32 v{TM}, 2, v{TM}
        v_lshl_add_u32 v{C4}, v{TM}, 4, v{TM+1}
        v_add_u32 v{C4}, {6*XREG}, v{C4}
        v_add_u32 v{C5}, {6*XREG}, v{C5}
        ''')
        self.qblock_addr(QA)

        def aread(dst, ve, vo, off):
            for ks in range(6):
                e(f'ds_read_b128 {vr(dst+4*ks,4)}, v{ve if ks % 2 == 0 else vo} offset:{off + (ks >> 1)*128}')
        e(f's_mov_b32 s44, {f32bits(1.0/192)}')
        e(f's_mov_b32 s45, {f32bits(1e-5)}')
        def finalize(t, SD, SSD):
            for r in range(4): e(f'v_mul_f32 v{SD+r}, s44, v{SD+r}')
            for r in range(4): e(f'v_mul_f32 v{TM+r}, v{SD+r}, v{SD+r}')
            for r in range(4): e(f'v_fma_f32 v{SSD+r}, v{SSD+r}, s44, -v{TM+r}')
            for r in range(4): e(f'v_max_f32 v{SSD+r}, 0, v{SSD+r}')
            for r in range(4): e(f'v_add_f32 v{SSD+r}, s45, v{SSD+r}')
            for r in range(4): e(f'v_rsq_f32 v{RS+4*t+r}, v{SSD+r}')
            for r in range(4): e(f'v_sub_f32 v{M0E+4*t+r}, v{SD+r}, v{S1+r}')
            for r in range(4): e(f'v_mul_f32 v{MR+4*t+r}, v{SD+r}, v{RS+4*t+r}')
        def xissue(k):
            if k < 7:
                for ee in range(2):
                    base = (A0, A1)[ee] if k < 4 else (A2, A3)[ee]
                    uoff = (k if k < 4 else k - 4) * XREG
                    for tt in range(2):
                        e(f'ds_read_b64_tr_b16 {vr(XQ[k*2+ee] + tt*2, 2)}, v{base} offset:{uoff + 3072 + tt*6144}')
            else:
                aa = k - 7
                for ee in range(2):
                    for hh in range(2):
                        if aa == 0: base, off = (C0, C1)[ee], hh * 2 * XREG
                        elif hh == 0: base, off = (C2, C3)[ee], 0
                        else: base, off = (C4, C5)[ee], 0
                        e(f'ds_read_b64_tr_b16 {vr(XQ[k*2+ee] + hh*2, 2)}, v{base} offset:{off}')
        ac = AC + 2
        def stats_tail(SSD):
            e(f'''
            v_add_f32 v{ac}, v{ac}, v{ac+1}
            v_add_f32 v{ac+2}, v{ac+2}, v{ac+3}
            v_add_f32 v{ac}, v{ac}, v{AC}
            v_fma_f32 v{ac}, 2.0, v{ac+2}, v{ac}
            {MF4} {vr(SSD,4)}, v{ac}, v17, 0
            ''')
        def dots(TT):
            for i in range(24):
                e(f'v_dot2c_f32_bf16 v{ac+(i&1)}, v{TT+i}, v{TT+i}')
                e(f'v_dot2c_f32_bf16 v{ac+2+(i&1)}, v{TT+i}, v{F1+i}')
        SM1 = TM + 8
        e(f's_waitcnt vmcnt({3*WUP})')
        if WUP < 4: fine_group(WUP)
        aread(F1, 16, 15, 0)
        for ks in range(6):
            e(f's_waitcnt lgkmcnt({5-ks})')
            e(f'{MF} {vr(S1,4)}, {vr(F1+4*ks,4)}, {vr(ONES,4)}, ' + ('0' if ks == 0 else vr(S1, 4)))
        for r in range(F1, F1 + 24):
            e(f'v_dot2c_f32_bf16 v{AC+(r&1)}, v{r}, v{r}')
        e(f'v_add_f32 v{AC}, v{AC}, v{AC+1}')
        for r in range(4): e(f'v_mov_b32 v{L1+r}, v{S1+r}')
        for r in range(4): e(f'v_mul_f32 v{S1+r}, s44, v{S1+r}')
        e(f'v_mov_b32 v{M1}, v{S1}')
        e(f'v_mov_b32 v{M1+1}, v{S1+2}')
        if WUP == 1:
            e('s_waitcnt vmcnt(3)')
            fine_group(2)
            e('s_waitcnt vmcnt(3)')
            fine_group(3)
        elif WUP == 2:
            e('s_waitcnt vmcnt(6)')
            fine_group(3)
            e('s_waitcnt vmcnt(6)')
        elif WUP == 3:
            e('s_waitcnt vmcnt(6)')
        else:
            e('s_waitcnt vmcnt(6)')
        QPOS = self.opt.get('qpos', 0)
        def qissue_all():
            self.qblock_issue(QA, QL)
            l6 = self.lab('w6q')
            self.br(f'''
            s_cmp_lg_u32 s28, 6
            s_cbranch_scc1 {l6}''')
            self.qblock_addr(184, '7')
            self.qblock_issue(184, 228)
            a.label(l6)
        def wait_minus(n):
            l6, l6b = self.lab('w6w'), self.lab('w6w')
            self.br(f'''
            s_cmp_lg_u32 s28, 6
            s_cbranch_scc1 {l6}''')
            e(f's_waitcnt vmcnt({8 + n})')
            self.br(f's_branch {l6b}')
            a.label(l6)
            e(f's_waitcnt vmcnt({4 + n})')
            a.label(l6b)
        if QPOS == 1: qissue_all()
        aread(T0, 13, 14, 3072)
        for ks in range(6):
            e(f's_waitcnt lgkmcnt({5-ks})')
            e(f'{MF} {vr(S0,4)}, {vr(T0+4*ks,4)}, {vr(ONES,4)}, ' + (vr(L1, 4) if ks == 0 else vr(S0, 4)))
        dots(T0)
        stats_tail(SS0)
        for i in range(4): e(f'v_mov_b32 v{ac+i}, 0')
        finalize(0, S0, SS0)
        self.stamp(2)
        if QPOS == 0:
            e('s_waitcnt vmcnt(3)')
            qissue_all()
        wait_minus(0)
        self.stamp(7)
        aread(T1, 13, 14, 3072 + 6144)
        for ks in range(6):
            e(f's_waitcnt lgkmcnt({5-ks})')
            e(f'{MF} {vr(S0b,4)}, {vr(T1+4*ks,4)}, {vr(ONES,4)}, ' + (vr(L1, 4) if ks == 0 else vr(S0b, 4)))
        dots(T1)
        stats_tail(SS1)
        finalize(1, S0b, SS1)
        self.stamp(8)
        self.qblock_finish(QA, QL, QT)
        l6 = self.lab('w6f')
        self.br(f'''
        s_cmp_lg_u32 s28, 6
        s_cbranch_scc1 {l6}''')
        self.qblock_finish(184, 228, QT, '7')
        a.label(l6)
        e('s_waitcnt lgkmcnt(0)')
        e('s_barrier')
        self.stamp(3)
        a.label('L_main_tail')
        e(f'v_lshlrev_b32 v{TM+1}, 4, v2')
        e(f'ds_read_b128 {vr(TM+4,4)}, v{TM+1} offset:{L_SQ}')
        for ks in range(6):
            e(f'ds_read_b128 {vr(QK+4*ks,4)}, v{QRA} offset:{L_QK + ks*64}')
        xl = []
        def xlist(k):
            out = []
            if k < 7:
                for ee in range(2):
                    base = (A0, A1)[ee] if k < 4 else (A2, A3)[ee]
                    uoff = (k if k < 4 else k - 4) * XREG
                    for tt in range(2):
                        out.append(f'ds_read_b64_tr_b16 {vr(XQ[k*2+ee] + tt*2, 2)}, v{base} offset:{uoff + 3072 + tt*6144}')
            else:
                aa = k - 7
                for ee in range(2):
                    for hh in range(2):
                        if aa == 0: base, off = (C0, C1)[ee], hh * 2 * XREG
                        elif hh == 0: base, off = (C2, C3)[ee], 0
                        else: base, off = (C4, C5)[ee], 0
                        out.append(f'ds_read_b64_tr_b16 {vr(XQ[k*2+ee] + hh*2, 2)}, v{base} offset:{off}')
            return out
        for k in range(9): xl += xlist(k)
        lsk, lj = self.lab('skipx'), self.lab('joinx')
        def logits(withx):
            xi = 0
            for ks in range(6):
                e(f's_waitcnt lgkmcnt({min(15, 5 - ks + xi)})')
                for (LD, TT) in ((L1, F1), (L0, T0), (L0b, T1)):
                    e(f'{MF} {vr(LD,4)}, {vr(TT+4*ks,4)}, {vr(QK+4*ks,4)}, ' + ('0' if ks == 0 else vr(LD, 4)))
                    if withx:
                        for _ in range(1):
                            e(xl[xi]); xi += 1
            assert (not withx) or xi == 18
        logits(True)
        e(f'''
        v_add_f32 v{TM+4}, v{TM+4}, v{TM+5}
        v_add_f32 v{TM+6}, v{TM+6}, v{TM+7}
        v_add_f32 v{SQ}, v{TM+4}, v{TM+6}
        ''')
        for x in range(8): e(f'v_mul_f32 v{MR+x}, v{MR+x}, v{SQ}')
        for LD in (L0, L0b):
            for r in range(4): e(f'v_add_f32 v{LD+r}, v{LD+r}, v{L1+r}')
        for t, LD in enumerate((L0, L0b)):
            for r in range(4):
                e(f'v_fma_f32 v{LD+r}, v{LD+r}, v{RS+4*t+r}, -v{MR+4*t+r}')
        e(f'''
        v_max3_f32 v{TM}, v{L0}, v{L0+1}, v{L0+2}
        v_max3_f32 v{TM+1}, v{L0+3}, v{L0b}, v{L0b+1}
        v_max3_f32 v{TM}, v{TM}, v{L0b+2}, v{L0b+3}
        v_max_f32 v{TM}, v{TM}, v{TM+1}
        v_mov_b32 v{TM+1}, v{TM}
        v_permlane16_swap_b32 v{TM}, v{TM+1}
        v_max_f32 v{TM}, v{TM}, v{TM+1}
        v_mov_b32 v{TM+1}, v{TM}
        v_permlane32_swap_b32 v{TM}, v{TM+1}
        v_max_f32 v{TM}, v{TM}, v{TM+1}
        s_lshl_b32 s46, s28, 2
        v_add_u32 v{TM+2}, s46, v19
        ds_write_b32 v{TM+2}, v{TM} offset:{L_MX}
        s_waitcnt lgkmcnt(0)
        ''')
        self.bar()
        e(f'''
        ds_read_b128 {vr(TM+4,4)}, v19 offset:{L_MX}
        ds_read_b128 {vr(TM+8,4)}, v19 offset:{L_MX+16}
        ''')
        for x in xl[18:31]: e(x)
        e('s_waitcnt lgkmcnt(13)')
        e(f'''
        v_max3_f32 v{TM}, v{TM+4}, v{TM+5}, v{TM+6}
        v_max3_f32 v{TM+1}, v{TM+7}, v{TM+8}, v{TM+9}
        v_max3_f32 v{TM}, v{TM}, v{TM+10}, v{TM+11}
        v_max_f32 v{TM}, v{TM}, v{TM+1}
        v_ceil_f32 v{TM}, v{TM}
        ''')
        for x in xl[31:]: e(x)
        self.stamp(4)
        P = [L0, L0 + 1, L0 + 2, L0 + 3, L0b, L0b + 1, L0b + 2, L0b + 3]
        for x in P: e(f'v_sub_f32 v{x}, v{x}, v{TM}')
        for x in P: e(f'v_exp_f32 v{x}, v{x}')
        W = TM + 4
        e(f'v_add_f32 v{TM}, v{P[0]}, v{P[1]}')
        e(f'v_add_f32 v{TM+1}, v{P[2]}, v{P[3]}')
        for x in range(4, 8, 2):
            e(f'v_add_f32 v{TM}, v{TM}, v{P[x]}')
            e(f'v_add_f32 v{TM+1}, v{TM+1}, v{P[x+1]}')
        for x in range(8): e(f'v_mul_f32 v{P[x]}, v{P[x]}, v{RS+x}')
        e(f'v_add_f32 v{TM}, v{TM}, v{TM+1}')
        for i in range(4): e(f'v_cvt_pk_bf16_f32 v{W+i}, v{P[2*i]}, v{P[2*i+1]}')
        e(f'{MF4} {vr(QK,4)}, v17, v{TM}, 0')
        e(f'''
        s_lshl_b32 s46, s28, 10
        v_add_u32 v{TM+3}, s46, v18
        ds_write_b128 v{TM+3}, {vr(W,4)} offset:{L_WF}
        v_add_f32 v{TM+8}, v{P[0]}, v{P[1]}
        v_add_f32 v{TM+9}, v{P[4]}, v{P[5]}
        v_add_f32 v{TM+10}, v{P[2]}, v{P[3]}
        v_add_f32 v{TM+11}, v{P[6]}, v{P[7]}
        v_add_f32 v{TM+8}, v{TM+8}, v{TM+9}
        v_add_f32 v{TM+10}, v{TM+10}, v{TM+11}
        v_cvt_pk_bf16_f32 v{TM+8}, v{TM+8}, v{TM+10}
        ''')
        for i in range(4):
            e(f'v_lshlrev_b32 v{P[2*i]}, 16, v{W+i}')
            e(f'v_and_b32 v{P[2*i+1]}, 0xffff0000, v{W+i}')
        e(f'''
        s_lshr_b32 s46, s28, 2
        s_lshl_b32 s46, s46, 10
        s_and_b32 s47, s28, 3
        s_lshl_b32 s47, s47, 2
        s_add_u32 s46, s46, s47
        v_add_u32 v{TM+3}, s46, v18
        ds_write_b32 v{TM+3}, v{TM+8} offset:{L_WC}
        v_lshlrev_b32 v{TM+9}, 16, v{TM+8}
        v_and_b32 v{TM+10}, 0xffff0000, v{TM+8}
        v_mul_f32 v{TM+1}, v{TM+9}, v{M1}
        v_mul_f32 v{TM+2}, v{TM+10}, v{M1+1}
        ''')
        for x in range(0, 8, 2):
            e(f'v_fmac_f32 v{TM+1}, v{P[x]}, v{M0E+x}')
            e(f'v_fmac_f32 v{TM+2}, v{P[x+1]}, v{M0E+x+1}')
        e(f'v_add_f32 v{TM+1}, v{TM+1}, v{TM+2}')
        e(f'{MF4} {vr(QK+4,4)}, v17, v{TM+1}, 0')
        e(f'''
        s_lshl_b32 s46, s28, 2
        v_add_u32 v{TM+3}, s46, v19
        ds_write_b32 v{TM+3}, v{QK} offset:{L_LS}
        ds_write_b32 v{TM+3}, v{QK+4} offset:{L_CO}
        s_waitcnt lgkmcnt(0)
        ''')
        self.bar()
        self.stamp(5)
        self.br('''
        s_cmp_ge_u32 s28, 6
        s_cbranch_scc1 L_w6_done''')
        lnf = self.lab('nf')
        self.br(f'''
        s_cmp_eq_u32 s54, 0
        s_cbranch_scc1 {lnf}''')
        e(f'''
        s_and_b32 s33, s53, 1
        s_mul_i32 s33, s33, 6
        s_add_u32 s33, s33, s28
        s_mul_i32 s33, s33, 6144
        s_add_u32 s33, s33, {WS_WVO}
        v_lshl_add_u32 v172, v1, 4, s33
        v_add_u32 v173, 3072, v172
        ''')
        for qd in range(6):
            e(f'global_load_dwordx4 {vr(148+4*qd,4)}, v{172 if qd < 3 else 173}, s[26:27] offset:{(qd%3)*1024} sc1')
        a.label(lnf)
        WBL = [24 + 4 * i for i in range(6)] + [72, 76, 80]
        ACC, CW, O = 84, 104, 112
        for k in range(9):
            e(f'ds_read_b128 {vr(WBL[k],4)}, v18 offset:{(L_WF + k*1024) if k < 7 else (L_WC + (k-7)*1024)}')
        e(f'ds_read_b128 {vr(CW,4)}, v19 offset:{L_CO}')
        e(f'ds_read_b128 {vr(CW+4,4)}, v19 offset:{L_CO+16}')
        e(f'''
        v_mul_u32_u24 v{TM}, {2*ZREG}, v2
        v_and_b32 v{TM+1}, 1, v3
        v_lshlrev_b32 v{TM+1}, 5, v{TM+1}
        v_lshrrev_b32 v{TM+2}, 1, v3
        v_lshl_add_u32 v{TM+1}, v{TM+2}, 4, v{TM+1}
        v_add_u32 v{TM}, v{TM}, v{TM+1}
        s_mul_i32 s46, s30, 192
        s_add_u32 s46, s46, {WS_Z}
        s_cmp_ge_u32 s28, 3
        s_cselect_b32 s47, {ZREG - 192}, 0
        s_add_u32 s46, s46, s47
        s_lshl_b32 s47, s28, 6
        s_add_u32 s46, s46, s47
        v_add_u32 v{TM}, s46, v{TM}
        ''')
        for k in range(9):
            e(f's_waitcnt lgkmcnt({10-k})')
            for ee in range(2):
                e(f'{MF} {vr(ACC+4*ee,4)}, {vr(XQ[k*2+ee],4)}, {vr(WBL[k],4)}, ' + ('0' if k == 0 else vr(ACC + 4 * ee, 4)))
        e(f'''
        s_waitcnt lgkmcnt(0)
        v_add_f32 v{CW}, v{CW}, v{CW+1}
        v_add_f32 v{CW+2}, v{CW+2}, v{CW+3}
        v_add_f32 v{CW+4}, v{CW+4}, v{CW+5}
        v_add_f32 v{CW+6}, v{CW+6}, v{CW+7}
        v_add_f32 v{CW}, v{CW}, v{CW+2}
        v_add_f32 v{CW+4}, v{CW+4}, v{CW+6}
        v_add_f32 v{CW}, v{CW}, v{CW+4}
        ''')
        for x in range(8): e(f'v_sub_f32 v{ACC+x}, v{ACC+x}, v{CW}')
        e(f'''
        v_cvt_pk_bf16_f32 v{O}, v{ACC}, v{ACC+1}
        v_cvt_pk_bf16_f32 v{O+1}, v{ACC+2}, v{ACC+3}
        v_cvt_pk_bf16_f32 v{O+2}, v{ACC+4}, v{ACC+5}
        v_cvt_pk_bf16_f32 v{O+3}, v{ACC+6}, v{ACC+7}
        v_permlane16_swap_b32 v{O}, v{O+2}
        v_permlane16_swap_b32 v{O+1}, v{O+3}
        ''')
        self.nodry(f'global_store_dwordx4 v{TM}, {vr(O,4)}, s[26:27] sc1')
        if self.opt.get('mlafter', 0): self.bar()
        self.stamp(6)
        a.label('L_w6_done')
        self.br('''
        s_cmp_lg_u32 s54, 0
        s_cbranch_scc1 L_fin_tail''')
        self.br('s_branch L_end')

        a.label(lh)
        e(f'''
        v_lshlrev_b32 v18, 4, v1
        v_lshlrev_b32 v19, 5, v2
        v_mov_b32 v4, 0
        v_mov_b32 v5, 0xff800000
        ds_write_b32 v18, v4 offset:{L_WC + 1024 + 12}
        ds_write_b32 v19, v5 offset:{L_MX + 28}
        ds_write_b32 v19, v4 offset:{L_LS + 28}
        ds_write_b32 v19, v4 offset:{L_CO + 28}
        ''')
        if self.opt.get('cpf', 0):
            lcp = self.lab('cpf')
            self.br(f'''
            s_cmp_ge_u32 s30, {self.opt.get('cpf')}
            s_cbranch_scc1 {lcp}''')
            a.raw('    s_getpc_b64 s[50:51]')
            a.raw('L_pc_here:')
            a.raw('    s_sub_u32 s50, s50, (L_pc_here - %s)' % KNAME)
            a.raw('    s_subb_u32 s51, s51, 0')
            e('v_lshlrev_b32 v12, 4, v1')
            ncode = self.opt.get('cpfkb', 12)
            for i in range(ncode):
                e(f'global_load_dwordx4 v[64:67], v12, s[50:51]')
                e('v_add_u32 v12, 1024, v12')
            a.label(lcp)
        e(f'''
        v_mov_b32 v56, -1
        v_mov_b32 v57, -1
        v_mov_b32 v58, -1
        v_mov_b32 v59, -1
        v_min_u32 v12, 47, v1
        v_mul_u32_u24 v13, 43, v12
        v_lshrrev_b32 v13, 9, v13
        v_mul_u32_u24 v14, 12, v13
        v_sub_u32 v14, v12, v14
        v_mul_u32_u24 v13, {ZREG}, v13
        v_lshl_add_u32 v13, v14, 4, v13
        s_mul_i32 s44, s30, 192
        s_add_u32 s44, s44, {WS_Z}
        v_add_u32 v13, s44, v13
        ''')
        for i in range(8):
            e('global_store_dwordx4 v13, v[56:59], s[26:27] sc1')
            if i < 7: e(f'v_add_u32 v13, {4*ZREG}, v13')
        loi = self.lab('oi')
        self.br(f'''
        s_cmp_ge_u32 s30, 16
        s_cbranch_scc1 {loi}''')
        e('''
        s_mul_i32 s44, s30, 384
        v_lshl_add_u32 v13, v1, 4, s44
        s_mov_b32 exec_lo, 0xffffff
        s_mov_b32 exec_hi, 0
        global_load_dwordx4 v[60:63], v13, s[8:9]
        s_waitcnt vmcnt(0)
        global_store_dwordx4 v13, v[60:63], s[22:23] sc1
        s_mov_b64 exec, -1
        ''')
        a.label(loi)
        if self.opt.get('dry', 0):
            self.dry_call('L_main_tail', 'L_main_dry_ret')
        self.stamp(2)
        self.poll_nonce0(52, 12)
        e(f'''
        v_mov_b32 v12, {L_NON}
        ds_write_b32 v12, v52
        ''')
        lnf = self.lab('hnf')
        self.br(f'''
        s_cmp_eq_u32 s54, 0
        s_cbranch_scc1 {lnf}''')
        if self.opt.get('fdry', 1):
            self.dry_call('L_fin_tail', 'L_fin_dry_ret')
        e(f'''
        s_and_b32 s33, s53, 1
        s_mul_i32 s33, s33, 6
        v_min_u32 v13, 5, v1
        v_add_u32 v13, s33, v13
        v_lshlrev_b32 v13, 7, v13
        v_add_u32 v13, {WS_WF}, v13
        s_mov_b32 s42, 0
        ''')
        lp, ld = self.lab('poll'), self.lab('polld')
        a.label(lp)
        e('''
        global_load_dword v14, v13, s[26:27] sc1
        s_add_u32 s42, s42, 1
        s_waitcnt vmcnt(0)
        v_cmp_ne_u32 vcc, v14, v52
        ''')
        self.br(f's_cbranch_vccz {ld}')
        e('s_sleep 4')
        e('s_cmp_lt_u32 s42, 0x40000')
        self.br(f's_cbranch_scc1 {lp}')
        a.label(ld)
        a.label(lnf)
        e('s_waitcnt lgkmcnt(0)')
        self.stamp(4)
        e('s_barrier')
        self.stamp(3)
        e(f'''
        s_barrier
        s_barrier
        ds_read_b128 v[24:27], v19 offset:{L_MX}
        ds_read_b128 v[28:31], v19 offset:{L_MX+16}
        ds_read_b128 v[32:35], v19 offset:{L_LS}
        ds_read_b128 v[36:39], v19 offset:{L_LS+16}
        s_lshl_b32 s44, s30, 4
        s_add_u32 s44, s44, {WS_ML}
        v_lshlrev_b32 v8, 1, v2
        v_add_u32 v8, v8, v3
        v_mul_u32_u24 v8, 3584, v8
        v_add_u32 v8, s44, v8
        v_mov_b32 v6, v52
        v_mov_b32 v7, v52
        s_waitcnt lgkmcnt(0)
        v_max3_f32 v4, v24, v25, v26
        v_max3_f32 v5, v27, v28, v29
        v_max3_f32 v4, v4, v30, v31
        v_max_f32 v4, v4, v5
        v_ceil_f32 v4, v4
        v_add_f32 v32, v32, v33
        v_add_f32 v34, v34, v35
        v_add_f32 v36, v36, v37
        v_add_f32 v38, v38, v39
        v_add_f32 v32, v32, v34
        v_add_f32 v36, v36, v38
        v_add_f32 v5, v32, v36
        ''')
        if self.opt.get('mlafter', 0): e('s_barrier')
        e('''
        s_mov_b32 exec_lo, -1
        s_mov_b32 exec_hi, 0
        global_store_dwordx4 v8, v[4:7], s[26:27] sc1
        s_mov_b64 exec, -1
        ''')
        self.stamp(6)
        self.br('''
        s_cmp_lg_u32 s54, 0
        s_cbranch_scc1 L_fin_tail''')
        self.br('s_branch L_end')


HEADER = open('standalone__detection_seg_dino__vision.s.ref').read().split('; Override')[0]

def kd(name, vgpr=256, sgpr=102):
    return '''.amdhsa_kernel %s
  .amdhsa_next_free_vgpr %d
  .amdhsa_next_free_sgpr %d
  .amdhsa_accum_offset %d
  .amdhsa_group_segment_fixed_size 0
  .amdhsa_kernarg_size 80
  .amdhsa_user_sgpr_count 2
  .amdhsa_user_sgpr_kernarg_segment_ptr 1
  .amdhsa_system_sgpr_workgroup_id_x 1
.end_amdhsa_kernel
''' % (name, vgpr, sgpr, (vgpr + 3) // 4 * 4)

DOC = """;
;   ids 8k, k < 12  : Qk partial producers (d slice a = k % 3, channel group b = k / 3), granules {3 dwords, nonce}
"""

def build(stamps=False, opt=None):
    out = HEADER
    out += '; @launch grid=(256,1,1) block=(512,1,1) lds=%d\n' % max(LDS_TOTAL, L_X + 7 * XREG)
    out += DOC
    out += '.amdgcn_target "amdgcn-amd-amdhsa--gfx950"\n.text\n'
    G = Gen(stamps, opt)
    a = G.a
    n = KNAME
    a.raw('.globl %s\n.p2align 8\n.type %s,@function\n%s:' % (n, n, n))
    G.br('''
    s_cmp_ge_u32 s2, 256
    s_cbranch_scc1 L_exit''')
    G.stamp_init()
    G.prologue()
    G.stamp(0)
    G.e('s_and_b32 s31, s2, 7')
    G.br('''
    s_cmp_eq_u32 s31, 0
    s_cbranch_scc1 L_helpers''')
    if (opt or {}).get('bal', 0):
        G.e('''
        s_lshr_b32 s53, s2, 3
        s_sub_u32 s30, s2, s53
        s_sub_u32 s30, s30, 1
        ''')
        G.br('''
        s_cmp_ge_u32 s30, 216
        s_cbranch_scc1 L_end''')
        G.e('''
        s_add_u32 s30, s30, 8
        s_mul_i32 s32, s53, 37
        s_lshr_b32 s32, s32, 8
        s_mul_i32 s32, s32, 7
        s_sub_u32 s32, s53, s32
        s_add_u32 s32, s32, 1
        s_cmp_eq_u32 s32, s31
        s_cselect_b32 s54, 1, 0
        ''')
        a.label('L_main_entry')
    else:
        G.e('''
        s_lshr_b32 s53, s2, 3
        s_sub_u32 s30, s2, s53
        s_sub_u32 s30, s30, 1
        s_mul_i32 s32, s53, 37
        s_lshr_b32 s32, s32, 8
        s_mul_i32 s32, s32, 7
        s_sub_u32 s32, s53, s32
        s_add_u32 s32, s32, 1
        s_cmp_eq_u32 s32, s31
        s_cselect_b32 s54, 1, 0
        ''')
    G.role_main()
    G.role_final(False)
    a.label('L_helpers')
    G.e('s_lshr_b32 s30, s2, 3')
    if (opt or {}).get('bal', 0):
        lq = G.lab('nm')
        G.br(f'''
        s_cmp_lt_u32 s30, 24
        s_cbranch_scc1 {lq}''')
        G.e('''
        s_sub_u32 s30, s30, 24
        s_mov_b32 s53, 31
        s_cmp_eq_u32 s30, 0
        s_cselect_b32 s54, 1, 0
        ''')
        G.br('s_branch L_main_entry')
        a.label(lq)
    else:
        G.br('''
        s_cmp_ge_u32 s30, 24
        s_cbranch_scc1 L_end''')
    G.br('''
    s_cmp_ge_u32 s30, 12
    s_cbranch_scc1 L_role_wvo''')
    G.role_qk()
    G.br('s_branch L_end')
    a.label('L_role_wvo')
    G.e('s_sub_u32 s30, s30, 12')
    G.role_wvo()
    a.label('L_end')
    G.stamp_flush()
    a.label('L_exit')
    G.e('s_endpgm')
    out += a.text()
    out += '.section .rodata,"a"\n.p2align 6\n' + kd(n)
    return out

if __name__ == '__main__':
    ap = argparse.ArgumentParser()
    ap.add_argument('--stamps', action='store_true')
    ap.add_argument('--opt', default='')
    ap.add_argument('-o', default='standalone__detection_seg_dino__vision.s')
    args = ap.parse_args()
    OPT = {}
    for kv in args.opt.split(','):
        if kv:
            k, v = kv.split('='); OPT[k] = int(v)
    s = build(args.stamps, OPT)
    open(args.o, 'w').write(s)
    print('wrote', args.o, len(s), 'bytes')
```
